```python
import torch

def _softmax(x, axis=-1):
    return torch.softmax(x, dim=axis)
def _gelu(x):
    return torch.nn.functional.gelu(x, approximate="tanh")
def _silu(x):
    return torch.nn.functional.silu(x)
def _sigmoid(x):
    return torch.sigmoid(x)
def _layernorm(x, axis=-1, eps=1e-5):
    m = x.mean(dim=axis, keepdim=True)
    v = x.var(dim=axis, keepdim=True, unbiased=False)
    return (x - m) / torch.sqrt(v + eps)
def _scatter_add(tgt, idx, src, axis=0):
    return tgt.clone().index_add_(axis, idx, src)
def _segment_sum(src, seg, n):
    out = torch.zeros((n,) + src.shape[1:], dtype=src.dtype)
    return out.index_add_(0, seg, src)
def _pad(x, pw):
    flat = tuple(v for pair in reversed(pw) for v in pair)
    return torch.nn.functional.pad(x, flat)

kernel_name = 'interleave_layers__ssm_conv_h3__sliding_local_dilated__prompt'

def setup_inputs():

    _w = (lambda a: (lambda t: t.to(torch.bfloat16) if t.is_floating_point() else t)(torch.as_tensor(a)))
    def _A_setup():
        B, S, D = 1, 2048, 640
        ks = 4
        return {
            "q": _w((lambda *s: torch.randn(*s, dtype=torch.bfloat16) * 0.05)(B, S, D)),
            "k": _w((lambda *s: torch.randn(*s, dtype=torch.bfloat16) * 0.4)(B, S, D)),
            "v": _w((lambda *s: torch.randn(*s, dtype=torch.bfloat16) * 0.4)(B, S, D)),
            "shift_k": _w((lambda *s: torch.randn(*s, dtype=torch.bfloat16) * 0.4)(D, ks) * 0.5),
            "ssm_k": _w((lambda *s: torch.randn(*s, dtype=torch.bfloat16) * 0.4)(D, S) * (1.0 / S ** 0.5)),
            "ssm_D": _w((lambda *s: torch.randn(*s, dtype=torch.bfloat16) * 0.4)(D)),
        }
    _A_in = _A_setup()

    def _B_setup():
        B, S, D = 1, 2048, 640
        return {
            "x": _w((lambda *s: torch.randn(*s, dtype=torch.bfloat16) * 0.05)(B, S, D)),
            "wqkv": _w((lambda *s: torch.randn(*s, dtype=torch.bfloat16) * 0.05)(D, 3 * D)),
            "wo": _w((lambda *s: torch.randn(*s, dtype=torch.bfloat16) * 0.05)(D, D)),
        }
    _B_in = _B_setup()

    return {
        "A_q": _A_in["q"],
        "A_k": _A_in["k"],
        "A_v": _A_in["v"],
        "A_shift_k": _A_in["shift_k"],
        "A_ssm_k": _A_in["ssm_k"],
        "A_ssm_D": _A_in["ssm_D"],
        "B_x": _B_in["x"],
        "B_wqkv": _B_in["wqkv"],
        "B_wo": _B_in["wo"],
    }

def reference(A_q, A_k, A_v, A_shift_k, A_ssm_k, A_ssm_D, B_x, B_wqkv, B_wo):
    def _A_ref(q, k, v, shift_k, ssm_k, ssm_D):
        B, S, D = q.shape
        ks = shift_k.shape[-1]
        k_pad = _pad(k, ((0, 0), (ks - 1, 0), (0, 0)))
        k_shift = torch.zeros_like(k)
        for t in range(ks):
            k_shift = k_shift + k_pad[:, t:t + S, :] * shift_k[:, ks - 1 - t][None, None, :]
        kv = k_shift * v
        L = 2 * S
        kv_pad = _pad(kv, ((0, 0), (0, S), (0, 0)))
        kf_pad = _pad(ssm_k, ((0, 0), (0, S)))
        kv_f = (lambda x, axes=(-2,-1): torch.fft.rfft2(x.float(), dim=axes))(kv_pad[:, None, :, :], axes=(1, 2))
        kf_f = (lambda x, axes=(-2,-1): torch.fft.rfft2(x.float(), dim=axes))(kf_pad[:, None, :], axes=(1, 2))
        kf_f = (lambda x, *d: x.permute(*d))(kf_f, 1, 2, 0)
        y_f = kv_f * kf_f[None, :, :, :]
        y = (lambda x, s, axes=(-2,-1): torch.fft.irfft2(x, s=s, dim=axes).to(torch.bfloat16))(y_f, (1, L), axes=(1, 2))[:, 0, :S, :]
        y = y + kv * ssm_D[None, None, :]
        return q * y

    def _B_ref(x, wqkv, wo):
        B, S, D = x.shape
        H = 32; Dh = D // H
        W, dil = 8, 2
        qkv = (lambda x, *d: x.permute(*d))((x @ wqkv).reshape(B, S, 3, H, Dh), 2, 0, 3, 1, 4)
        q, k, v = qkv[0], qkv[1], qkv[2]
        scale = Dh ** -0.5
        pos = torch.arange(S)
        off = torch.arange(W) * dil
        idx = pos[:, None] - off[None, :]
        mask = idx >= 0
        idx_c = torch.where(mask, idx, 0).reshape(-1)
        kg = k[:, :, idx_c, :].reshape(B, H, S, W, Dh)
        vg = v[:, :, idx_c, :].reshape(B, H, S, W, Dh)
        logits = torch.einsum("bhsd,bhswd->bhsw", q, kg) * scale
        logits = torch.where(mask[None, None, :, :], logits, -1e9)
        attn = _softmax(logits, axis=-1)
        o = torch.einsum("bhsw,bhswd->bhsd", attn, vg)
        return (lambda x, *d: x.permute(*d))(o, 0, 2, 1, 3).reshape(B, S, D) @ wo

    x = A_q
    x = x + _A_ref(_layernorm(x, axis=-1), A_k, A_v, A_shift_k, A_ssm_k, A_ssm_D)
    x = x + _B_ref(_layernorm(x, axis=-1), B_wqkv, B_wo)
    x = x + _A_ref(_layernorm(x, axis=-1), A_k, A_v, A_shift_k, A_ssm_k, A_ssm_D)
    x = x + _B_ref(_layernorm(x, axis=-1), B_wqkv, B_wo)
    return x
```

```python
import re

REG_RE = re.compile(r'^(-?)(abs\()?([vas])(\d+|\[(\d+):(\d+)\])\)?$')

def parse_reg(tok):
    tok = tok.strip()
    if tok in ('vcc',):
        return [('s', 'vcc_lo'), ('s', 'vcc_hi')]
    if tok in ('vcc_lo', 'vcc_hi', 'm0', 'exec_lo', 'exec_hi'):
        return [('s', tok)]
    if tok == 'exec':
        return [('s', 'exec_lo'), ('s', 'exec_hi')]
    t = tok
    if t.startswith('-'):
        t = t[1:]
    if t.startswith('|') and t.endswith('|'):
        t = t[1:-1]
    if t.startswith('abs(') and t.endswith(')'):
        t = t[4:-1]
    m = re.match(r'^([vas])(\d+)$', t)
    if m:
        return [(m.group(1), int(m.group(2)))]
    m = re.match(r'^([vas])\[(\d+):(\d+)\]$', t)
    if m:
        return [(m.group(1), i) for i in range(int(m.group(2)), int(m.group(3)) + 1)]
    return []

TRANS = ('v_exp_f32', 'v_log_f32', 'v_rcp_f32', 'v_rsq_f32', 'v_sqrt_f32', 'v_sin_f32', 'v_cos_f32',
         'v_rcp_iflag_f32')

class Ins:
    __slots__ = ('text', 'mn', 'ops', 'mods', 'kind', 'wr', 'rd', 'srcC', 'passes', 'dpp', 'label', 'target',
                 'store_data', 'trans', 'lds_dma', 'rdAB')
    def __init__(self, text):
        self.text = text
        self.label = None
        self.target = None
        t = text.split(';')[0].strip()
        self.kind = 'other'
        self.wr = []; self.rd = []; self.srcC = []; self.rdAB = []
        self.passes = 0; self.dpp = False; self.store_data = []; self.trans = False; self.lds_dma = False
        self.mn = ''; self.ops = []; self.mods = ''
        if not t:
            self.kind = 'none'; return
        if t.endswith(':'):
            self.kind = 'label'; self.label = t[:-1]; return
        if t.startswith('.'):
            self.kind = 'none'; return
        parts = t.split(None, 1)
        mn = parts[0]; self.mn = mn
        rest = parts[1] if len(parts) > 1 else ''
        ops = []; cur = ''; depth = 0
        for ch in rest:
            if ch in '[(': depth += 1
            if ch in '])': depth -= 1
            if ch == ',' and depth == 0:
                ops.append(cur.strip()); cur = ''
            else:
                cur += ch
        if cur.strip(): ops.append(cur.strip())
        mods = ''
        if ops:
            last = ops[-1].split(None, 1)
            if len(last) > 1:
                ops[-1] = last[0]; mods = last[1]
        self.ops = ops; self.mods = mods
        R = [parse_reg(o) for o in ops]
        base = mn
        for suf in ('_e32', '_e64', '_dpp', '_sdwa'):
            if base.endswith(suf): base = base[:-len(suf)]
        if mn.startswith('v_mfma'):
            self.kind = 'mfma'
            self.wr = R[0]; self.rdAB = R[1] + R[2]; self.srcC = R[3]; self.rd = self.rdAB + self.srcC
            if '32x32x16' in mn or '32x32x8' in mn: self.passes = 8
            elif '16x16x32' in mn or '16x16x16' in mn: self.passes = 4
            else: raise ValueError('unknown mfma passes ' + mn)
        elif mn.startswith('v_'):
            self.kind = 'valu'
            self.dpp = ('_dpp' in mn) or ('row_' in mods) or ('quad_perm' in mods)
            self.trans = base in TRANS
            if base.startswith('v_permlane') and 'swap' in base:
                self.wr = R[0] + R[1]; self.rd = R[0] + R[1]
            elif base.startswith('v_cmp'):
                self.wr = R[0]; self.rd = sum(R[1:], [])
            elif base in ('v_add_co_u32', 'v_sub_co_u32', 'v_subrev_co_u32'):
                self.wr = R[0] + R[1]; self.rd = sum(R[2:], [])
            elif base in ('v_addc_co_u32', 'v_subb_co_u32'):
                self.wr = R[0] + R[1]; self.rd = sum(R[2:], [])
            elif base in ('v_fmac_f32', 'v_dot2c_f32_bf16', 'v_pk_fmac_f16', 'v_writelane_b32'):
                self.wr = R[0]; self.rd = sum(R, [])
            elif base == 'v_nop':
                pass
            else:
                self.wr = R[0]; self.rd = sum(R[1:], [])
                if self.dpp:
                    self.rd = self.rd + R[0]
        elif mn.startswith('ds_'):
            self.kind = 'ds'
            if mn.startswith('ds_read') or mn.startswith('ds_bpermute') or mn.startswith('ds_permute') or mn.startswith('ds_swizzle'):
                self.wr = R[0]; self.rd = sum(R[1:], [])
            else:
                self.rd = sum(R, [])
        elif mn.startswith('global_') or mn.startswith('buffer_') or mn.startswith('flat_'):
            self.kind = 'vmem'
            islds = ('_lds_' in mn) or (' lds' in (' ' + mods))
            self.lds_dma = islds
            if mn in ('buffer_wbl2', 'buffer_inv'):
                pass
            elif 'load' in mn and not islds:
                self.wr = R[0]; self.rd = sum(R[1:], [])
            elif 'atomic' in mn and ('sc0' in mods):
                self.wr = R[0]; self.rd = sum(R[1:], [])
            elif 'store' in mn:
                self.rd = sum(R, [])
                if mn.startswith('global_'):
                    d = R[1]
                else:
                    d = R[0]
                if 'x3' in mn or 'x4' in mn:
                    self.store_data = d
            else:
                self.rd = sum(R, [])
            if islds: self.rd = self.rd + [('s', 'm0')]
        elif mn.startswith('s_'):
            self.kind = 'salu'
            if mn.startswith('s_cbranch') or mn == 's_branch':
                self.kind = 'branch'; self.target = ops[0]
            elif mn in ('s_waitcnt', 's_nop', 's_barrier', 's_endpgm', 's_setprio', 's_sleep'):
                pass
            elif mn.startswith('s_cmp') or mn.startswith('s_bitcmp'):
                self.rd = sum(R, [])
            elif mn.startswith('s_load') or mn.startswith('s_buffer_load'):
                self.kind = 'smem'; self.wr = R[0]; self.rd = sum(R[1:], [])
            elif mn in ('s_and_saveexec_b64', 's_or_saveexec_b64'):
                self.wr = R[0] + parse_reg('exec'); self.rd = sum(R[1:], [])
            else:
                self.wr = R[0] if R else []; self.rd = sum(R[1:], [])
        else:
            raise ValueError('cannot classify: ' + text)

    def states(self):
        if self.kind in ('none', 'label'): return 0
        if self.mn == 's_nop': return int(self.ops[0], 0) + 1
        return 1


def need_states(p, c):
    n = 0
    wr = set(p.wr)
    vwr = {r for r in wr if r[0] in 'va'}
    swr = {r for r in wr if r[0] == 's'}
    crd = set(c.rd); cwr = set(c.wr)
    if p.kind == 'valu':
        if c.kind == 'mfma' and (vwr & crd): n = max(n, 2)
        if c.kind == 'valu':
            base = c.mn
            if vwr & crd:
                if base.startswith('v_permlane'): n = max(n, 2)
                if c.dpp: n = max(n, 2)
                if base.startswith('v_readlane') or base.startswith('v_readfirstlane'): n = max(n, 1)
                if p.trans and not c.trans: n = max(n, 1)
                if p.trans and c.trans: n = max(n, 1)
            if swr & crd:
                n = max(n, 4 if (base.startswith('v_readlane') or base.startswith('v_writelane')) else 2)
        if c.kind == 'vmem' and (swr & crd): n = max(n, 5)
        if c.kind in ('salu', 'smem', 'branch') and (swr & crd): n = max(n, 2)
        if c.kind == 'branch' and swr and ('vcc' in c.mn): n = max(n, 2)
    if p.kind == 'mfma':
        D = set(p.wr)
        big = {2: 5, 4: 8, 8: 12}[p.passes]
        if c.kind == 'valu' and (D & (crd | cwr)): n = max(n, big)
        if c.kind in ('vmem', 'ds') and (D & (crd | cwr)): n = max(n, big)
        if c.kind == 'mfma':
            if D & set(c.rdAB): n = max(n, big)
            if D & set(c.srcC):
                if list(p.wr) == list(c.srcC) and p.passes == c.passes:
                    n = max(n, 0 if p.passes >= 4 else 2)
                else:
                    n = max(n, {2: 4, 4: 6, 8: 10}[p.passes])
            elif D & cwr:
                n = max(n, big)
        if c.kind == 'valu' and (set(p.srcC) & cwr): n = max(n, {2: 1, 4: 3, 8: 7}[p.passes])
    if p.kind == 'salu':
        if ('s', 'm0') in wr and c.kind == 'vmem' and c.lds_dma: n = max(n, 1)
    if p.kind == 'vmem' and p.store_data:
        sd = set(p.store_data)
        if c.kind == 'valu' and (sd & cwr): n = max(n, 2)
        elif sd & cwr: n = max(n, 1)
    return n

WINDOW = 16

class Asm:
    def __init__(self):
        self.ins = []
        self.vm = []
        self.lg = []
    def e(self, text, tag=None):
        for line in text.split('\n'):
            line = line.strip()
            if not line: continue
            i = Ins(line)
            self.ins.append(i)
            if i.kind == 'vmem' and i.mn not in ('buffer_inv',):
                self.vm.append(tag)
            elif i.kind == 'ds':
                self.lg.append(tag)
            elif i.mn == 's_waitcnt':
                m = re.search(r'vmcnt\((\d+)\)', line)
                if m:
                    k = int(m.group(1)); self.vm = self.vm[len(self.vm) - k:] if k < len(self.vm) else self.vm
                    if k == 0: self.vm = []
                m = re.search(r'lgkmcnt\((\d+)\)', line)
                if m:
                    k = int(m.group(1)); self.lg = self.lg[len(self.lg) - k:] if k < len(self.lg) else self.lg
                    if k == 0: self.lg = []
    def c(self, text):
        self.ins.append(Ins('; ' + text))
    def label(self, name):
        self.ins.append(Ins(name + ':'))
    def _cnt(self, lst, tags):
        if not isinstance(tags, (list, tuple, set)): tags = [tags]
        last = -1
        for idx, t in enumerate(lst):
            if t in tags: last = idx
        if last < 0: return None
        return len(lst) - 1 - last
    def wait_vm(self, tags, extra=''):
        n = self._cnt(self.vm, tags)
        if n is None: return
        n = min(n, 63)
        self.e(f's_waitcnt vmcnt({n})')
    def wait_lg(self, tags):
        n = self._cnt(self.lg, tags)
        if n is None: return
        n = min(n, 15)
        self.e(f's_waitcnt lgkmcnt({n})')
    def wait(self, vm=None, lg=None):
        parts = []
        if vm is not None:
            n = self._cnt(self.vm, vm)
            if n is not None: parts.append(f'vmcnt({min(n,63)})')
        if lg is not None:
            n = self._cnt(self.lg, lg)
            if n is not None: parts.append(f'lgkmcnt({min(n,15)})')
        if parts: self.e('s_waitcnt ' + ' '.join(parts))
    def reset_counts(self):
        self.vm = []; self.lg = []

    def fix_hazards(self):
        out = []
        nins = 0
        for c in self.ins:
            if c.kind in ('none', 'label'):
                out.append(c); continue
            need = 0
            dist = 0
            for p in reversed(out):
                if p.kind == 'none': continue
                if p.kind == 'label': continue
                if dist >= WINDOW: break
                n = need_states(p, c)
                if n > dist: need = max(need, n - dist)
                dist += p.states()
            while need > 0:
                k = min(need, 16)
                out.append(Ins(f's_nop {k-1}')); need -= k; nins += 1
            out.append(c)
        self.ins = out
        self.check_edges()
        return nins

    def check_edges(self):
        labels = {i.label: idx for idx, i in enumerate(self.ins) if i.kind == 'label'}
        for bi, b in enumerate(self.ins):
            if b.kind != 'branch': continue
            if b.target not in labels: raise ValueError('unknown label ' + str(b.target))
            ti = labels[b.target]
            prods = []
            d = 0
            for p in reversed(self.ins[:bi + 1]):
                if p.kind in ('none', 'label'): continue
                prods.append((p, d)); d += p.states()
                if d >= WINDOW: break
            dc = 0
            for c in self.ins[ti + 1:]:
                if c.kind in ('none', 'label'): continue
                for p, dp in prods:
                    between = dp + dc
                    n = need_states(p, c)
                    if n > between:
                        raise ValueError(f'hazard across branch: "{p.text}" -> "{c.text}" need {n} have {between}')
                dc += c.states()
                if dc >= WINDOW: break
                if c.kind == 'branch' and c.mn == 's_branch': break

    def text(self):
        out = []
        for i in self.ins:
            if i.kind == 'label': out.append(i.text)
            else: out.append('    ' + i.text)
        return '\n'.join(out) + '\n'
```

```python
from asmgen import Asm
R_OFF   = 0x0
XQ2_OFF = 0x280000
WF1_OFF = 0x780000
WF2_OFF = 0xA00000
CS1_OFF = 0xB00000
EX_OFF  = 0xB10000
Y_OFF   = 0xC00000
X1_OFF  = 0xE80000
O_OFF   = 0x1100000
X3_OFF  = 0x1380000
SZ = 2048 * 640 * 2
KA = dict(q=0, k=8, v=16, shift=24, ssmk=32, ssmD=40, bx=48, wqkv=56, wo=64, out=72, dbg=80, ws=88)

def srd(a, d, base, nbytes, off=0):
    if off:
        a.e(f's_add_u32 s{d}, s{base}, {hex(off)}')
        a.e(f's_addc_u32 s{d+1}, s{base+1}, 0')
    else:
        a.e(f's_mov_b32 s{d}, s{base}')
        a.e(f's_mov_b32 s{d+1}, s{base+1}')
    a.e(f's_mov_b32 s{d+2}, {hex(nbytes)}')
    a.e(f's_mov_b32 s{d+3}, 0x20000')

def vr(b, n=1):
    return f'v{b}' if n == 1 else f'v[{b}:{b+n-1}]'
def ar(b, n=1):
    return f'a{b}' if n == 1 else f'a[{b}:{b+n-1}]'
def sr(b, n=1):
    return f's{b}' if n == 1 else f's[{b}:{b+n-1}]'

import os
DIAG = bool(int(os.environ.get('DIAG', '0')))
DIAG_OFF = 0x2000000
class Kernel:
    def __init__(self, name, grid, block, lds, vgpr, agpr=0, sgpr=96, idx=0):
        self.name = name; self.grid = grid; self.block = block; self.lds = lds
        self.vgpr = vgpr; self.agpr = agpr; self.sgpr = 102 if DIAG else sgpr
        self.a = Asm(); self.idx = idx
    def stamp(self, i):
        if DIAG: self.a.e(f's_memrealtime s[{84+2*i}:{85+2*i}]')
    def dump(self, n, vt=4):
        if not DIAG: return
        a = self.a
        a.e('s_waitcnt lgkmcnt(0)')
        a.e('s_load_dwordx2 s[80:81], s[0:1], 88')
        a.e('s_waitcnt lgkmcnt(0)')
        a.e(f's_add_u32 s80, s80, {hex(DIAG_OFF + self.idx * 0x10000)}')
        a.e('s_addc_u32 s81, s81, 0')
        a.e('s_lshl_b32 s82, s2, 6')
        a.e(f'v_mov_b32 v{vt}, s82')
        a.e(f'v_cmp_eq_u32 vcc, 0, v0')
        a.e('s_and_saveexec_b64 s[82:83], vcc')
        lab = f'{self.name}_dump{len(a.ins)}'
        a.e(f's_cbranch_execz {lab}')
        for i in range(n):
            a.e(f'v_mov_b32 v{vt+1}, s{84+2*i}')
            a.e(f'global_store_dword v{vt}, v{vt+1}, s[80:81] offset:{4*i}')
        a.label(lab)
        a.e('s_mov_b64 exec, s[82:83]')
    def launch_line(self):
        return f'; @launch kernel={self.name} grid=({self.grid},1,1) block=({self.block},1,1) lds={self.lds}'
    def body(self):
        n = self.a.fix_hazards()
        t = f'.globl {self.name}\n.p2align 8\n.type {self.name},@function\n{self.name}:\n' + self.a.text()
        return t
    def desc(self):
        acc = (self.vgpr + 3) // 4 * 4
        nfv = acc + self.agpr if self.agpr else self.vgpr
        return (f'.amdhsa_kernel {self.name}\n'
                f'  .amdhsa_next_free_vgpr {nfv}\n'
                f'  .amdhsa_next_free_sgpr {self.sgpr}\n'
                f'  .amdhsa_accum_offset {acc}\n'
                f'  .amdhsa_group_segment_fixed_size 0\n'
                f'  .amdhsa_kernarg_size 96\n'
                f'  .amdhsa_user_sgpr_count 2\n'
                f'  .amdhsa_user_sgpr_kernarg_segment_ptr 1\n'
                f'  .amdhsa_system_sgpr_workgroup_id_x 1\n'
                f'  .amdhsa_float_denorm_mode_32 3\n'
                f'.end_amdhsa_kernel\n')

HEADER = '''; Kernarg layout (96 bytes, pointers only, base s[0:1]):
'''

def assemble(kernels):
    s = HEADER
    for k in kernels: s += k.launch_line() + '\n'
    s += '.amdgcn_target "amdgcn-amd-amdhsa--gfx950"\n.text\n'
    seen = []
    for k in kernels:
        if k.name in seen: continue
        seen.append(k.name); s += k.body()
    s += '.section .rodata,"a"\n.p2align 6\n'
    seen = []
    for k in kernels:
        if k.name in seen: continue
        seen.append(k.name); s += '.p2align 6\n' + k.desc()
    return s
```

```python
from common import *

def gen_k1():
    K = Kernel('prep_kernel', 576, 256, 0, vgpr=96, sgpr=48, idx=0)
    a = K.a
    K.stamp(0)
    a.e('s_cmp_ge_u32 s2, 576')
    a.e('s_cbranch_scc1 K1_END')
    a.e('s_cmp_ge_u32 s2, 320')
    a.e('s_cbranch_scc1 K1_B')
    a.e('s_load_dwordx4 s[4:7], s[0:1], 8')
    a.e('s_load_dwordx2 s[8:9], s[0:1], 24')
    a.e('s_load_dwordx2 s[10:11], s[0:1], 88')
    a.e('s_and_b32 s12, s2, 31')
    a.e('s_lshr_b32 s13, s2, 5')
    a.e('v_and_b32 v1, 7, v0')
    a.e('v_lshrrev_b32 v2, 3, v0')
    a.e('s_lshl_b32 s14, s12, 6')
    a.e('v_lshl_add_u32 v3, v1, 3, s14')
    a.e('s_lshl_b32 s15, s13, 5')
    a.e('v_add_u32 v4, s15, v2')
    a.e('s_movk_i32 s16, 1280')
    a.e('v_mul_lo_u32 v5, v3, s16')
    a.e('v_lshl_add_u32 v5, v4, 2, v5')
    a.e('v_add_u32 v6, 5120, v5')
    a.e('v_subrev_u32 v7, 3840, v5')
    a.e('v_cmp_eq_u32 vcc, 0, v3')
    a.e('v_mov_b32 v8, 0x7ff00000')
    a.e('v_cndmask_b32 v7, v7, v8, vcc')
    a.e('v_lshlrev_b32 v9, 4, v4')
    a.e('s_waitcnt lgkmcnt(0)')
    srd(a, 16, 4, SZ); srd(a, 20, 6, SZ); srd(a, 24, 8, 640 * 8); srd(a, 28, 10, SZ, R_OFF)
    KD = 10
    VD = 21
    SD = 30
    a.e(f'buffer_load_dwordx4 v[{SD}:{SD+3}], v9, s[24:27], 0 offen', 'sk')
    for j in range(3):
        a.e(f'buffer_load_dword v{KD+j}, v7, s[16:19], 0 offen offset:{1280*j}', 'k')
    for j in range(8):
        base = 'v5' if j < 4 else 'v6'
        a.e(f'buffer_load_dword v{KD+3+j}, {base}, s[16:19], 0 offen offset:{1280*(j%4)}', 'k')
    for j in range(8):
        base = 'v5' if j < 4 else 'v6'
        a.e(f'buffer_load_dword v{VD+j}, {base}, s[20:23], 0 offen offset:{1280*(j%4)}', 'v')
    a.e('v_lshlrev_b32 v1, 13, v4')
    a.e('v_lshlrev_b32 v2, 1, v3')
    a.e('v_sub_u32 v2, 4080, v2')
    a.e('v_add_u32 v1, v1, v2')
    a.e('s_mov_b32 s12, 0xffff0000')
    SP = 34
    K.stamp(1)
    a.wait_vm('sk')
    a.e(f'v_lshlrev_b32 v{SP+0}, 16, v{SD+0}'); a.e(f'v_lshlrev_b32 v{SP+1}, 16, v{SD+2}')
    a.e(f'v_and_b32 v{SP+2}, s12, v{SD+0}');    a.e(f'v_and_b32 v{SP+3}, s12, v{SD+2}')
    a.e(f'v_lshlrev_b32 v{SP+4}, 16, v{SD+1}'); a.e(f'v_lshlrev_b32 v{SP+5}, 16, v{SD+3}')
    a.e(f'v_and_b32 v{SP+6}, s12, v{SD+1}');    a.e(f'v_and_b32 v{SP+7}, s12, v{SD+3}')
    KP = 42
    a.wait_vm('k')
    for j in range(11):
        a.e(f'v_lshlrev_b32 v{KP+2*j}, 16, v{KD+j}')
        a.e(f'v_and_b32 v{KP+2*j+1}, s12, v{KD+j}')
    U = 64
    for i in range(8):
        a.e(f'v_pk_mul_f32 v[{U+2*i}:{U+2*i+1}], v[{KP+2*(i+3)}:{KP+2*(i+3)+1}], v[{SP}:{SP+1}]')
    for m in range(1, 4):
        for i in range(8):
            a.e(f'v_pk_fma_f32 v[{U+2*i}:{U+2*i+1}], v[{KP+2*(i+3-m)}:{KP+2*(i+3-m)+1}], v[{SP+2*m}:{SP+2*m+1}], v[{U+2*i}:{U+2*i+1}]')
    a.wait_vm('v')
    K.stamp(2)
    VP = 42
    for i in range(8):
        a.e(f'v_lshlrev_b32 v{VP+2*i}, 16, v{VD+i}')
        a.e(f'v_and_b32 v{VP+2*i+1}, s12, v{VD+i}')
    for i in range(8):
        a.e(f'v_pk_mul_f32 v[{U+2*i}:{U+2*i+1}], v[{U+2*i}:{U+2*i+1}], v[{VP+2*i}:{VP+2*i+1}]')
    O = 80
    for c in range(2):
        for d in range(4):
            a.e(f'v_cvt_pk_bf16_f32 v{O+4*c+d}, v{U+2*(7-2*d)+c}, v{U+2*(6-2*d)+c}')
    a.e('v_add_u32 v2, 4096, v1')
    a.e(f'buffer_store_dwordx4 v[{O}:{O+3}], v1, s[28:31], 0 offen')
    a.e(f'buffer_store_dwordx4 v[{O+4}:{O+7}], v2, s[28:31], 0 offen')
    K.stamp(3)
    if DIAG: a.e('s_waitcnt vmcnt(0)')
    K.stamp(4)
    K.dump(5)
    a.e('s_endpgm')
    a.label('K1_B')
    a.reset_counts()
    a.e('s_load_dwordx2 s[4:5], s[0:1], 0')
    a.e('s_load_dwordx2 s[10:11], s[0:1], 88')
    a.e('s_sub_u32 s12, s2, 320')
    a.e('v_lshrrev_b32 v1, 5, v0')
    a.e('v_and_b32 v2, 31, v0')
    a.e('s_lshl_b32 s13, s12, 3')
    a.e('v_add_u32 v3, s13, v1')
    a.e('s_movk_i32 s16, 1280')
    a.e('v_mul_lo_u32 v4, v3, s16')
    a.e('v_mul_u32_u24 v5, 40, v2')
    a.e('v_add_u32 v4, v4, v5')
    a.e('v_lshrrev_b32 v6, 4, v3')
    a.e('s_mov_b32 s17, 40960')
    a.e('v_mul_lo_u32 v6, v6, s17')
    a.e('v_mul_u32_u24 v7, 1280, v2')
    a.e('v_and_b32 v8, 15, v3')
    a.e('v_lshlrev_b32 v8, 4, v8')
    a.e('v_add3_u32 v6, v6, v7, v8')
    a.e('s_waitcnt lgkmcnt(0)')
    srd(a, 16, 4, SZ); srd(a, 20, 10, 2 * SZ, XQ2_OFF); srd(a, 24, 10, 131072, EX_OFF)
    O = 12
    for q in range(5):
        a.e(f'buffer_load_dwordx2 v[{O+4*q}:{O+4*q+1}], v4, s[16:19], 0 offen offset:{8*q}', 'x')
    a.e('v_mov_b32 v32, -1'); a.e('v_mov_b32 v33, -1'); a.e('v_mov_b32 v34, -1'); a.e('v_mov_b32 v35, -1')
    a.e('s_lshl_b32 s14, s12, 9')
    a.e('v_lshl_add_u32 v9, v0, 4, s14')
    a.e('v_mov_b32 v10, 0x7ff00000')
    a.e('v_cmp_gt_u32 vcc, 32, v0')
    a.e('v_cndmask_b32 v9, v10, v9, vcc')
    a.e('buffer_store_dwordx4 v[32:35], v9, s[24:27], 0 offen')
    a.e('s_mov_b32 s12, 0xffff0000')
    X = 36
    K.stamp(1)
    a.wait_vm('x')
    K.stamp(2)
    for q in range(5):
        for h in range(2):
            a.e(f'v_lshlrev_b32 v{X+4*q+2*h}, 16, v{O+4*q+h}')
            a.e(f'v_and_b32 v{X+4*q+2*h+1}, s12, v{O+4*q+h}')
    T = 56
    a.e(f'v_pk_add_f32 v[{T}:{T+1}], v[{X}:{X+1}], v[{X+2}:{X+3}]')
    for p in range(2, 10):
        a.e(f'v_pk_add_f32 v[{T}:{T+1}], v[{T}:{T+1}], v[{X+2*p}:{X+2*p+1}]')
    def red32(r, tmp):
        for n in (8, 4, 2, 1):
            a.e(f'v_add_f32_dpp v{r}, v{r}, v{r} row_ror:{n} row_mask:0xf bank_mask:0xf')
        a.e(f'v_mov_b32 v{tmp}, v{r}')
        a.e(f'v_permlane16_swap_b32 v{r}, v{tmp}')
        a.e(f'v_add_f32 v{r}, v{r}, v{tmp}')
    a.e(f'v_add_f32 v{T}, v{T}, v{T+1}')
    red32(T, T + 1)
    a.e(f'v_mul_f32 v{T}, {hex(f32(-1.0/640))}, v{T}')
    for p in range(10):
        a.e(f'v_pk_add_f32 v[{X+2*p}:{X+2*p+1}], v[{X+2*p}:{X+2*p+1}], v[{T}:{T+1}] op_sel_hi:[1,0]')
    a.e(f'v_pk_mul_f32 v[{T+2}:{T+3}], v[{X}:{X+1}], v[{X}:{X+1}]')
    for p in range(1, 10):
        a.e(f'v_pk_fma_f32 v[{T+2}:{T+3}], v[{X+2*p}:{X+2*p+1}], v[{X+2*p}:{X+2*p+1}], v[{T+2}:{T+3}]')
    a.e(f'v_add_f32 v{T+2}, v{T+2}, v{T+3}')
    red32(T + 2, T + 3)
    a.e(f'v_mov_b32 v{T+3}, {hex(f32(1e-5))}')
    a.e(f'v_fmac_f32 v{T+3}, {hex(f32(1.0/640))}, v{T+2}')
    a.e(f'v_rsq_f32 v{T+4}, v{T+3}')
    for p in range(10):
        a.e(f'v_pk_mul_f32 v[{X+2*p}:{X+2*p+1}], v[{X+2*p}:{X+2*p+1}], v[{T+4}:{T+5}] op_sel_hi:[1,0]')
    for q in range(5):
        for h in range(2):
            a.e(f'v_cvt_pk_bf16_f32 v{O+4*q+2+h}, v{X+4*q+2*h}, v{X+4*q+2*h+1}')
    for q in range(5):
        a.e(f'buffer_store_dwordx4 v[{O+4*q}:{O+4*q+3}], v6, s[20:23], 0 offen offset:{256*q}')
    K.stamp(3)
    if DIAG: a.e('s_waitcnt vmcnt(0)')
    K.stamp(4)
    K.dump(5)
    a.label('K1_END')
    a.e('s_endpgm')
    return K

import struct
def f32(x): return struct.unpack('<I', struct.pack('<f', x))[0]
```

```python
from common import *
from k1 import f32

CPY = 4160
WSZ = 4 * CPY + 4608
RB = 4 * CPY

def gen_k2():
    K = Kernel('conv_kernel', 202, 256, 4 * WSZ, vgpr=256, sgpr=80, idx=1)
    a = K.a
    K.stamp(0)
    a.e('s_cmp_ge_u32 s2, 202')
    a.e('s_cbranch_scc1 K2_END')
    a.e('s_cmp_ge_u32 s2, 160')
    a.e('s_cbranch_scc1 K2_PREP')
    a.e('s_load_dwordx4 s[4:7], s[0:1], 32')
    a.e('s_load_dwordx2 s[10:11], s[0:1], 88')
    a.e('s_lshr_b32 s12, s2, 4'); a.e('s_lshl_b32 s12, s12, 3'); a.e('s_and_b32 s13, s2, 7')
    a.e('s_add_u32 s12, s12, s13'); a.e('s_lshl_b32 s12, s12, 1'); a.e('s_bfe_u32 s13, s2, 0x10003')
    a.e('s_add_u32 s12, s12, s13')
    a.e('v_lshrrev_b32 v1, 6, v0')
    a.e('v_and_b32 v2, 63, v0')
    a.e('v_readfirstlane_b32 s14, v1')
    a.e('s_lshl_b32 s15, s12, 2'); a.e('s_add_u32 s15, s15, s14')
    a.e(f's_mul_i32 s40, s14, {WSZ}')
    a.e('s_lshl_b32 s41, s15, 12')
    a.e('v_lshl_add_u32 v3, v2, 4, s41')
    a.e('s_waitcnt lgkmcnt(0)')
    srd(a, 16, 4, SZ)
    srd(a, 20, 10, SZ, R_OFF)
    srd(a, 24, 10, 2 * SZ, XQ2_OFF)
    srd(a, 28, 10, SZ, Y_OFF)
    srd(a, 32, 10, SZ, X1_OFF)
    a.e('s_lshr_b32 s42, s15, 1'); a.e('s_lshl_b32 s42, s42, 2')
    a.e('s_load_dword s43, s[6:7], s42')
    DE = 16
    F = 40
    for p in range(4):
        a.e(f'buffer_load_dwordx4 v[{DE+6*p}:{DE+6*p+3}], v3, s[16:19], 0 offen offset:{1024*p}', f'k{p}')
        a.e(f'buffer_load_dwordx2 v[{DE+6*p+4}:{DE+6*p+5}], v3, s[16:19], 0 offen offset:{1024*p+16}', f'k{p}')
        a.e(f'buffer_load_dwordx4 v[{F+4*p}:{F+4*p+3}], v3, s[16:19], 0 offen offset:{1024*p+4}', f'k{p}')
    a.e(f's_add_u32 s44, s40, {RB}')
    a.e('s_mov_b32 m0, s44')
    for p in range(4):
        a.e(f'buffer_load_dwordx4 v3, s[20:23], 0 offen offset:{1024*p} lds', 'R')
    a.e('v_mov_b32 v4, 0'); a.e('v_mov_b32 v5, 0')
    a.e('v_lshl_add_u32 v6, v2, 3, s44')
    a.e('ds_write_b64 v6, v[4:5] offset:4096', 'z')
    a.e('v_and_b32 v7, 15, v2')
    a.e('v_lshrrev_b32 v8, 4, v2')
    a.e('v_add_u32 v9, 1, v7')
    a.e('v_and_b32 v10, 3, v9')
    a.e(f'v_mul_u32_u24 v11, {CPY}, v10')
    a.e('v_sub_u32 v9, v9, v10')
    a.e('v_lshl_add_u32 v11, v9, 1, v11')
    a.e('v_lshl_add_u32 v11, v8, 4, v11')
    a.e('v_add_u32 v11, s40, v11')
    a.e('v_lshlrev_b32 v12, 5, v7')
    a.e('v_lshlrev_b32 v13, 4, v8')
    a.e('v_sub_u32 v12, v13, v12')
    a.e(f's_add_u32 s45, s44, 480')
    a.e('v_add_u32 v12, s45, v12')
    a.e('v_lshl_add_u32 v13, v2, 4, s40')
    a.e('v_lshrrev_b32 v14, 4, v2')
    a.e('s_lshl_b32 s46, s14, 5')
    a.e('v_add_u32 v14, s46, v14')
    a.e('s_mov_b32 s47, 40960')
    a.e('v_mul_lo_u32 v15, v14, s47')
    a.e('s_lshl_b32 s48, s12, 8')
    a.e('v_lshl_add_u32 v56, v7, 4, s48')
    a.e('v_add_u32 v15, v15, v56')
    a.e('s_movk_i32 s47, 20480')
    a.e('v_mul_lo_u32 v14, v14, s47')
    a.e('s_lshr_b32 s48, s12, 3'); a.e('s_lshl_b32 s48, s48, 10')
    a.e('s_bfe_u32 s49, s12, 0x20001'); a.e('s_lshl_b32 s49, s49, 8'); a.e('s_add_u32 s48, s48, s49')
    a.e('s_and_b32 s49, s12, 1'); a.e('s_lshl_b32 s49, s49, 3'); a.e('s_add_u32 s48, s48, s49')
    a.e('v_lshl_add_u32 v56, v7, 4, s48')
    a.e('v_add_u32 v14, v14, v56')
    for mm in range(8):
        a.e(f's_mov_b32 s{52+mm}, {163840*mm}')
        a.e(f's_mov_b32 s{60+mm}, {81920*mm}')
    a.e('s_waitcnt lgkmcnt(0)')
    a.lg = []
    a.e('s_and_b32 s42, s15, 1'); a.e('s_lshl_b32 s42, s42, 4'); a.e('s_lshr_b32 s43, s43, s42'); a.e('s_and_b32 s43, s43, 0xffff')
    a.e('v_sub_u32 v60, 15, v7')
    a.e('v_lshrrev_b32 v61, 3, v60')
    a.e('v_and_b32 v60, 7, v60')
    a.e('v_and_b32 v62, 1, v60'); a.e('v_lshlrev_b32 v62, 4, v62')
    a.e('v_lshlrev_b32 v62, v62, s43')
    a.e('v_lshrrev_b32 v60, 1, v60')
    a.e('v_mov_b32 v63, 64')
    a.e('v_cmp_eq_u32 vcc, v61, v8')
    a.e('v_cndmask_b32 v60, v63, v60, vcc')
    for q in range(4):
        a.e(f'v_cmp_eq_u32 vcc, {q}, v60')
        a.e(f'v_cndmask_b32 v{56+q}, 0, v62, vcc')
    K.stamp(1)
    O1 = 64; O3 = 68
    for p in range(4):
        a.wait_vm(f'k{p}')
        d = DE + 6 * p; f = F + 4 * p
        if p == 0:
            a.e(f'v_readfirstlane_b32 s50, v{d}'); a.e(f'v_readfirstlane_b32 s51, v{d+1}')
        o1 = O1 + 8 * (p & 1); o3 = o1 + 4
        for j in range(4):
            a.e(f'v_alignbit_b32 v{o1+j}, v{f+j}, v{d+j}, 16')
        for j in range(4):
            a.e(f'v_alignbit_b32 v{o3+j}, v{d+2+j}, v{f+j}, 16')
        a.e(f'ds_write_b128 v13, v[{d}:{d+3}] offset:{32+1024*p}', 'cp')
        a.e(f'ds_write_b128 v13, v[{f}:{f+3}] offset:{2*CPY+32+1024*p}', 'cp')
        a.e(f'ds_write_b128 v13, v[{o1}:{o1+3}] offset:{CPY+32+1024*p}', 'cp')
        a.e(f'ds_write_b128 v13, v[{o3}:{o3+3}] offset:{3*CPY+32+1024*p}', 'cp')
    K.stamp(2)
    a.e('s_lshl_b32 s68, s50, 16')
    a.e('s_lshr_b32 s69, s50, 16'); a.e('s_lshl_b32 s70, s51, 16'); a.e('s_or_b32 s69, s69, s70')
    for j in range(4): a.e(f'v_mov_b32 v{80+j}, 0')
    a.e('v_writelane_b32 v82, s68, 7')
    a.e('v_writelane_b32 v83, s68, 3'); a.e('v_writelane_b32 v83, s50, 5'); a.e('v_writelane_b32 v83, s69, 7')
    a.e('v_lshrrev_b32 v84, 1, v2'); a.e(f'v_mul_u32_u24 v84, {CPY}, v84')
    a.e('v_and_b32 v85, 1, v2'); a.e('v_lshl_add_u32 v84, v85, 4, v84'); a.e('v_add_u32 v84, s40, v84')
    a.e('s_mov_b64 exec, 0xff')
    a.e('ds_write_b128 v84, v[80:83]', 'cp')
    a.e('s_mov_b64 exec, -1')
    XQ = 224
    a.wait_vm('R')
    for mm in range(8):
        a.e(f'buffer_load_dwordx4 v[{XQ+4*mm}:{XQ+4*mm+3}], v15, s[24:27], s{52+mm} offen', 'xq')
    a.e('s_waitcnt lgkmcnt(0)')
    K.stamp(3)
    ACC = 16
    BUF = [64, 128]
    def loads(rho):
        b = BUF[rho & 1]; L = []
        L.append([f'ds_read_b64 v[{b}:{b+1}], v11 offset:{64*rho}', f'ds_read_b64 v[{b+2}:{b+3}], v11 offset:{64*rho+8}'])
        for z in range(8):
            L.append([f'ds_read_b128 v[{b+32+4*z}:{b+35+4*z}], v12 offset:{64*rho+512*(7-z)}'])
        for q in range(1, 8):
            L.append([f'ds_read_b64 v[{b+4*q}:{b+4*q+1}], v11 offset:{64*rho+512*q}',
                      f'ds_read_b64 v[{b+4*q+2}:{b+4*q+3}], v11 offset:{64*rho+512*q+8}'])
        return [x for l in L for x in l]
    for ins in loads(0): a.e(ins, 'pre0')
    a.e('s_waitcnt lgkmcnt(0)')
    b = BUF[0]
    for i in range(8):
        a.e(f'v_mfma_f32_16x16x32_bf16 v[{ACC+4*i}:{ACC+4*i+3}], v[56:59], v[{b+32+4*i}:{b+35+4*i}], 0')
    for rho in range(8):
        b = BUF[rho & 1]
        nxt = loads(rho + 1) if rho < 7 else []
        mf = [(q, i) for q in range(8) for i in range(q, 8)]
        li = 0
        for n, (q, i) in enumerate(mf):
            z = i - q
            a.e(f'v_mfma_f32_16x16x32_bf16 v[{ACC+4*i}:{ACC+4*i+3}], v[{b+4*q}:{b+4*q+3}], v[{b+32+4*z}:{b+35+4*z}], v[{ACC+4*i}:{ACC+4*i+3}]')
            if li < len(nxt) and n < 30:
                a.e(nxt[li], f'pre{rho+1}'); li += 1
        assert li == len(nxt)
        if rho < 7: a.e('s_waitcnt lgkmcnt(0)')
    K.stamp(4)
    P = 64
    for i in range(8):
        a.e(f'v_cvt_pk_bf16_f32 v{P+2*i}, v{ACC+4*i}, v{ACC+4*i+1}')
        a.e(f'v_cvt_pk_bf16_f32 v{P+2*i+1}, v{ACC+4*i+2}, v{ACC+4*i+3}')
    a.e('v_mul_u32_u24 v4, 144, v8'); a.e('v_lshl_add_u32 v4, v7, 3, v4'); a.e('v_add_u32 v4, s40, v4')
    for i in range(8):
        a.e(f'ds_write_b64 v4, v[{P+2*i}:{P+2*i+1}] offset:{576*i}', 'yw')
    a.e('v_bfe_u32 v5, v2, 2, 2'); a.e('v_mul_u32_u24 v5, 144, v5')
    a.e('v_lshl_add_u32 v5, v8, 3, v5')
    a.e('v_and_b32 v6, 3, v2'); a.e('v_lshl_add_u32 v5, v6, 1, v5')
    a.e('s_mul_i32 s46, s14, 1152'); a.e('v_add_u32 v5, s46, v5')
    YR = 96
    for j in range(32): a.e(f'v_mov_b32 v{YR+j}, 0')
    a.e('s_waitcnt lgkmcnt(0)')
    a.e('s_barrier')
    K.stamp(5)
    for mm in range(8):
        for c in range(4):
            a.e(f'ds_read_u16_d16_hi v{YR+4*mm+c}, v5 offset:{c*WSZ + 576*(mm>>2) + 32*(mm&3)}', f'yr{mm}')
    a.e('s_mov_b32 s42, 0xffff0000')
    a.e('s_mov_b32 s43, 0x07060302')
    a.wait_vm('xq')
    T = 128
    for mm in range(8):
        a.wait_lg(f'yr{mm}')
        x = XQ + 4 * mm; y = YR + 4 * mm; t = T + 16 * (mm & 1)
        for h in range(2):
            a.e(f'v_lshlrev_b32 v{t+2*h}, 16, v{x+h}'); a.e(f'v_and_b32 v{t+2*h+1}, s42, v{x+h}')
            a.e(f'v_lshlrev_b32 v{t+4+2*h}, 16, v{x+2+h}'); a.e(f'v_and_b32 v{t+4+2*h+1}, s42, v{x+2+h}')
        for h in range(2):
            a.e(f'v_pk_fma_f32 v[{t+2*h}:{t+2*h+1}], v[{t+4+2*h}:{t+4+2*h+1}], v[{y+2*h}:{y+2*h+1}], v[{t+2*h}:{t+2*h+1}]')
        a.e(f'v_cvt_pk_bf16_f32 v{t+8}, v{t}, v{t+1}'); a.e(f'v_cvt_pk_bf16_f32 v{t+9}, v{t+2}, v{t+3}')
        a.e(f'v_perm_b32 v{t+10}, v{y+1}, v{y}, s43'); a.e(f'v_perm_b32 v{t+11}, v{y+3}, v{y+2}, s43')
        a.e(f'buffer_store_dwordx2 v[{t+8}:{t+9}], v14, s[32:35], s{60+mm} offen')
        a.e(f'buffer_store_dwordx2 v[{t+10}:{t+11}], v14, s[28:31], s{60+mm} offen')
    K.stamp(6)
    if DIAG: a.e('s_waitcnt vmcnt(0)')
    K.stamp(7)
    K.dump(8)
    a.e('s_endpgm')

    a.label('K2_PREP')
    a.reset_counts()
    a.e('s_load_dwordx4 s[4:7], s[0:1], 56')
    a.e('s_load_dwordx2 s[10:11], s[0:1], 88')
    a.e('v_lshrrev_b32 v1, 6, v0'); a.e('v_and_b32 v2, 63, v0')
    a.e('v_readfirstlane_b32 s14, v1')
    a.e('s_sub_u32 s12, s2, 160'); a.e('s_lshl_b32 s12, s12, 2'); a.e('s_add_u32 s12, s12, s14')
    a.e('v_and_b32 v3, 3, v2')
    a.e('v_bfe_u32 v4, v2, 2, 2')
    a.e('v_lshrrev_b32 v5, 4, v2')
    a.e('s_waitcnt lgkmcnt(0)')
    a.e('s_mov_b32 s60, 0'); a.e('s_mov_b32 s61, 0')
    a.e('s_cmp_ge_u32 s12, 128')
    a.e('s_cbranch_scc1 K2_WO')
    srd(a, 16, 4, 640 * 3840)
    srd(a, 20, 10, 16 * 163840, WF1_OFF)
    srd(a, 24, 10, 8192, CS1_OFF)
    a.e('s_lshr_b32 s13, s12, 3')
    a.e('s_and_b32 s15, s12, 7')
    a.e('s_mul_i32 s30, s13, 40')
    a.e('s_cmp_eq_u32 s15, 4'); a.e('s_cbranch_scc1 K2_FT4')
    a.e('s_cmp_eq_u32 s15, 7'); a.e('s_cbranch_scc1 K2_FT7')
    a.e('s_mov_b32 s31, 0')
    a.e('s_cmp_ge_u32 s15, 2'); a.e('s_cselect_b32 s31, 640, s31')
    a.e('s_cmp_ge_u32 s15, 5'); a.e('s_cselect_b32 s31, 1280, s31')
    a.e('s_and_b32 s32, s15, 1'); a.e('s_cmp_ge_u32 s15, 5'); a.e('s_cselect_b32 s33, 1, 0'); a.e('s_xor_b32 s32, s32, s33')
    a.e('s_mul_i32 s32, s32, 20'); a.e('s_add_u32 s31, s31, s32'); a.e('s_add_u32 s31, s31, s30')
    a.e('v_lshl_add_u32 v6, v3, 2, s31')
    a.e('s_branch K2_COL')
    a.label('K2_FT4')
    a.e('v_lshrrev_b32 v6, 1, v3'); a.e('v_mul_u32_u24 v6, 640, v6')
    a.e('v_and_b32 v7, 1, v3'); a.e('v_mul_u32_u24 v7, 20, v7'); a.e('v_add_u32 v6, v6, v7')
    a.e('s_add_u32 s31, s30, 16'); a.e('v_add_u32 v6, s31, v6')
    a.e('s_branch K2_COL')
    a.label('K2_FT7')
    a.e('v_min_u32 v7, 1, v3'); a.e('v_mul_u32_u24 v6, 20, v7')
    a.e('s_add_u32 s31, s30, 1296'); a.e('v_add_u32 v6, s31, v6')
    a.e('v_cmp_le_u32 s[60:61], 2, v3')
    a.label('K2_COL')
    a.e('v_lshlrev_b32 v7, 5, v5'); a.e('v_lshl_add_u32 v7, v4, 3, v7')
    a.e('s_movk_i32 s33, 3840'); a.e('v_mul_lo_u32 v7, v7, s33'); a.e('v_lshl_add_u32 v8, v6, 1, v7')
    for it in range(5):
        if it == 0: a.e('v_mov_b32 v10, v8')
        else: a.e(f'v_add_u32 v{10+it}, {128*3840*it}, v8')
    for e in range(8): a.e(f's_mov_b32 s{40+e}, {3840*e}')
    a.e('s_mul_i32 s34, s13, 163840'); a.e('s_lshl_b32 s35, s15, 10'); a.e('s_add_u32 s34, s34, s35')
    a.e('v_lshlrev_b32 v9, 13, v5'); a.e('v_lshl_add_u32 v9, v4, 8, v9'); a.e('v_lshl_add_u32 v9, v3, 6, v9')
    a.e('v_add_u32 v9, s34, v9')
    a.e('s_mov_b32 s36, 32768')
    a.e('s_lshl_b32 s37, s13, 9'); a.e('s_lshl_b32 s38, s15, 6'); a.e('s_add_u32 s37, s37, s38')
    a.e('v_lshl_add_u32 v15, v3, 4, s37')
    a.e('s_branch K2_GO')
    a.label('K2_WO')
    srd(a, 16, 6, 640 * 1280)
    srd(a, 20, 10, 8 * 102400, WF2_OFF)
    srd(a, 24, 10, 0, CS1_OFF)
    a.e('s_sub_u32 s13, s12, 128')
    a.e('s_mul_i32 s15, s13, 205'); a.e('s_lshr_b32 s15, s15, 10')
    a.e('s_mul_i32 s30, s15, 5'); a.e('s_sub_u32 s30, s13, s30')
    a.e('s_mul_i32 s31, s15, 80'); a.e('s_lshl_b32 s32, s30, 4'); a.e('s_add_u32 s31, s31, s32')
    a.e('v_lshl_add_u32 v6, v3, 2, s31')
    for it in range(5):
        a.e('v_lshl_add_u32 v7, v5, 2, v4'); a.e(f'v_add_u32 v7, {16*it}, v7')
        a.e('v_mul_u32_u24 v8, 205, v7'); a.e('v_lshrrev_b32 v8, 10, v8')
        a.e('v_mul_u32_u24 v9, 5, v8'); a.e('v_sub_u32 v7, v7, v9')
        a.e('v_mul_u32_u24 v8, 40, v8'); a.e('v_lshl_add_u32 v8, v7, 2, v8')
        a.e('v_mul_u32_u24 v8, 1280, v8'); a.e(f'v_lshl_add_u32 v{10+it}, v6, 1, v8')
    for e in range(8): a.e(f's_mov_b32 s{40+e}, {1280*((e&3)+20*(e>>2))}')
    a.e('s_mul_i32 s34, s15, 102400'); a.e('s_lshl_b32 s35, s30, 10'); a.e('s_add_u32 s34, s34, s35')
    a.e('v_mul_u32_u24 v9, 5120, v5'); a.e('v_lshl_add_u32 v9, v4, 8, v9'); a.e('v_lshl_add_u32 v9, v3, 6, v9')
    a.e('v_add_u32 v9, s34, v9')
    a.e('s_mov_b32 s36, 20480')
    a.e('v_mov_b32 v15, 0')
    a.label('K2_GO')
    K.stamp(1)
    L = 16
    for it in range(5):
        for e in range(8):
            a.e(f'buffer_load_dwordx2 v[{L+16*it+2*e}:{L+16*it+2*e+1}], v{10+it}, s[16:19], s{40+e} offen', f'w{it}')
    a.e('s_mov_b32 s50, 0x05040100'); a.e('s_mov_b32 s51, 0x07060302'); a.e('s_mov_b32 s52, 0x3f803f80')
    CSR = 96
    for j in range(4): a.e(f'v_mov_b32 v{CSR+j}, 0')
    a.e('v_mov_b32 v100, 0'); a.e('v_mov_b32 v101, s52')
    a.e('v_cmp_eq_u32 vcc, 2, v3'); a.e('v_cndmask_b32 v101, v100, v101, vcc')
    a.e('s_mov_b32 s53, 0')
    for it in range(5):
        a.wait_vm(f'w{it}')
        O = 104 + 16 * (it & 1)
        l = L + 16 * it
        for cc in range(4):
            for jj in range(4):
                a.e(f'v_perm_b32 v{O+4*cc+jj}, v{l+2*(2*jj+1)+(cc>>1)}, v{l+2*(2*jj)+(cc>>1)}, s{50+(cc&1)}')
        for cc in range(4):
            for jj in range(4):
                a.e(f'v_dot2_f32_bf16 v{CSR+cc}, v{O+4*cc+jj}, s52, v{CSR+cc}')
        for cc in range(4):
            for jj in range(4):
                a.e(f'v_cndmask_b32 v{O+4*cc+jj}, v{O+4*cc+jj}, v{101 if cc == 0 else 100}, s[60:61]')
        for cc in range(4):
            a.e(f'buffer_store_dwordx4 v[{O+4*cc}:{O+4*cc+3}], v9, s[20:23], s53 offen offset:{16*cc}')
        a.e('s_add_u32 s53, s53, s36')
    for j in range(4):
        for n in (4, 8):
            a.e(f'v_add_f32_dpp v{CSR+j}, v{CSR+j}, v{CSR+j} row_ror:{n} row_mask:0xf bank_mask:0xf')
    for j in range(4):
        a.e(f'v_mov_b32 v{104+j}, v{CSR+j}')
    for j in range(4):
        a.e(f'v_permlane16_swap_b32 v{CSR+j}, v{104+j}')
    for j in range(4):
        a.e(f'v_add_f32 v{CSR+j}, v{CSR+j}, v{104+j}')
    for j in range(4):
        a.e(f'v_mov_b32 v{104+j}, v{CSR+j}')
    for j in range(4):
        a.e(f'v_permlane32_swap_b32 v{CSR+j}, v{104+j}')
    for j in range(4):
        a.e(f'v_add_f32 v{CSR+j}, v{CSR+j}, v{104+j}')
    a.e('v_mov_b32 v100, 0x7ff00000')
    a.e('v_cmp_gt_u32 vcc, 4, v2'); a.e('v_cndmask_b32 v15, v100, v15, vcc')
    a.e(f'buffer_store_dwordx4 v[{CSR}:{CSR+3}], v15, s[24:27], 0 offen')
    K.stamp(6)
    if DIAG: a.e('s_waitcnt vmcnt(0)')
    K.stamp(7)
    K.dump(8)
    a.label('K2_END')
    a.e('s_endpgm')
    return K
```

```python
from common import *
from k1 import f32
import math

SLOT = 9216; NS = 16; DEPTH = 10
SCR = NS * SLOT
ST_OFF = SCR
HS_OFF = SCR + 1024
DUM_OFF = SCR + 1280
PB_OFF = SCR + 2048
LDS = SCR + 2048 + 4 * 3072 + 2048

def gen_k3(layer):
    K = Kernel(f'qkv{layer}_kernel', 256, 256, LDS, vgpr=256, agpr=248, sgpr=80, idx=2 * layer)
    n = f'K3L{layer}'
    a = K.a
    K.stamp(0)
    a.e('s_cmp_ge_u32 s2, 256')
    a.e(f's_cbranch_scc1 {n}_END')
    a.e('s_load_dwordx2 s[10:11], s[0:1], 88')
    a.e('s_and_b32 s12, s2, 3'); a.e('s_lshl_b32 s12, s12, 2'); a.e('s_bfe_u32 s13, s2, 0x20003'); a.e('s_add_u32 s12, s12, s13')
    a.e('s_bfe_u32 s13, s2, 0x10002'); a.e('s_lshl_b32 s13, s13, 3'); a.e('s_lshr_b32 s14, s2, 5'); a.e('s_add_u32 s13, s13, s14')
    a.e('v_lshrrev_b32 v1, 6, v0'); a.e('v_and_b32 v2, 63, v0')
    a.e('v_readfirstlane_b32 s14, v1')
    a.e('v_and_b32 v3, 15, v2')
    a.e('v_lshrrev_b32 v4, 4, v2')
    a.e('v_lshlrev_b32 v5, 4, v2')
    a.e('s_lshl_b32 s15, s12, 3'); a.e('s_lshl_b32 s40, s14, 1'); a.e('s_add_u32 s40, s40, s15')
    a.e('s_mul_i32 s41, s40, 20480')
    a.e('v_add_u32 v6, s41, v5')
    a.e('v_add_u32 v7, 20480, v6')
    a.e('s_mul_i32 s42, s13, 163840'); a.e('s_lshl_b32 s43, s14, 11'); a.e('s_add_u32 s42, s42, s43')
    a.e('v_add_u32 v8, s42, v5')
    a.e('s_sub_u32 s44, s15, 1'); a.e('s_mul_i32 s44, s44, 20480'); a.e('s_lshl_b32 s45, s14, 8'); a.e('s_add_u32 s44, s44, s45')
    a.e('s_cmp_eq_u32 s12, 0'); a.e('s_cselect_b32 s44, 0x7ff00000, s44')
    a.e('v_lshl_add_u32 v9, v2, 2, s44')
    for j in range(5): a.e(f's_mov_b32 s{46+j}, {4096*j}')
    a.e('s_lshl_b32 s51, s14, 11')
    a.e('s_lshl_b32 s52, s14, 8'); a.e('s_add_u32 s52, s52, 8192')
    a.e('s_waitcnt lgkmcnt(0)')
    srd(a, 16, 10, SZ, X1_OFF if layer == 1 else X3_OFF)
    srd(a, 20, 10, 16 * 163840, WF1_OFF)
    srd(a, 24, 10, 8192, CS1_OFF)
    srd(a, 28, 10, SZ, O_OFF)
    def issue(ks):
        tag = f's{ks}'
        so = f's{46 + (ks >> 2)}'; im = 1024 * (ks & 3)
        a.e(f'buffer_load_dwordx4 a[{8*ks}:{8*ks+3}], v6, s[16:19], {so} offen offset:{im}', tag)
        a.e(f'buffer_load_dwordx4 a[{8*ks+4}:{8*ks+7}], v7, s[16:19], {so} offen offset:{im}', tag)
        sl = (ks % NS) * SLOT
        a.e(f's_add_u32 m0, s51, {sl}')
        a.e(f's_mov_b32 s53, {8192*ks}')
        a.e(f'buffer_load_dwordx4 v8, s[20:23], s53 offen lds', tag)
        a.e(f'buffer_load_dwordx4 v8, s[20:23], s53 offen offset:1024 lds', tag)
        a.e(f's_add_u32 m0, s52, {sl}')
        a.e(f's_mov_b32 s53, {1024*ks}')
        a.e(f'buffer_load_dword v9, s[16:19], s53 offen lds', tag)
    for ks in range(DEPTH): issue(ks)
    K.stamp(1)
    LB = 10
    a.e('v_mov_b32 v10, v5'); a.e(f'v_add_u32 v11, {7*SLOT}, v5'); a.e(f'v_add_u32 v12, {14*SLOT}, v5')
    a.e('s_add_u32 s54, s14, 2'); a.e('s_lshl_b32 s54, s54, 10'); a.e('s_cmp_eq_u32 s14, 3'); a.e('s_cselect_b32 s54, 8192, s54')
    a.e('s_add_u32 s55, s14, 5'); a.e('s_min_u32 s55, s55, 7'); a.e('s_lshl_b32 s55, s55, 10')
    for j in range(3):
        a.e(f'v_add_u32 v{13+j}, s54, v{10+j}')
        a.e(f'v_add_u32 v{96+j}, s55, v{10+j}')
    WB = [160, 204]
    def reads(ks):
        b = WB[ks & 1]; sl = ks % NS; grp = sl // 7; off = (sl % 7) * SLOT
        L = []
        order = [0, 1, 2, 3, 4, 5, 6, 7]
        for ft in order:
            L.append(f'ds_read_b128 a[{b+4*ft}:{b+4*ft+3}], v{10+grp} offset:{off+1024*ft}')
        L.append(f'ds_read_b128 a[{b+32}:{b+35}], v{10+grp} offset:{off+8192}')
        L.append(f'ds_read_b128 a[{b+36}:{b+39}], v{13+grp} offset:{off}')
        L.append(f'ds_read_b128 a[{b+40}:{b+43}], v{96+grp} offset:{off}')
        return L
    accA = 16; sqA = 48; accB = 52; sqB = 84; H1 = 88; H2 = 92
    def mfmas(ks):
        b = WB[ks & 1]; L = []
        XA = f'a[{8*ks}:{8*ks+3}]'; XB = f'a[{8*ks+4}:{8*ks+7}]'
        def m(d, A, B):
            c = '0' if ks == 0 else f'v[{d}:{d+3}]'
            L.append(f'v_mfma_f32_16x16x32_bf16 v[{d}:{d+3}], {A}, {B}, {c}')
        for ft in range(8):
            W = f'a[{b+4*ft}:{b+4*ft+3}]'
            for acc, X in ((accA, XA), (accB, XB)):
                if ft < 5: m(acc + 4 * ft, W, X)
                else: m(acc + 4 * ft, X, W)
        m(sqA, XA, XA); m(sqB, XB, XB)
        HX = f'a[{b+32}:{b+35}]'
        m(H1, f'a[{b+36}:{b+39}]', HX)
        m(H2, HX, f'a[{b+40}:{b+43}]')
        return L
    a.wait_vm('s0')
    a.e('s_barrier')
    K.stamp(2)
    for ins in reads(0): a.e(ins, 'r0')
    CST = 100
    for ks in range(20):
        mf = mfmas(ks)
        rd = reads(ks + 1) if ks < 19 else []
        a.e('s_waitcnt lgkmcnt(0)')
        for ins in mf[:6]: a.e(ins)
        if ks < 19:
            a.wait_vm(f's{ks+1}')
            a.e('s_barrier')
        if ks + DEPTH < 20: issue(ks + DEPTH)
        if ks == 10:
            a.e('s_lshl_b32 s56, s13, 9')
            a.e('v_lshl_add_u32 v128, v4, 4, s56')
            for ft in range(5):
                a.e(f'buffer_load_dwordx4 v[{CST+4*ft}:{CST+4*ft+3}], v128, s[24:27], 0 offen offset:{64*ft}', 'cs')
            a.e('v_lshl_add_u32 v129, v3, 2, s56')
            for j in range(3):
                a.e(f'buffer_load_dword v{120+j}, v129, s[24:27], 0 offen offset:{64*(5+j)}', 'cs')
            a.e('s_add_u32 s57, s14, 2'); a.e('s_min_u32 s57, s57, 4'); a.e('s_lshl_b32 s57, s57, 6')
            a.e('buffer_load_dwordx4 v[124:127], v128, s[24:27], s57 offen', 'cs')
            a.e('s_lshr_b32 s58, s55, 4')
            a.e('buffer_load_dword v123, v129, s[24:27], s58 offen', 'cs')
        ri = 0
        for ins in mf[6:]:
            a.e(ins)
            if ri < len(rd): a.e(rd[ri], f'r{ks+1}'); ri += 1
        assert ri == len(rd)
    K.stamp(3)
    a.e('v_lshrrev_b32 v130, 2, v3'); a.e('v_cmp_eq_u32 s[60:61], v130, v4')
    a.e('v_cmp_eq_u32 s[62:63], 8, v3')
    a.e('v_and_b32 v131, 3, v2')
    a.e('v_cmp_eq_u32 s[64:65], 1, v131'); a.e('v_cmp_eq_u32 s[66:67], 2, v131'); a.e('v_cmp_eq_u32 s[68:69], 3, v131')
    def dsel(dst, src):
        a.e(f'v_cndmask_b32 v{dst}, v{src}, v{src+1}, s[64:65]')
        a.e(f'v_cndmask_b32 v{dst}, v{dst}, v{src+2}, s[66:67]')
        a.e(f'v_cndmask_b32 v{dst}, v{dst}, v{src+3}, s[68:69]')
    dsel(132, sqA); dsel(133, sqB); dsel(134, H1)
    a.e(f's_lshl_b32 s56, s14, 8'); a.e(f's_add_u32 s56, s56, {ST_OFF}')
    a.e('v_lshl_add_u32 v135, v3, 2, s56')
    a.e('v_lshl_add_u32 v136, v4, 4, s56')
    a.e(f's_mov_b32 s57, {DUM_OFF}'); a.e('s_cmp_eq_u32 s14, 3'); a.e(f's_cselect_b32 s57, {HS_OFF}, s57')
    a.e('v_lshl_add_u32 v137, v3, 2, s57')
    a.e(f's_mov_b32 s57, {DUM_OFF}'); a.e('s_cmp_eq_u32 s14, 2'); a.e(f's_cselect_b32 s57, {HS_OFF}, s57')
    a.e('v_lshl_add_u32 v138, v4, 4, s57')
    a.e('s_mov_b64 exec, s[60:61]')
    a.e('ds_write_b32 v135, v132 offset:64'); a.e('ds_write_b32 v135, v133 offset:192'); a.e('ds_write_b32 v137, v134 offset:64')
    a.e('s_mov_b64 exec, s[62:63]')
    a.e(f'ds_write_b128 v136, v[{accA+28}:{accA+31}]'); a.e(f'ds_write_b128 v136, v[{accB+28}:{accB+31}] offset:128')
    a.e(f'ds_write_b128 v138, v[{H2}:{H2+3}]')
    a.e('s_mov_b64 exec, -1')
    a.e('s_waitcnt lgkmcnt(0)')
    SA = 140
    for t in range(2):
        b = SA + 12 * t
        a.e(f'ds_read_b32 v{b}, v135 offset:{128*t}'); a.e(f'ds_read_b32 v{b+1}, v135 offset:{128*t+64}')
        a.e(f'ds_read_b128 v[{b+2}:{b+5}], v136 offset:{128*t}'); a.e(f'ds_read_b128 v[{b+6}:{b+9}], v136 offset:{128*t+64}')
    a.e(f'v_mov_b32 v164, {hex(f32(1e-5))}')
    a.e(f's_mov_b32 s56, {hex(f32(1.0/640))}'); a.e(f's_mov_b32 s57, {hex(f32(-1.0/640))}')
    QS = (20 ** -0.5) * math.log2(math.e)
    a.e(f's_mov_b32 s58, {hex(f32(QS))}')
    a.e('s_waitcnt lgkmcnt(0)')
    def stats(sum_, sq):
        a.e(f'v_mul_f32 v{sum_}, s57, v{sum_}')
        a.e(f'v_fma_f32 v{sq}, v{sq}, s56, v164')
        a.e(f'v_fma_f32 v{sq}, -v{sum_}, v{sum_}, v{sq}')
        a.e(f'v_rsq_f32 v{sq}, v{sq}')
    for t in range(2):
        b = SA + 12 * t
        stats(b, b + 1)
        for r in range(4): stats(b + 2 + r, b + 6 + r)
    a.e('v_cmp_gt_u32 s[70:71], 2, v4')
    for t in range(2):
        b = SA + 12 * t
        a.e(f'v_mul_f32 v{b+10}, s58, v{b+1}')
        a.e(f'v_cndmask_b32 v{b+11}, v{b+1}, v{b+10}, s[70:71]')
    a.wait_vm('cs')
    KT = {'P': 168, 'A': 174, 'B': 180}; V0 = 186; V1 = 192; VB = 198; QT = {'A': 204, 'B': 212}
    def bc(r):
        p = r & ~1; s = r & 1
        return f'v[{p}:{p+1}]', s
    def fixT(acc, cs, mneg, fac, d0):
        mp, ms = bc(mneg); fp, fs = bc(fac)
        for h in range(2):
            a.e(f'v_pk_fma_f32 v[{acc+2*h}:{acc+2*h+1}], v[{cs+2*h}:{cs+2*h+1}], {mp}, v[{acc+2*h}:{acc+2*h+1}] op_sel:[0,{ms},0] op_sel_hi:[1,{ms},1]')
        for h in range(2):
            a.e(f'v_pk_mul_f32 v[{acc+2*h}:{acc+2*h+1}], v[{acc+2*h}:{acc+2*h+1}], {fp} op_sel:[0,{fs}] op_sel_hi:[1,{fs}]')
        for h in range(2):
            a.e(f'v_cvt_pk_bf16_f32 v{d0+h}, v{acc+2*h}, v{acc+2*h+1}')
    def fixN(acc, cs, m4, r4, d0):
        cp, c_s = bc(cs)
        for h in range(2):
            a.e(f'v_pk_fma_f32 v[{acc+2*h}:{acc+2*h+1}], v[{m4+2*h}:{m4+2*h+1}], {cp}, v[{acc+2*h}:{acc+2*h+1}] op_sel:[0,{c_s},0] op_sel_hi:[1,{c_s},1]')
        for h in range(2):
            a.e(f'v_pk_mul_f32 v[{acc+2*h}:{acc+2*h+1}], v[{acc+2*h}:{acc+2*h+1}], v[{r4+2*h}:{r4+2*h+1}]')
        for h in range(2):
            a.e(f'v_cvt_pk_bf16_f32 v{d0+h}, v{acc+2*h}, v{acc+2*h+1}')
    a.e('v_cmp_eq_u32 s[72:73], 0, v4'); a.e('v_cmp_eq_u32 s[74:75], 1, v4')
    for t, (nm, acc) in enumerate((('A', accA), ('B', accB))):
        b = SA + 12 * t
        fixT(acc + 0, CST + 0, b, b + 10, QT[nm] + 0)
        fixT(acc + 4, CST + 4, b, b + 10, QT[nm] + 6)
        fixT(acc + 8, CST + 8, b, b + 1, KT[nm] + 0)
        fixT(acc + 12, CST + 12, b, b + 1, KT[nm] + 4)
        fixT(acc + 16, CST + 16, b, b + 11, KT[nm] + 2)
        fixN(acc + 20, 120, b + 2, b + 6, V0 + 2 + 2 * t)
        fixN(acc + 24, 121, b + 2, b + 6, V1 + 2 + 2 * t)
        fixN(acc + 28, 122, b + 2, b + 6, VB + 2 + 2 * t)
        q = QT[nm]; k = KT[nm]
        a.e(f'v_mov_b32 v{q+2}, v{k+2}'); a.e(f'v_mov_b32 v{q+3}, v{k+3}')
        a.e(f'v_permlane32_swap_b32 v{q+2}, v{k+2}'); a.e(f'v_permlane32_swap_b32 v{q+3}, v{k+3}')
        a.e(f'v_cndmask_b32 v{q+4}, 0, v{q+2}, s[74:75]'); a.e(f'v_cndmask_b32 v{q+5}, 0, v{q+3}, s[74:75]')
        a.e(f'v_cndmask_b32 v{q+2}, 0, v{q+2}, s[72:73]'); a.e(f'v_cndmask_b32 v{q+3}, 0, v{q+3}, s[72:73]')
    a.e(f's_add_u32 s56, s14, 1'); a.e('s_mul_i32 s56, s56, 3072'); a.e(f's_add_u32 s56, s56, {PB_OFF}')
    a.e(f's_cmp_eq_u32 s14, 3'); a.e(f's_cselect_b32 s56, {PB_OFF + 4*3072 - 1024}, s56')
    a.e('v_lshl_add_u32 v139, v2, 3, s56')
    a.e(f's_cbranch_scc1 {n}_NOPUB')
    kB = KT['B']
    a.e(f'ds_write_b64 v139, v[{kB}:{kB+1}]'); a.e(f'ds_write_b64 v139, v[{kB+2}:{kB+3}] offset:512'); a.e(f'ds_write_b64 v139, v[{kB+4}:{kB+5}] offset:1024')
    a.e(f'ds_write_b64 v139, v[{V0+4}:{V0+5}] offset:1536'); a.e(f'ds_write_b64 v139, v[{V1+4}:{V1+5}] offset:2048'); a.e(f'ds_write_b64 v139, v[{VB+4}:{VB+5}] offset:2560')
    a.label(f'{n}_NOPUB')
    a.e('s_waitcnt lgkmcnt(0)')
    a.e('s_barrier')
    K.stamp(4)
    a.e(f'v_lshlrev_b32 v135, 2, v3'); a.e(f'v_add_u32 v135, {HS_OFF}, v135')
    a.e(f'v_lshlrev_b32 v136, 4, v4'); a.e(f'v_add_u32 v136, {HS_OFF}, v136')
    b = SA
    a.e(f'ds_read_b32 v{b}, v135'); a.e(f'ds_read_b32 v{b+1}, v135 offset:64')
    a.e(f'ds_read_b128 v[{b+2}:{b+5}], v136'); a.e(f'ds_read_b128 v[{b+6}:{b+9}], v136 offset:64')
    a.e(f's_mov_b32 s56, {hex(f32(1.0/640))}')
    a.e('s_waitcnt lgkmcnt(0)')
    stats(b, b + 1)
    for r in range(4): stats(b + 2 + r, b + 6 + r)
    fixT(H1, 124, b, b + 1, 160)
    fixN(H2, 123, b + 2, b + 6, 162)
    a.e('s_cmp_eq_u32 s14, 2')
    a.e(f's_cbranch_scc0 {n}_NOSW')
    a.e('v_mov_b32 v164, v160'); a.e('v_mov_b32 v165, v161')
    a.e('v_permlane32_swap_b32 v164, v160'); a.e('v_permlane32_swap_b32 v165, v161')
    a.label(f'{n}_NOSW')
    a.e('s_lshl_b32 s56, s14, 1'); a.e('s_cmp_eq_u32 s14, 2'); a.e('s_cselect_b32 s56, 1, s56'); a.e('s_lshl_b32 s56, s56, 9')
    a.e('s_add_u32 s57, s14, 3'); a.e('s_lshl_b32 s57, s57, 9')
    a.e(f's_add_u32 s56, s56, {PB_OFF}'); a.e(f's_add_u32 s57, s57, {PB_OFF}')
    a.e('v_lshl_add_u32 v135, v2, 3, s56'); a.e('v_lshl_add_u32 v136, v2, 3, s57')
    a.e('s_cmp_eq_u32 s14, 3')
    a.e(f's_cbranch_scc1 {n}_NOH')
    a.e('ds_write_b64 v135, v[160:161]'); a.e('ds_write_b64 v136, v[162:163]')
    a.label(f'{n}_NOH')
    a.e('v_lshlrev_b32 v160, 2, v4'); a.e('v_sub_u32 v160, v3, v160')
    a.e('v_mov_b32 v161, 0'); a.e(f'v_mov_b32 v162, {hex(f32(-1e30))}')
    for r in range(4):
        for (dst, add) in ((144 + r, -r), (148 + r, 16 - r)):
            a.e(f'v_add_u32 v163, {add}, v160')
            a.e('v_and_b32 v164, 0xfffffff1, v163')
            a.e('v_cmp_eq_u32 vcc, 0, v164')
            a.e(f'v_cndmask_b32 v{dst}, v162, v161, vcc')
    a.e('s_or_b32 s56, s12, s14'); a.e('s_cmp_eq_u32 s56, 0'); a.e('s_cselect_b64 s[70:71], -1, 0')
    for r in range(4):
        a.e(f'v_cndmask_b32 v{152+r}, v{148+r}, v162, s[70:71]')
    a.e('s_waitcnt lgkmcnt(0)')
    a.e('s_barrier')
    a.e(f's_mul_i32 s56, s14, 3072'); a.e(f's_add_u32 s56, s56, {PB_OFF}')
    a.e('v_lshl_add_u32 v139, v2, 3, s56')
    kP = KT['P']
    a.e(f'ds_read_b64 v[{kP}:{kP+1}], v139'); a.e(f'ds_read_b64 v[{kP+2}:{kP+3}], v139 offset:512'); a.e(f'ds_read_b64 v[{kP+4}:{kP+5}], v139 offset:1024')
    a.e(f'ds_read_b64 v[{V0}:{V0+1}], v139 offset:1536'); a.e(f'ds_read_b64 v[{V1}:{V1+1}], v139 offset:2048'); a.e(f'ds_read_b64 v[{VB}:{VB+1}], v139 offset:2560')
    a.e('s_mul_i32 s56, s13, 1280'); a.e('s_add_u32 s56, s56, s41')
    a.e('v_lshlrev_b32 v156, 4, v3'); a.e('v_lshl_add_u32 v157, v4, 8, v156'); a.e('v_add_u32 v157, s56, v157')
    a.e('v_lshl_add_u32 v158, v4, 3, v156'); a.e('s_add_u32 s56, s56, 1024'); a.e('v_add_u32 v158, s56, v158')
    a.e('s_waitcnt lgkmcnt(0)')
    K.stamp(5)
    tasks = [(0, 0), (0, 1), (1, 0), (1, 1)]
    for ti, (t, h) in enumerate(tasks):
        nm = 'AB'[t]; prev = 'P' if t == 0 else 'A'
        S = 16 + 8 * ti
        qo = QT[nm] + (0 if h == 0 else 4); ko = 0 if h == 0 else 2
        bp = 152 if t == 0 else 148
        a.e(f'v_mfma_f32_16x16x32_bf16 v[{S}:{S+3}], v[{KT[prev]+ko}:{KT[prev]+ko+3}], v[{qo}:{qo+3}], v[{bp}:{bp+3}]')
        a.e(f'v_mfma_f32_16x16x32_bf16 v[{S+4}:{S+7}], v[{KT[nm]+ko}:{KT[nm]+ko+3}], v[{qo}:{qo+3}], v[144:147]')
    M = 48
    for ti in range(4):
        S = 16 + 8 * ti; m = M + 4 * ti
        a.e(f'v_max3_f32 v{m}, v{S}, v{S+1}, v{S+2}'); a.e(f'v_max3_f32 v{m}, v{m}, v{S+3}, v{S+4}')
        a.e(f'v_max3_f32 v{m}, v{m}, v{S+5}, v{S+6}'); a.e(f'v_max_f32 v{m}, v{m}, v{S+7}')
    for sw in ('v_permlane16_swap_b32', 'v_permlane32_swap_b32'):
        for ti in range(4): a.e(f'v_mov_b32 v{M+4*ti+1}, v{M+4*ti}')
        for ti in range(4): a.e(f'{sw} v{M+4*ti}, v{M+4*ti+1}')
        for ti in range(4): a.e(f'v_max_f32 v{M+4*ti}, v{M+4*ti}, v{M+4*ti+1}')
    for ti in range(4):
        S = 16 + 8 * ti; m = M + 4 * ti
        for j in range(4):
            a.e(f'v_pk_add_f32 v[{S+2*j}:{S+2*j+1}], v[{S+2*j}:{S+2*j+1}], v[{m}:{m+1}] op_sel_hi:[1,0] neg_lo:[0,1] neg_hi:[0,1]')
    for ti in range(4):
        S = 16 + 8 * ti
        for j in range(8): a.e(f'v_exp_f32 v{S+j}, v{S+j}')
    PP = 64
    for ti in range(4):
        S = 16 + 8 * ti; m = M + 4 * ti
        for j in range(4): a.e(f'v_cvt_pk_bf16_f32 v{PP+4*ti+j}, v{S+2*j}, v{S+2*j+1}')
        a.e(f'v_pk_add_f32 v[{S}:{S+1}], v[{S}:{S+1}], v[{S+2}:{S+3}]')
        a.e(f'v_pk_add_f32 v[{S+4}:{S+5}], v[{S+4}:{S+5}], v[{S+6}:{S+7}]')
        a.e(f'v_pk_add_f32 v[{S}:{S+1}], v[{S}:{S+1}], v[{S+4}:{S+5}]')
        a.e(f'v_add_f32 v{m+2}, v{S}, v{S+1}')
    OO = 96
    for ti, (t, h) in enumerate(tasks):
        Vh = V0 if h == 0 else V1
        a.e(f'v_mfma_f32_16x16x32_bf16 v[{OO+8*ti}:{OO+8*ti+3}], v[{Vh+2*t}:{Vh+2*t+3}], v[{PP+4*ti}:{PP+4*ti+3}], 0')
        a.e(f'v_mfma_f32_16x16x32_bf16 v[{OO+8*ti+4}:{OO+8*ti+7}], v[{VB+2*t}:{VB+2*t+3}], v[{PP+4*ti}:{PP+4*ti+3}], 0')
    for sw in ('v_permlane16_swap_b32', 'v_permlane32_swap_b32'):
        for ti in range(4): a.e(f'v_mov_b32 v{M+4*ti+3}, v{M+4*ti+2}')
        for ti in range(4): a.e(f'{sw} v{M+4*ti+2}, v{M+4*ti+3}')
        for ti in range(4): a.e(f'v_add_f32 v{M+4*ti+2}, v{M+4*ti+2}, v{M+4*ti+3}')
    for ti in range(4): a.e(f'v_rcp_f32 v{M+4*ti+2}, v{M+4*ti+2}')
    for ti in range(4):
        o = OO + 8 * ti; s = M + 4 * ti + 2
        for j in range(4):
            a.e(f'v_pk_mul_f32 v[{o+2*j}:{o+2*j+1}], v[{o+2*j}:{o+2*j+1}], v[{s}:{s+1}] op_sel_hi:[1,0]')
    for t in range(2):
        o0 = OO + 8 * (2 * t); o1 = OO + 8 * (2 * t + 1); d = 80 + 8 * t
        a.e(f'v_cvt_pk_bf16_f32 v{d}, v{o0}, v{o0+1}'); a.e(f'v_cvt_pk_bf16_f32 v{d+1}, v{o0+2}, v{o0+3}')
        a.e(f'v_cvt_pk_bf16_f32 v{d+2}, v{o1}, v{o1+1}'); a.e(f'v_cvt_pk_bf16_f32 v{d+3}, v{o1+2}, v{o1+3}')
        a.e(f'v_cvt_pk_bf16_f32 v{d+4}, v{o0+4}, v{o0+5}'); a.e(f'v_cvt_pk_bf16_f32 v{d+5}, v{o0+6}, v{o0+7}')
        a.e(f'v_cvt_pk_bf16_f32 v{d+6}, v{o1+4}, v{o1+5}'); a.e(f'v_cvt_pk_bf16_f32 v{d+7}, v{o1+6}, v{o1+7}')
        a.e(f'v_cndmask_b32 v{d+4}, v{d+6}, v{d+4}, s[72:73]'); a.e(f'v_cndmask_b32 v{d+5}, v{d+7}, v{d+5}, s[72:73]')
    a.e('s_movk_i32 s56, 20480')
    a.e('buffer_store_dwordx4 v[80:83], v157, s[28:31], 0 offen')
    a.e('buffer_store_dwordx4 v[88:91], v157, s[28:31], s56 offen')
    a.e('s_mov_b32 exec_hi, 0')
    a.e('buffer_store_dwordx2 v[84:85], v158, s[28:31], 0 offen')
    a.e('buffer_store_dwordx2 v[92:93], v158, s[28:31], s56 offen')
    a.e('s_mov_b64 exec, -1')
    K.stamp(6)
    if DIAG: a.e('s_waitcnt vmcnt(0)')
    K.stamp(7)
    K.dump(8)
    a.label(f'{n}_END')
    a.e('s_endpgm')
    return K
```

```python
from common import *
from k1 import f32

def gen_k4(layer):
    K = Kernel(f'proj{layer}_kernel', 256, 256, 102400, vgpr=128, agpr=160, sgpr=80, idx=2 * layer + 1)
    n = f'K4L{layer}'
    a = K.a
    K.stamp(0)
    a.e('s_cmp_ge_u32 s2, 256')
    a.e(f's_cbranch_scc1 {n}_END')
    a.e('s_load_dwordx2 s[10:11], s[0:1], 88')
    if layer == 2: a.e('s_load_dwordx2 s[8:9], s[0:1], 72')
    a.e('s_and_b32 s12, s2, 7'); a.e('s_lshl_b32 s12, s12, 2'); a.e('s_bfe_u32 s13, s2, 0x20003'); a.e('s_add_u32 s12, s12, s13')
    a.e('s_lshr_b32 s13, s2, 5')
    a.e('v_lshrrev_b32 v1, 6, v0'); a.e('v_and_b32 v2, 63, v0')
    a.e('v_readfirstlane_b32 s14, v1')
    a.e('v_and_b32 v3, 15, v2'); a.e('v_lshrrev_b32 v4, 4, v2'); a.e('v_lshlrev_b32 v5, 4, v2')
    a.e('s_lshl_b32 s15, s12, 2'); a.e('s_add_u32 s15, s15, s14')
    a.e('s_mul_i32 s40, s15, 20480')
    a.e('v_add_u32 v6, s40, v5')
    a.e('s_mul_i32 s41, s13, 102400'); a.e('s_lshl_b32 s42, s14, 10'); a.e('s_add_u32 s41, s41, s42')
    a.e('v_add_u32 v7, s41, v5')
    a.e('s_mul_i32 s43, s13, 2560'); a.e('s_add_u32 s43, s43, s40')
    a.e('v_lshrrev_b32 v8, 1, v4'); a.e('v_lshlrev_b32 v8, 8, v8'); a.e('v_lshl_add_u32 v8, v3, 4, v8')
    a.e('v_and_b32 v9, 1, v4'); a.e('v_lshl_add_u32 v8, v9, 3, v8'); a.e('v_add_u32 v8, s43, v8')
    for j in range(5): a.e(f's_mov_b32 s{46+j}, {4096*j}')
    a.e('s_waitcnt lgkmcnt(0)')
    srd(a, 16, 10, SZ, O_OFF)
    srd(a, 20, 10, 8 * 102400, WF2_OFF)
    srd(a, 24, 10, SZ, X1_OFF if layer == 1 else X3_OFF)
    if layer == 1:
        srd(a, 28, 10, SZ, Y_OFF); srd(a, 32, 10, SZ, X3_OFF); srd(a, 36, 10, 131072, EX_OFF)
    else:
        srd(a, 32, 8, SZ)
    def nround(ks): return (5 * ks + 1 + 3) // 4
    issued = -1
    for ks in range(20):
        tag = f's{ks//2}'
        a.e(f'buffer_load_dwordx4 a[{4*ks}:{4*ks+3}], v6, s[16:19], s{46+(ks>>2)} offen offset:{1024*(ks&3)}', tag)
        while issued < nround(ks):
            issued += 1
            a.e(f's_mov_b32 s53, {4096*issued}')
            a.e('s_add_u32 m0, s53, s42')
            a.e('s_nop 0')
            a.e('buffer_load_dwordx4 v7, s[20:23], s53 offen lds', tag)
    assert issued == 24
    XR = 16; YR = 26
    for ft in range(5):
        a.e(f'buffer_load_dwordx2 v[{XR+2*ft}:{XR+2*ft+1}], v8, s[24:27], 0 offen offset:{512*ft}', 'res')
    if layer == 1:
        for ft in range(5):
            a.e(f'buffer_load_dwordx2 v[{YR+2*ft}:{YR+2*ft+1}], v8, s[28:31], 0 offen offset:{512*ft}', 'res')
    K.stamp(1)
    a.e('v_mov_b32 v10, v5'); a.e('v_add_u32 v11, 61440, v5')
    WB = [80, 120]; ACC = 40
    def reads(st):
        b = WB[st & 1]; L = []
        for j in range(10):
            f = 10 * st + j
            base, off = ('v10', 1024 * f) if f < 60 else ('v11', 1024 * (f - 60))
            L.append(f'ds_read_b128 a[{b+4*j}:{b+4*j+3}], {base} offset:{off}')
        return L
    def mfmas(st):
        b = WB[st & 1]; L = []
        for h in range(2):
            ks = 2 * st + h
            for ft in range(5):
                c = '0' if ks == 0 else f'v[{ACC+4*ft}:{ACC+4*ft+3}]'
                L.append(f'v_mfma_f32_16x16x32_bf16 v[{ACC+4*ft}:{ACC+4*ft+3}], a[{b+4*(5*h+ft)}:{b+4*(5*h+ft)+3}], a[{4*ks}:{4*ks+3}], {c}')
        return L
    a.wait_vm('s0'); a.e('s_barrier')
    K.stamp(2)
    for ins in reads(0): a.e(ins)
    for st in range(10):
        rd = []
        if st < 9:
            a.wait_vm(f's{st+1}'); a.e('s_barrier'); rd = reads(st + 1)
        a.e(f's_waitcnt lgkmcnt(0)')
        mf = mfmas(st)
        for j, ins in enumerate(mf):
            a.e(ins)
            if j < len(rd): a.e(rd[j])
    K.stamp(3)
    a.wait_vm('res')
    a.e('s_mov_b32 s42, 0xffff0000')
    X = 64
    for ft in range(5):
        for h in range(2):
            a.e(f'v_lshlrev_b32 v{X+4*ft+2*h}, 16, v{XR+2*ft+h}'); a.e(f'v_and_b32 v{X+4*ft+2*h+1}, s42, v{XR+2*ft+h}')
    for j in range(10):
        a.e(f'v_pk_add_f32 v[{X+2*j}:{X+2*j+1}], v[{X+2*j}:{X+2*j+1}], v[{ACC+2*j}:{ACC+2*j+1}]')
    if layer == 2:
        for j in range(10): a.e(f'v_cvt_pk_bf16_f32 v{XR+j}, v{X+2*j}, v{X+2*j+1}')
        a.e('s_lshl_b32 s43, s15, 4'); a.e('v_add_u32 v9, s43, v3'); a.e('s_movk_i32 s44, 1280'); a.e('v_mul_lo_u32 v9, v9, s44')
        a.e('s_mul_i32 s43, s13, 160'); a.e('v_lshl_add_u32 v9, v4, 3, v9'); a.e('v_add_u32 v9, s43, v9')
        for ft in range(5):
            a.e(f'buffer_store_dwordx2 v[{XR+2*ft}:{XR+2*ft+1}], v9, s[32:35], 0 offen offset:{32*ft}')
    else:
        T = 84
        a.e(f'v_pk_add_f32 v[{T}:{T+1}], v[{X}:{X+1}], v[{X+2}:{X+3}]')
        a.e(f'v_pk_mul_f32 v[{T+2}:{T+3}], v[{X}:{X+1}], v[{X}:{X+1}]')
        for j in range(1, 10):
            if j > 1: a.e(f'v_pk_add_f32 v[{T}:{T+1}], v[{T}:{T+1}], v[{X+2*j}:{X+2*j+1}]')
            a.e(f'v_pk_fma_f32 v[{T+2}:{T+3}], v[{X+2*j}:{X+2*j+1}], v[{X+2*j}:{X+2*j+1}], v[{T+2}:{T+3}]')
        a.e(f'v_add_f32 v{T}, v{T}, v{T+1}'); a.e(f'v_add_f32 v{T+1}, v{T+2}, v{T+3}')
        def redg(r0, cnt, tmp):
            for sw in ('v_permlane16_swap_b32', 'v_permlane32_swap_b32'):
                for j in range(cnt): a.e(f'v_mov_b32 v{tmp+j}, v{r0+j}')
                for j in range(cnt): a.e(f'{sw} v{r0+j}, v{tmp+j}')
                for j in range(cnt): a.e(f'v_add_f32 v{r0+j}, v{r0+j}, v{tmp+j}')
        redg(T, 2, T + 2)
        a.e('s_lshl_b32 s43, s15, 10')
        a.e('s_lshl_b32 s44, s13, 7'); a.e('s_add_u32 s44, s44, s43')
        a.e('v_lshl_add_u32 v9, v3, 3, s44')
        a.e('s_mov_b64 exec, 0xffff')
        a.e(f'buffer_store_dwordx2 v[{T}:{T+1}], v9, s[36:39], 0 offen sc0 sc1')
        a.e('s_mov_b64 exec, -1')
        Yf = 88
        for ft in range(5):
            for h in range(2):
                a.e(f'v_lshlrev_b32 v{Yf+4*ft+2*h}, 16, v{YR+2*ft+h}'); a.e(f'v_and_b32 v{Yf+4*ft+2*h+1}, s42, v{YR+2*ft+h}')
        K.stamp(4)
        a.e('v_lshlrev_b32 v9, 8, v4'); a.e('v_lshl_add_u32 v9, v3, 3, v9'); a.e('v_add_u32 v9, s43, v9')
        a.e('s_mov_b32 s45, 0x40000')
        a.label(f'{n}_POLL')
        a.e('buffer_load_dwordx2 v[108:109], v9, s[36:39], 0 offen sc0 sc1')
        a.e('buffer_load_dwordx2 v[110:111], v9, s[36:39], 0 offen offset:128 sc0 sc1')
        a.e('s_waitcnt vmcnt(0)')
        a.e('v_cmp_eq_u32 s[60:61], -1, v108'); a.e('v_cmp_eq_u32 s[62:63], -1, v109')
        a.e('v_cmp_eq_u32 s[64:65], -1, v110'); a.e('v_cmp_eq_u32 s[66:67], -1, v111')
        a.e('s_or_b64 s[60:61], s[60:61], s[62:63]'); a.e('s_or_b64 s[64:65], s[64:65], s[66:67]'); a.e('s_or_b64 s[60:61], s[60:61], s[64:65]')
        a.e('s_cmp_eq_u64 s[60:61], 0')
        a.e(f's_cbranch_scc1 {n}_GOT')
        a.e('s_sub_u32 s45, s45, 1'); a.e('s_cmp_lg_u32 s45, 0')
        a.e(f's_cbranch_scc1 {n}_POLL')
        a.label(f'{n}_GOT')
        a.reset_counts()
        K.stamp(5)
        a.e(f'v_add_f32 v{T}, v108, v110'); a.e(f'v_add_f32 v{T+1}, v109, v111')
        redg(T, 2, T + 2)
        a.e(f'v_mul_f32 v{T}, {hex(f32(-1.0/640))}, v{T}')
        a.e(f'v_mov_b32 v{T+2}, {hex(f32(1e-5))}')
        a.e(f'v_fmac_f32 v{T+2}, {hex(f32(1.0/640))}, v{T+1}')
        a.e(f'v_fma_f32 v{T+2}, -v{T}, v{T}, v{T+2}')
        a.e(f'v_rsq_f32 v{T+2}, v{T+2}')
        for j in range(10):
            a.e(f'v_pk_add_f32 v[{ACC+2*j}:{ACC+2*j+1}], v[{X+2*j}:{X+2*j+1}], v[{T}:{T+1}] op_sel_hi:[1,0]')
        for j in range(10):
            a.e(f'v_pk_mul_f32 v[{Yf+2*j}:{Yf+2*j+1}], v[{Yf+2*j}:{Yf+2*j+1}], v[{T+2}:{T+3}] op_sel_hi:[1,0]')
        for j in range(10):
            a.e(f'v_pk_fma_f32 v[{X+2*j}:{X+2*j+1}], v[{ACC+2*j}:{ACC+2*j+1}], v[{Yf+2*j}:{Yf+2*j+1}], v[{X+2*j}:{X+2*j+1}]')
        for j in range(10): a.e(f'v_cvt_pk_bf16_f32 v{XR+j}, v{X+2*j}, v{X+2*j+1}')
        for ft in range(5):
            a.e(f'buffer_store_dwordx2 v[{XR+2*ft}:{XR+2*ft+1}], v8, s[32:35], 0 offen offset:{512*ft}')
    K.stamp(6)
    if DIAG: a.e('s_waitcnt vmcnt(0)')
    K.stamp(7)
    K.dump(8)
    a.label(f'{n}_END')
    a.e('s_endpgm')
    return K
```

```python
import sys, os
sys.path.insert(0,'gen')
from common import *
from k1 import gen_k1
from k2 import gen_k2
from k3 import gen_k3
from k4 import gen_k4
n = int(sys.argv[2]) if len(sys.argv) > 2 else 6
fs = [gen_k1, gen_k2, lambda: gen_k3(1), lambda: gen_k4(1), lambda: gen_k3(2), lambda: gen_k4(2)]
open(sys.argv[1],'w').write(assemble([f() for f in fs[:n]]))
```

```python
import sys, os
sys.path.insert(0,'gen')
from common import *
from k1 import gen_k1
from k2 import gen_k2
from k3 import gen_k3
from k4 import gen_k4
def triv(i):
    K = Kernel(f'triv{i}_kernel', 256, 256, 0, vgpr=8, sgpr=16)
    K.a.e('s_endpgm')
    return K
fs = [gen_k1(), gen_k2(), gen_k3(1), gen_k4(1), gen_k3(2), gen_k4(2)]
open('v_base.s','w').write(assemble(fs))
fs = [gen_k1(), gen_k2(), gen_k3(1), gen_k4(1), gen_k3(2), gen_k4(2)] + [triv(i) for i in range(4)]
open('v_plus4.s','w').write(assemble(fs))
fs = [triv(i) for i in range(4)] + [gen_k1(), gen_k2(), gen_k3(1), gen_k4(1), gen_k3(2), gen_k4(2)]
open('v_pre4.s','w').write(assemble(fs))
```

```python
import re

REG_RE = re.compile(r'^(-?)(abs\()?([vas])(\d+|\[(\d+):(\d+)\])\)?$')

def parse_reg(tok):
    tok = tok.strip()
    if tok in ('vcc',):
        return [('s', 'vcc_lo'), ('s', 'vcc_hi')]
    if tok in ('vcc_lo', 'vcc_hi', 'm0', 'exec_lo', 'exec_hi'):
        return [('s', tok)]
    if tok == 'exec':
        return [('s', 'exec_lo'), ('s', 'exec_hi')]
    t = tok
    if t.startswith('-'):
        t = t[1:]
    if t.startswith('|') and t.endswith('|'):
        t = t[1:-1]
    if t.startswith('abs(') and t.endswith(')'):
        t = t[4:-1]
    m = re.match(r'^([vas])(\d+)$', t)
    if m:
        return [(m.group(1), int(m.group(2)))]
    m = re.match(r'^([vas])\[(\d+):(\d+)\]$', t)
    if m:
        return [(m.group(1), i) for i in range(int(m.group(2)), int(m.group(3)) + 1)]
    return []

TRANS = ('v_exp_f32', 'v_log_f32', 'v_rcp_f32', 'v_rsq_f32', 'v_sqrt_f32', 'v_sin_f32', 'v_cos_f32',
         'v_rcp_iflag_f32')

class Ins:
    __slots__ = ('text', 'mn', 'ops', 'mods', 'kind', 'wr', 'rd', 'srcC', 'passes', 'dpp', 'label', 'target',
                 'store_data', 'trans', 'lds_dma', 'rdAB')
    def __init__(self, text):
        self.text = text
        self.label = None
        self.target = None
        t = text.split(';')[0].strip()
        self.kind = 'other'
        self.wr = []; self.rd = []; self.srcC = []; self.rdAB = []
        self.passes = 0; self.dpp = False; self.store_data = []; self.trans = False; self.lds_dma = False
        self.mn = ''; self.ops = []; self.mods = ''
        if not t:
            self.kind = 'none'; return
        if t.endswith(':'):
            self.kind = 'label'; self.label = t[:-1]; return
        if t.startswith('.'):
            self.kind = 'none'; return
        parts = t.split(None, 1)
        mn = parts[0]; self.mn = mn
        rest = parts[1] if len(parts) > 1 else ''
        ops = []; cur = ''; depth = 0
        for ch in rest:
            if ch in '[(': depth += 1
            if ch in '])': depth -= 1
            if ch == ',' and depth == 0:
                ops.append(cur.strip()); cur = ''
            else:
                cur += ch
        if cur.strip(): ops.append(cur.strip())
        mods = ''
        if ops:
            last = ops[-1].split(None, 1)
            if len(last) > 1:
                ops[-1] = last[0]; mods = last[1]
        self.ops = ops; self.mods = mods
        R = [parse_reg(o) for o in ops]
        base = mn
        for suf in ('_e32', '_e64', '_dpp', '_sdwa'):
            if base.endswith(suf): base = base[:-len(suf)]
        if mn.startswith('v_mfma'):
            self.kind = 'mfma'
            self.wr = R[0]; self.rdAB = R[1] + R[2]; self.srcC = R[3]; self.rd = self.rdAB + self.srcC
            if '32x32x16' in mn or '32x32x8' in mn: self.passes = 8
            elif '16x16x32' in mn or '16x16x16' in mn: self.passes = 4
            else: raise ValueError('unknown mfma passes ' + mn)
        elif mn.startswith('v_'):
            self.kind = 'valu'
            self.dpp = ('_dpp' in mn) or ('row_' in mods) or ('quad_perm' in mods)
            self.trans = base in TRANS
            if base.startswith('v_permlane') and 'swap' in base:
                self.wr = R[0] + R[1]; self.rd = R[0] + R[1]
            elif base.startswith('v_cmp'):
                self.wr = R[0]; self.rd = sum(R[1:], [])
            elif base in ('v_add_co_u32', 'v_sub_co_u32', 'v_subrev_co_u32'):
                self.wr = R[0] + R[1]; self.rd = sum(R[2:], [])
            elif base in ('v_addc_co_u32', 'v_subb_co_u32'):
                self.wr = R[0] + R[1]; self.rd = sum(R[2:], [])
            elif base in ('v_fmac_f32', 'v_dot2c_f32_bf16', 'v_pk_fmac_f16', 'v_writelane_b32'):
                self.wr = R[0]; self.rd = sum(R, [])
            elif base == 'v_nop':
                pass
            else:
                self.wr = R[0]; self.rd = sum(R[1:], [])
                if self.dpp:
                    self.rd = self.rd + R[0]
        elif mn.startswith('ds_'):
            self.kind = 'ds'
            if mn.startswith('ds_read') or ('_rtn' in mn) or mn.startswith('ds_bpermute') or mn.startswith('ds_permute') or mn.startswith('ds_swizzle'):
                self.wr = R[0]; self.rd = sum(R[1:], [])
            else:
                self.rd = sum(R, [])
        elif mn.startswith('global_') or mn.startswith('buffer_') or mn.startswith('flat_'):
            self.kind = 'vmem'
            islds = ('_lds_' in mn) or (' lds' in (' ' + mods))
            self.lds_dma = islds
            if mn in ('buffer_wbl2', 'buffer_inv'):
                pass
            elif 'load' in mn and not islds:
                self.wr = R[0]; self.rd = sum(R[1:], [])
            elif 'atomic' in mn and ('sc0' in mods):
                self.wr = R[0]; self.rd = sum(R[1:], [])
            elif 'store' in mn:
                self.rd = sum(R, [])
                if mn.startswith('global_'):
                    d = R[1]
                else:
                    d = R[0]
                if 'x3' in mn or 'x4' in mn:
                    self.store_data = d
            else:
                self.rd = sum(R, [])
            if islds: self.rd = self.rd + [('s', 'm0')]
        elif mn.startswith('s_'):
            self.kind = 'salu'
            if mn.startswith('s_cbranch') or mn == 's_branch':
                self.kind = 'branch'; self.target = ops[0]
            elif mn == 's_call_b64':
                self.kind = 'branch'; self.target = ops[1]; self.wr = R[0]
            elif mn in ('s_waitcnt', 's_nop', 's_barrier', 's_endpgm', 's_setprio', 's_sleep'):
                pass
            elif mn.startswith('s_cmp') or mn.startswith('s_bitcmp'):
                self.rd = sum(R, [])
            elif mn.startswith('s_load') or mn.startswith('s_buffer_load'):
                self.kind = 'smem'; self.wr = R[0]; self.rd = sum(R[1:], [])
            elif mn in ('s_and_saveexec_b64', 's_or_saveexec_b64'):
                self.wr = R[0] + parse_reg('exec'); self.rd = sum(R[1:], [])
            else:
                self.wr = R[0] if R else []; self.rd = sum(R[1:], [])
        else:
            raise ValueError('cannot classify: ' + text)

    def states(self):
        if self.kind in ('none', 'label'): return 0
        if self.mn == 's_nop': return int(self.ops[0], 0) + 1
        return 1


def need_states(p, c):
    n = 0
    wr = set(p.wr)
    vwr = {r for r in wr if r[0] in 'va'}
    swr = {r for r in wr if r[0] == 's'}
    crd = set(c.rd); cwr = set(c.wr)
    if p.kind == 'valu' and p.mn.startswith('v_dot'):
        if c.kind in ('valu', 'mfma', 'vmem', 'ds') and (vwr & (crd | cwr)):
            chain = c.kind == 'valu' and c.mn == p.mn and len(c.ops) == 4 and set(parse_reg(c.ops[3])) == vwr and not (vwr & set(parse_reg(c.ops[1]) + parse_reg(c.ops[2])))
            if not chain: n = max(n, 3)
    if p.kind == 'valu':
        if c.kind == 'mfma' and (vwr & crd): n = max(n, 2)
        if c.kind == 'valu':
            base = c.mn
            if vwr & crd:
                if base.startswith('v_permlane'): n = max(n, 2)
                if c.dpp: n = max(n, 2)
                if base.startswith('v_readlane') or base.startswith('v_readfirstlane'): n = max(n, 1)
                if p.trans and not c.trans: n = max(n, 1)
                if p.trans and c.trans: n = max(n, 1)
            if swr & crd:
                n = max(n, 4 if (base.startswith('v_readlane') or base.startswith('v_writelane')) else 2)
        if c.kind == 'vmem' and (swr & crd): n = max(n, 5)
        if c.kind in ('salu', 'smem', 'branch') and (swr & crd): n = max(n, 2)
        if c.kind == 'branch' and swr and ('vcc' in c.mn): n = max(n, 2)
    if p.kind == 'mfma':
        D = set(p.wr)
        big = {2: 5, 4: 8, 8: 12}[p.passes]
        if c.kind == 'valu' and (D & (crd | cwr)): n = max(n, big)
        if c.kind in ('vmem', 'ds') and (D & (crd | cwr)): n = max(n, big)
        if c.kind == 'mfma':
            if D & set(c.rdAB): n = max(n, big)
            if D & set(c.srcC):
                if list(p.wr) == list(c.srcC) and p.passes == c.passes:
                    n = max(n, 0 if p.passes >= 4 else 2)
                else:
                    n = max(n, {2: 4, 4: 6, 8: 10}[p.passes])
            elif D & cwr:
                n = max(n, big)
        if c.kind == 'valu' and (set(p.srcC) & cwr): n = max(n, {2: 1, 4: 3, 8: 7}[p.passes])
    if p.kind == 'salu':
        if ('s', 'm0') in wr and c.kind == 'vmem' and c.lds_dma: n = max(n, 1)
    if p.kind == 'vmem' and p.store_data:
        sd = set(p.store_data)
        if c.kind == 'valu' and (sd & cwr): n = max(n, 2)
        elif sd & cwr: n = max(n, 1)
    return n

WINDOW = 16

class Asm:
    def __init__(self):
        self.ins = []
        self.vm = []
        self.lg = []
    def e(self, text, tag=None, count=True):
        for line in text.split('\n'):
            line = line.strip()
            if not line: continue
            i = Ins(line)
            self.ins.append(i)
            if not count: continue
            if i.kind == 'vmem' and i.mn not in ('buffer_inv',):
                self.vm.append(tag)
            elif i.kind == 'ds':
                self.lg.append(tag)
            elif i.mn == 's_waitcnt':
                m = re.search(r'vmcnt\((\d+)\)', line)
                if m:
                    k = int(m.group(1)); self.vm = self.vm[len(self.vm) - k:] if k < len(self.vm) else self.vm
                    if k == 0: self.vm = []
                m = re.search(r'lgkmcnt\((\d+)\)', line)
                if m:
                    k = int(m.group(1)); self.lg = self.lg[len(self.lg) - k:] if k < len(self.lg) else self.lg
                    if k == 0: self.lg = []
    def c(self, text):
        self.ins.append(Ins('; ' + text))
    def label(self, name):
        self.ins.append(Ins(name + ':'))
    def _cnt(self, lst, tags):
        if not isinstance(tags, (list, tuple, set)): tags = [tags]
        last = -1
        for idx, t in enumerate(lst):
            if t in tags: last = idx
        if last < 0: return None
        return len(lst) - 1 - last
    def wait_vm(self, tags, extra=''):
        n = self._cnt(self.vm, tags)
        if n is None: return
        n = min(n, 63)
        self.e(f's_waitcnt vmcnt({n})')
    def wait_lg(self, tags):
        n = self._cnt(self.lg, tags)
        if n is None: return
        n = min(n, 15)
        self.e(f's_waitcnt lgkmcnt({n})')
    def wait(self, vm=None, lg=None):
        parts = []
        if vm is not None:
            n = self._cnt(self.vm, vm)
            if n is not None: parts.append(f'vmcnt({min(n,63)})')
        if lg is not None:
            n = self._cnt(self.lg, lg)
            if n is not None: parts.append(f'lgkmcnt({min(n,15)})')
        if parts: self.e('s_waitcnt ' + ' '.join(parts))
    def reset_counts(self):
        self.vm = []; self.lg = []

    def fix_hazards(self):
        out = []
        nins = 0
        for c in self.ins:
            if c.kind in ('none', 'label'):
                out.append(c); continue
            need = 0
            dist = 0
            for p in reversed(out):
                if p.kind == 'none': continue
                if p.kind == 'label': continue
                if dist >= WINDOW: break
                n = need_states(p, c)
                if n > dist: need = max(need, n - dist)
                dist += p.states()
            while need > 0:
                k = min(need, 16)
                out.append(Ins(f's_nop {k-1}')); need -= k; nins += 1
            out.append(c)
        self.ins = out
        self.check_edges()
        return nins

    def check_edges(self):
        labels = {i.label: idx for idx, i in enumerate(self.ins) if i.kind == 'label'}
        for bi, b in enumerate(self.ins):
            if b.kind != 'branch': continue
            if b.target not in labels: raise ValueError('unknown label ' + str(b.target))
            ti = labels[b.target]
            prods = []
            d = 0
            for p in reversed(self.ins[:bi + 1]):
                if p.kind in ('none', 'label'): continue
                prods.append((p, d)); d += p.states()
                if d >= WINDOW: break
            dc = 0
            for c in self.ins[ti + 1:]:
                if c.kind in ('none', 'label'): continue
                for p, dp in prods:
                    between = dp + dc
                    n = need_states(p, c)
                    if n > between:
                        raise ValueError(f'hazard across branch: "{p.text}" -> "{c.text}" need {n} have {between}')
                dc += c.states()
                if dc >= WINDOW: break
                if c.kind == 'branch' and c.mn == 's_branch': break

    def text(self):
        out = []
        for i in self.ins:
            if i.kind == 'label': out.append(i.text)
            else: out.append('    ' + i.text)
        return '\n'.join(out) + '\n'
```

```python
from mcommon import *
from m_p1 import A_dma, A_addr, A_reads, A_compute, nonce, ASZ, B_dma, B_addr, B_finish

CNT_OFF = 163328
CPY = 4160; WSZ = 4 * CPY + 4608; RB = 4 * CPY

def conv_path(M):
    a = M.a
    a.reset_counts()
    a.e(f's_lshr_b32 s65, s{sID}, 4'); a.e('s_lshl_b32 s65, s65, 3'); a.e(f's_and_b32 s49, s{sID}, 7')
    a.e('s_add_u32 s65, s65, s49'); a.e('s_lshl_b32 s65, s65, 1'); a.e(f's_bfe_u32 s49, s{sID}, 0x10003'); a.e('s_add_u32 s65, s65, s49')
    a.e('s_lshl_b32 s66, s65, 2'); a.e(f's_add_u32 s66, s66, s{sW}')
    a.e(f's_mul_i32 s67, s{sW}, {WSZ}')
    a.e('s_lshr_b32 s49, s66, 1'); a.e('s_lshl_b32 s49, s49, 2'); a.e(f's_load_dword s64, s[{pSD}:{pSD+1}], s49')
    M.srd(SA, pK, SZ); M.srd(SB, pV, SZ); M.srd(SC, pSH, 640 * 8)
    A_dma(M, sID, 8, 100000 // 1024 * 1024 + 0, 'A1')
    A_addr(M, sID, 8, 24, 99328, 'A1')
    a.e('s_lshl_b32 s49, s66, 12'); a.e(f'v_add_u32 v5, s49, v{vL16}')
    M.stamp('c1_Aissued')
    a.e(f's_add_u32 s63, s67, {RB}')
    a.e('v_mov_b32 v6, 0'); a.e('v_mov_b32 v7, 0')
    a.e(f'v_lshl_add_u32 v14, v{vL}, 3, s63')
    a.e('ds_write_b64 v14, v[6:7] offset:4096', 'z')
    a.e(f'v_add_u32 v14, 1, v{vI}'); a.e('v_and_b32 v15, 3, v14')
    a.e(f'v_mul_u32_u24 v204, {CPY}, v15'); a.e('v_sub_u32 v14, v14, v15')
    a.e('v_lshl_add_u32 v204, v14, 1, v204'); a.e(f'v_lshl_add_u32 v204, v{vG}, 4, v204'); a.e('v_add_u32 v204, s67, v204')
    a.e(f'v_lshlrev_b32 v205, 5, v{vI}'); a.e(f'v_lshlrev_b32 v14, 4, v{vG}'); a.e('v_sub_u32 v205, v14, v205')
    a.e('s_add_u32 s49, s63, 480'); a.e('v_add_u32 v205, s49, v205')
    a.e(f'v_add_u32 v170, s67, v{vL16}')
    a.e('s_waitcnt lgkmcnt(0)')
    a.lg = []
    nonce(M)
    a.e('s_and_b32 s49, s66, 1'); a.e('s_lshl_b32 s49, s49, 4'); a.e('s_lshr_b32 s64, s64, s49'); a.e('s_and_b32 s64, s64, 0xffff')
    a.e(f'v_sub_u32 v176, 15, v{vI}'); a.e('v_lshrrev_b32 v177, 3, v176'); a.e('v_and_b32 v176, 7, v176')
    a.e('v_and_b32 v178, 1, v176'); a.e('v_lshlrev_b32 v178, 4, v178'); a.e('v_lshlrev_b32 v178, v178, s64')
    a.e('v_lshrrev_b32 v176, 1, v176'); a.e('v_mov_b32 v179, 64')
    a.e(f'v_cmp_eq_u32 vcc, v177, v{vG}'); a.e('v_cndmask_b32 v176, v179, v176, vcc')
    for q in range(4):
        a.e(f'v_cmp_eq_u32 vcc, {q}, v176'); a.e(f'v_cndmask_b32 v{200+q}, 0, v178, vcc')
    a.e(f'v_lshrrev_b32 v14, 1, v{vL}'); a.e(f'v_mul_u32_u24 v14, {CPY}, v14')
    a.e(f'v_and_b32 v15, 1, v{vL}'); a.e('v_lshl_add_u32 v14, v15, 4, v14'); a.e('v_add_u32 v207, s67, v14')
    a.e('v_lshrrev_b32 v14, 3, v0'); a.e('v_and_b32 v15, 7, v0')
    a.e(f'v_lshlrev_b32 v206, 4, v0'); a.e(f'v_add_u32 v206, {hex(ST0_OFF)}, v206')
    a.e('v_mul_u32_u24 v199, 20480, v14'); a.e('v_lshl_add_u32 v199, v15, 4, v199')
    a.e('s_lshl_b32 s49, s65, 7'); a.e('v_add_u32 v199, s49, v199')
    a.wait_vm('A1')
    a.e('s_barrier')
    M.stamp('c2_Alanded')
    a.e('v_add_u32 v9, 65536, v9'); a.e('v_add_u32 v10, 65536, v10')
    A_reads(M, 8, 24, 99328 - 65536, 'Ar'); a.wait_lg('Ar')
    A_compute(M, 8, 24, 56)
    M.set_flag(sID, F1, 14, 'Ast')
    M.stamp('c3_F1set')
    B_dma(M, 120832, vt=16)
    M.srd(SC, pSK, SZ)
    KRAW = 141312
    a.e(f's_mul_i32 s62, s{sW}, 4224'); a.e(f's_add_u32 s62, s62, {KRAW}'); a.e('s_mov_b32 m0, s62'); a.e('s_nop 0')
    for p in range(4):
        a.e(f'buffer_load_dwordx4 v5, s[{SC}:{SC+3}], 0 offen offset:{1024*p} lds', 'k')
    B_addr(M, 120832)
    a.e(f'v_add_u32 v17, s62, v{vL16}')
    a.wait_vm('B'); a.e('s_barrier')
    B_finish(M, 120832)
    DE = 128; F = 152
    a.wait_vm('k')
    for p in range(4):
        a.e(f'ds_read_b128 v[{DE+6*p}:{DE+6*p+3}], v17 offset:{1024*p}', f'k{p}')
        a.e(f'ds_read_b64 v[{DE+6*p+4}:{DE+6*p+5}], v17 offset:{1024*p+16}', f'k{p}')
    O1 = 180
    for p in range(4):
        a.wait_lg(f'k{p}')
        d = DE + 6 * p; f = F + 4 * p
        if p == 0:
            a.e(f'v_readfirstlane_b32 s50, v{d}'); a.e(f'v_readfirstlane_b32 s51, v{d+1}')
        o1 = O1 + 8 * (p & 1); o3 = o1 + 4
        a.e(f'ds_write_b128 v170, v[{d}:{d+3}] offset:{32+1024*p}', 'cp')
        for j in range(4): a.e(f'v_mov_b32 v{f+j}, v{d+1+j}')
        for j in range(4): a.e(f'v_alignbit_b32 v{o1+j}, v{d+1+j}, v{d+j}, 16')
        for j in range(4): a.e(f'v_alignbit_b32 v{o3+j}, v{d+2+j}, v{d+1+j}, 16')
        a.e(f'ds_write_b128 v170, v[{f}:{f+3}] offset:{2*CPY+32+1024*p}', 'cp')
        a.e(f'ds_write_b128 v170, v[{o1}:{o1+3}] offset:{CPY+32+1024*p}', 'cp')
        a.e(f'ds_write_b128 v170, v[{o3}:{o3+3}] offset:{3*CPY+32+1024*p}', 'cp')
    a.e('s_lshl_b32 s52, s50, 16'); a.e('s_lshr_b32 s53, s50, 16'); a.e('s_lshl_b32 s54, s51, 16'); a.e('s_or_b32 s53, s53, s54')
    a.e('v_mov_b32 v13, v199')
    for j in range(4): a.e(f'v_mov_b32 v{196+j}, 0')
    a.e('v_writelane_b32 v198, s52, 7')
    a.e('v_writelane_b32 v199, s52, 3'); a.e('v_writelane_b32 v199, s50, 5'); a.e('v_writelane_b32 v199, s53, 7')
    a.e('s_mov_b64 exec, 0xff'); a.e('ds_write_b128 v207, v[196:199]', 'cp'); a.e('s_mov_b64 exec, -1')
    a.e('s_lshr_b32 s58, s65, 4'); a.e('s_lshl_b32 s58, s58, 5')
    a.wait_vm('Bst')
    M.stamp('c3b_copies')
    M.poll(58, F1, 32, 16)
    M.stamp('c4_F1polled')
    a.e('s_mov_b32 m0, s63'); a.e(f's_mov_b32 s49, {hex(R_OFF)}')
    for p in range(4):
        a.e(f'buffer_load_dwordx4 v5, s[{WS}:{WS+3}], s49 offen offset:{1024*p} sc1 lds', 'R')
    Lnb = M.lab('NOFB')
    a.e(f's_cmp_ge_u32 s{sID}, {NB}'); a.e(f's_cbranch_scc1 {Lnb}')
    M.write_flag(sID, FB, 14)
    a.label(Lnb)
    a.wait_vm('R')
    a.e('s_waitcnt lgkmcnt(0)')
    M.stamp('c5_Rlanded')
    ACC = 16; BUF = [64, 128]
    def loads(rho):
        b = BUF[rho & 1]; L = []
        L.append([f'ds_read_b64 v[{b}:{b+1}], v204 offset:{64*rho}', f'ds_read_b64 v[{b+2}:{b+3}], v204 offset:{64*rho+8}'])
        for z in range(8): L.append([f'ds_read_b128 v[{b+32+4*z}:{b+35+4*z}], v205 offset:{64*rho+512*(7-z)}'])
        for q in range(1, 8):
            L.append([f'ds_read_b64 v[{b+4*q}:{b+4*q+1}], v204 offset:{64*rho+512*q}', f'ds_read_b64 v[{b+4*q+2}:{b+4*q+3}], v204 offset:{64*rho+512*q+8}'])
        return [x for l in L for x in l]
    def fix(s): return s
    for ins in loads(0): a.e(fix(ins))
    a.e('s_waitcnt lgkmcnt(0)')
    b = BUF[0]
    for i in range(8):
        a.e(f'v_mfma_f32_16x16x32_bf16 v[{ACC+4*i}:{ACC+4*i+3}], v[200:203], v[{b+32+4*i}:{b+35+4*i}], 0')
    XQ = 208
    for rho in range(8):
        b = BUF[rho & 1]
        nxt = [fix(x) for x in loads(rho + 1)] if rho < 7 else []
        mf = [(q, i) for q in range(8) for i in range(q, 8)]
        li = 0
        if rho == 3:
            nlB = M.poll_addr(None, FB, NB, 8)
            M.poll_issue(nlB, 8, tag='fb')
        if rho == 6:
            nlC = M.poll_addr(None, FC, NC, 240)
            M.poll_issue(nlC, 240, tag='fc')
        if rho == 5:
            Lok = M.lab('FBOK')
            a.wait_vm('fb')
            M.poll_check(nlB, 8, Lok)
            M.poll_loop(nlB, 8, Lok, sleep=8)
            a.label(Lok)
            for j in range(4):
                a.e(f's_mov_b32 s49, {hex(XQ0_OFF + 20480*32*j)}'); a.e(f's_mov_b32 s50, {4096*j}')
                a.e(f'buffer_load_dwordx4 v[{XQ+8*j}:{XQ+8*j+3}], v13, s[{WS}:{WS+3}], s49 offen sc1', 'xq')
                a.e(f'buffer_load_dwordx4 v[{XQ+8*j+4}:{XQ+8*j+7}], v206, s[{WS}:{WS+3}], s50 offen sc1', 'xq')
        for n, (q, i) in enumerate(mf):
            z = i - q
            a.e(f'v_mfma_f32_16x16x32_bf16 v[{ACC+4*i}:{ACC+4*i+3}], v[{b+4*q}:{b+4*q+3}], v[{b+32+4*z}:{b+35+4*z}], v[{ACC+4*i}:{ACC+4*i+3}]')
            if li < len(nxt) and n < 30:
                a.e(nxt[li]); li += 1
        if rho < 7: a.e('s_waitcnt lgkmcnt(0)')
    M.stamp('c6_mainend')
    P = 64
    for i in range(8):
        a.e(f'v_cvt_pk_bf16_f32 v{P+2*i}, v{ACC+4*i}, v{ACC+4*i+1}'); a.e(f'v_cvt_pk_bf16_f32 v{P+2*i+1}, v{ACC+4*i+2}, v{ACC+4*i+3}')
    a.e(f'v_mul_u32_u24 v8, 144, v{vG}'); a.e(f'v_lshl_add_u32 v8, v{vI}, 3, v8'); a.e('v_add_u32 v8, s67, v8')
    for i in range(8): a.e(f'ds_write_b64 v8, v[{P+2*i}:{P+2*i+1}] offset:{576*i}', 'yw')
    a.e('v_lshrrev_b32 v9, 7, v0'); a.e('v_mul_u32_u24 v9, 576, v9')
    a.e('v_bfe_u32 v10, v0, 1, 2'); a.e('v_mul_u32_u24 v10, 144, v10'); a.e('v_add_u32 v9, v9, v10')
    a.e('v_bfe_u32 v10, v0, 3, 4'); a.e('v_lshl_add_u32 v9, v10, 3, v9')
    a.e('v_and_b32 v10, 1, v0'); a.e('v_lshl_add_u32 v9, v10, 2, v9')
    a.e(f'v_add_u32 v10, {2*WSZ}, v9')
    a.e('s_waitcnt lgkmcnt(0)')
    a.e('s_barrier')
    YR = 96
    for j in range(4):
        for c in range(4):
            a.e(f'ds_read_b32 v{YR+4*j+c}, v{9 + (c>>1)} offset:{(c&1)*WSZ + 1152*j}', f'yr{j}')
    a.e('s_mov_b32 s52, 0xffff0000'); a.e('s_mov_b32 s53, 0x05040100'); a.e('s_mov_b32 s54, 0x07060302')
    a.wait_vm('xq')
    M.stamp('c7_epi_rd')
    for j in range(4):
        a.wait_lg(f'yr{j}')
        x = XQ + 8 * j; y = YR + 4 * j; t = 128 + 32 * (j & 1)
        for c in range(4):
            a.e(f'v_lshlrev_b32 v{t+c}, 16, v{y+c}'); a.e(f'v_and_b32 v{t+4+c}, s52, v{y+c}')
        a.e(f'v_perm_b32 v{t+24}, v{y+1}, v{y}, s53'); a.e(f'v_perm_b32 v{t+25}, v{y+3}, v{y+2}, s53')
        a.e(f'v_perm_b32 v{t+26}, v{y+1}, v{y}, s54'); a.e(f'v_perm_b32 v{t+27}, v{y+3}, v{y+2}, s54')
        for k in range(2):
            xx = t + 8; nn = t + 12; st = x + 4 + 2 * k
            for h in range(2):
                a.e(f'v_lshlrev_b32 v{xx+2*h}, 16, v{x+2*k+h}'); a.e(f'v_and_b32 v{xx+2*h+1}, s52, v{x+2*k+h}')
            for h in range(2):
                a.e(f'v_pk_add_f32 v[{nn+2*h}:{nn+2*h+1}], v[{xx+2*h}:{xx+2*h+1}], v[{st}:{st+1}] op_sel_hi:[1,0]')
                a.e(f'v_pk_mul_f32 v[{t+4*k+2*h}:{t+4*k+2*h+1}], v[{t+4*k+2*h}:{t+4*k+2*h+1}], v[{st}:{st+1}] op_sel:[0,1] op_sel_hi:[1,1]')
            for h in range(2):
                a.e(f'v_pk_fma_f32 v[{xx+2*h}:{xx+2*h+1}], v[{nn+2*h}:{nn+2*h+1}], v[{t+4*k+2*h}:{t+4*k+2*h+1}], v[{xx+2*h}:{xx+2*h+1}]')
            a.e(f'v_cvt_pk_bf16_f32 v{t+16+2*k}, v{xx}, v{xx+1}'); a.e(f'v_cvt_pk_bf16_f32 v{t+17+2*k}, v{xx+2}, v{xx+3}')
        a.e(f's_mov_b32 s49, {hex(X1_OFF + 20480*32*j)}'); a.e(f's_mov_b32 s50, {hex(Y_OFF + 20480*32*j)}')
        a.e(f'buffer_store_dwordx4 v[{t+16}:{t+19}], v13, s[{WS}:{WS+3}], s49 offen sc1')
        a.e(f'buffer_store_dwordx4 v[{t+24}:{t+27}], v13, s[{WS}:{WS+3}], s50 offen sc1')
    M.stamp('c8_stores')
    M.set_flag(sID, F2, 8)
    M.stamp('c9_F2set')
    Lok = M.lab('FCOK')
    M.poll_check(nlC, 240, Lok)
    M.poll_loop(nlC, 240, Lok, sleep=8)
    a.label(Lok)
    a.reset_counts()
```

```python
from mcommon import *
CSC = '' if 'plainC' in EXPL else ' sc1'

AK = 0; AV = 12288; ASZ = 20480
def A_dma(M, s_tile, vb, lds, tag, void_sgpr=None):
    a = M.a
    a.e(f's_and_b32 s49, s{s_tile}, 31'); a.e('s_lshl_b32 s49, s49, 6')
    a.e(f's_lshr_b32 s50, s{s_tile}, 5'); a.e('s_lshl_b32 s51, s50, 7')
    a.e(f'v_lshrrev_b32 v{vb+1}, 3, v{vL}'); a.e(f'v_and_b32 v{vb+2}, 7, v{vL}')
    for m in range(3):
        a.e(f's_add_u32 s52, s{sW}, {4*m}'); a.e('s_and_b32 s53, s52, 7'); a.e('s_lshl_b32 s54, s52, 3')
        a.e(f'v_xor_b32 v{vb+3}, s53, v{vb+2}'); a.e(f'v_lshl_add_u32 v{vb+3}, v{vb+3}, 4, s51')
        a.e(f'v_add_u32 v{vb+4}, s54, v{vb+1}')
        a.e(f's_sub_u32 s55, s49, 3'); a.e(f'v_add_u32 v{vb+5}, s55, v{vb+4}')
        a.e(f'v_mad_i32_i24 v{vb+6+m}, v{vb+5}, v{vb+9}, v{vb+3}') if False else None
        a.e(f'v_mul_i32_i24 v{vb+6+m}, 1280, v{vb+5}'); a.e(f'v_add_u32 v{vb+6+m}, v{vb+6+m}, v{vb+3}')
        a.e(f'v_cmp_gt_u32 vcc, 67, v{vb+4}'); a.e(f'v_cmp_le_i32 s[56:57], 0, v{vb+5}'); a.e('s_and_b64 vcc, vcc, s[56:57]')
        if void_sgpr is not None: a.e(f's_and_b64 vcc, vcc, s[{void_sgpr}:{void_sgpr+1}]')
        a.e(f'v_mov_b32 v{vb+9}, {hex(OOB)}'); a.e(f'v_cndmask_b32 v{vb+6+m}, v{vb+9}, v{vb+6+m}, vcc')
        a.e('s_lshl_b32 s52, s52, 10'); a.e(f's_add_u32 m0, s52, {lds + AK}')
        a.e('s_nop 0')
        a.e(f'buffer_load_dwordx4 v{vb+6+m}, s[{SA}:{SA+3}], 0 offen lds', tag)
    for m in range(2):
        a.e(f's_add_u32 s52, s{sW}, {4*m}'); a.e('s_lshl_b32 s54, s52, 3')
        a.e(f'v_xor_b32 v{vb+3}, s52, v{vb+2}'); a.e(f'v_lshl_add_u32 v{vb+3}, v{vb+3}, 4, s51')
        a.e('s_add_u32 s54, s54, s49'); a.e(f'v_add_u32 v{vb+5}, s54, v{vb+1}')
        a.e(f'v_mul_u32_u24 v{vb+6+m}, 1280, v{vb+5}'); a.e(f'v_add_u32 v{vb+6+m}, v{vb+6+m}, v{vb+3}')
        if void_sgpr is not None: a.e(f'v_cndmask_b32 v{vb+6+m}, v{vb+9}, v{vb+6+m}, s[{void_sgpr}:{void_sgpr+1}]')
        a.e('s_lshl_b32 s52, s52, 10'); a.e(f's_add_u32 m0, s52, {lds + AV}')
        a.e('s_nop 0')
        a.e(f'buffer_load_dwordx4 v{vb+6+m}, s[{SB}:{SB+3}], 0 offen lds', tag)

def A_addr(M, s_tile, vb, d, lds, tag, void_sgpr=None):
    a = M.a
    a.e(f's_and_b32 s49, s{s_tile}, 31'); a.e('s_lshl_b32 s49, s49, 6'); a.e(f's_lshr_b32 s50, s{s_tile}, 5')
    a.e(f'v_and_b32 v{vb+3}, 7, v0'); a.e(f'v_lshrrev_b32 v{vb+4}, 3, v0')
    a.e('s_lshl_b32 s51, s50, 5'); a.e(f'v_add_u32 v{vb+5}, s51, v{vb+4}')
    a.e(f'v_lshlrev_b32 v{vb+6}, 4, v{vb+5}')
    if void_sgpr is not None:
        a.e(f'v_mov_b32 v{vb+7}, {hex(OOB)}'); a.e(f'v_cndmask_b32 v{vb+6}, v{vb+7}, v{vb+6}, s[{void_sgpr}:{void_sgpr+1}]')
    a.e(f'buffer_load_dwordx4 v[{d}:{d+3}], v{vb+6}, s[{SC}:{SC+3}], 0 offen', tag)
    a.e(f'v_lshl_add_u32 v{vb}, v{vb+3}, 3, s49'); a.e(f'v_lshlrev_b32 v{vb}, 1, v{vb}'); a.e(f'v_sub_u32 v{vb}, {4080 + R_OFF}, v{vb}')
    a.e(f'v_lshl_add_u32 v{vb}, v{vb+5}, 13, v{vb}')
    if void_sgpr is not None: a.e(f'v_cndmask_b32 v{vb}, v{vb+7}, v{vb}, s[{void_sgpr}:{void_sgpr+1}]')
    a.e(f'v_lshrrev_b32 v{vb+6}, 2, v{vb+4}'); a.e(f'v_and_b32 v{vb+4}, 3, v{vb+4}'); a.e(f'v_lshlrev_b32 v{vb+4}, 2, v{vb+4}')
    a.e(f'v_xor_b32 v{vb+1}, v{vb+6}, v{vb+3}'); a.e(f'v_lshl_add_u32 v{vb+1}, v{vb+1}, 4, v{vb+4}'); a.e(f'v_lshl_add_u32 v{vb+1}, v{vb+3}, 10, v{vb+1}')
    a.e(f'v_add_u32 v{vb+3}, 1, v{vb+3}'); a.e(f'v_and_b32 v{vb+5}, 7, v{vb+3}')
    a.e(f'v_xor_b32 v{vb+2}, v{vb+6}, v{vb+5}'); a.e(f'v_lshl_add_u32 v{vb+2}, v{vb+2}, 4, v{vb+4}'); a.e(f'v_lshl_add_u32 v{vb+2}, v{vb+3}, 10, v{vb+2}')

def A_reads(M, vb, d, lds, tag):
    a = M.a
    for j in range(11):
        if j < 8: a.e(f'ds_read_b32 v{d+4+j}, v{vb+1} offset:{lds + AK + 128*j}', tag)
        else: a.e(f'ds_read_b32 v{d+4+j}, v{vb+2} offset:{lds + AK + 128*(j-8)}', tag)
    for j in range(8): a.e(f'ds_read_b32 v{d+15+j}, v{vb+1} offset:{lds + AV + 128*j}', tag)

def A_compute(M, vb, d, t):
    a = M.a
    a.e('s_mov_b32 s49, 0xffff0000')
    SP = t; KP = t + 8; U = t + 30; O = t + 46
    a.e(f'v_lshlrev_b32 v{SP+0}, 16, v{d+0}'); a.e(f'v_lshlrev_b32 v{SP+1}, 16, v{d+2}')
    a.e(f'v_and_b32 v{SP+2}, s49, v{d+0}');    a.e(f'v_and_b32 v{SP+3}, s49, v{d+2}')
    a.e(f'v_lshlrev_b32 v{SP+4}, 16, v{d+1}'); a.e(f'v_lshlrev_b32 v{SP+5}, 16, v{d+3}')
    a.e(f'v_and_b32 v{SP+6}, s49, v{d+1}');    a.e(f'v_and_b32 v{SP+7}, s49, v{d+3}')
    for j in range(11):
        a.e(f'v_lshlrev_b32 v{KP+2*j}, 16, v{d+4+j}'); a.e(f'v_and_b32 v{KP+2*j+1}, s49, v{d+4+j}')
    for i in range(8):
        a.e(f'v_pk_mul_f32 v[{U+2*i}:{U+2*i+1}], v[{KP+2*(i+3)}:{KP+2*(i+3)+1}], v[{SP}:{SP+1}]')
    for m in range(1, 4):
        for i in range(8):
            a.e(f'v_pk_fma_f32 v[{U+2*i}:{U+2*i+1}], v[{KP+2*(i+3-m)}:{KP+2*(i+3-m)+1}], v[{SP+2*m}:{SP+2*m+1}], v[{U+2*i}:{U+2*i+1}]')
    for i in range(8):
        a.e(f'v_lshlrev_b32 v{KP+2*i}, 16, v{d+15+i}'); a.e(f'v_and_b32 v{KP+2*i+1}, s49, v{d+15+i}')
    for i in range(8):
        a.e(f'v_pk_mul_f32 v[{U+2*i}:{U+2*i+1}], v[{U+2*i}:{U+2*i+1}], v[{KP+2*i}:{KP+2*i+1}]')
    for c in range(2):
        for q in range(4):
            a.e(f'v_cvt_pk_bf16_f32 v{O+4*c+q}, v{U+2*(7-2*q)+c}, v{U+2*(6-2*q)+c}')
    a.e(f'v_add_u32 v{vb+3}, 4096, v{vb}')
    a.e(f'buffer_store_dwordx4 v[{O}:{O+3}], v{vb}, s[{WS}:{WS+3}], 0 offen sc1', 'Ast')
    a.e(f'buffer_store_dwordx4 v[{O+4}:{O+7}], v{vb+3}, s[{WS}:{WS+3}], 0 offen sc1', 'Ast')

def B_dma(M, RAW, vt=9):
    a = M.a
    M.srd(SA, pQ, SZ)
    a.e(f's_lshl_b32 s59, s{sW}, 10')
    a.e(f's_mul_i32 s61, s{sID}, 20480'); a.e(f's_cmp_ge_u32 s{sID}, 128'); a.e(f's_cselect_b32 s61, {hex(OOB)}, s61')
    a.e('s_add_u32 s61, s61, s59'); a.e(f'v_add_u32 v{vt}, s61, v{vL16}')
    for m in range(5):
        a.e(f's_add_u32 m0, s59, {RAW + 4096*m}'); a.e(f's_mov_b32 s49, {4096*m}')
        a.e(f'buffer_load_dwordx4 v{vt}, s[{SA}:{SA+3}], s49 offen lds', 'B')

def B_addr(M, RAW):
    a = M.a
    a.e('v_lshrrev_b32 v12, 4, v0'); a.e('v_mul_u32_u24 v10, 1280, v12'); a.e(f'v_lshl_add_u32 v10, v{vI}, 4, v10'); a.e(f'v_add_u32 v10, {RAW}, v10')
    a.e('v_and_b32 v11, 7, v0'); a.e('v_mul_u32_u24 v11, 2560, v11'); a.e('v_lshrrev_b32 v8, 3, v0'); a.e('v_lshl_add_u32 v11, v8, 3, v11'); a.e(f'v_add_u32 v11, {RAW}, v11')
    a.e(f's_mul_i32 s61, s{sID}, 20480'); a.e(f's_add_u32 s61, s61, {hex(XQ0_OFF)}'); a.e(f's_cmp_ge_u32 s{sID}, 128'); a.e(f's_cselect_b32 s61, {hex(OOB)}, s61')
    a.e('v_lshl_add_u32 v8, v0, 4, s61')
    a.e(f's_lshl_b32 s61, s{sID}, 7'); a.e(f's_add_u32 s61, s61, {hex(ST0_OFF)}'); a.e(f's_cmp_ge_u32 s{sID}, 128'); a.e(f's_cselect_b32 s61, {hex(OOB)}, s61')
    a.e('v_lshl_add_u32 v12, v12, 3, s61'); a.e(f'v_mov_b32 v19, {hex(OOB)}'); a.e(f'v_cmp_eq_u32 vcc, 0, v{vI}'); a.e('v_cndmask_b32 v12, v19, v12, vcc')

def B_finish(M, RAW, D=24, E=44):
    a = M.a
    a.e('s_mov_b32 s60, 0x3f803f80')
    for j in range(5): a.e(f'ds_read_b128 v[{D+4*j}:{D+4*j+3}], v10 offset:{256*j}', 'bs')
    for j in range(5):
        a.e(f'ds_read_b64 v[{E+4*j}:{E+4*j+1}], v11 offset:{256*j}', 'br'); a.e(f'ds_read_b64 v[{E+4*j+2}:{E+4*j+3}], v11 offset:{256*j+1280}', 'br')
    for j in range(4): a.e(f'v_mov_b32 v{20+j}, 0')
    a.wait_lg('bs')
    for j in range(10):
        a.e(f'v_dot2_f32_bf16 v20, v{D+2*j}, s60, v20'); a.e(f'v_dot2_f32_bf16 v21, v{D+2*j}, v{D+2*j}, v21')
        a.e(f'v_dot2_f32_bf16 v22, v{D+2*j+1}, s60, v22'); a.e(f'v_dot2_f32_bf16 v23, v{D+2*j+1}, v{D+2*j+1}, v23')
    a.wait_lg('br')
    for j in range(5):
        a.e(f's_mov_b32 s49, {4096*j}')
        a.e(f'buffer_store_dwordx4 v[{E+4*j}:{E+4*j+3}], v8, s[{WS}:{WS+3}], s49 offen sc1', 'Bst')
    a.e('v_add_f32 v20, v20, v22'); a.e('v_add_f32 v21, v21, v23')
    for n in (8, 4, 2, 1):
        a.e(f'v_add_f32_dpp v20, v20, v20 row_ror:{n} row_mask:0xf bank_mask:0xf'); a.e(f'v_add_f32_dpp v21, v21, v21 row_ror:{n} row_mask:0xf bank_mask:0xf')
    a.e(f'v_mul_f32 v20, {hex(f32(-1.0/640))}, v20')
    a.e(f'v_mov_b32 v22, {hex(f32(1e-5))}'); a.e(f'v_fmac_f32 v22, {hex(f32(1.0/640))}, v21'); a.e('v_fma_f32 v22, -v20, v20, v22'); a.e('v_rsq_f32 v21, v22')
    a.e(f'buffer_store_dwordx2 v[20:21], v12, s[{WS}:{WS+3}], 0 offen sc1', 'Bst')

def divc(a, dst, src, d):
    m = {5: (205, 10), 160: (52429, 23)}[d]
    a.e(f'v_mul_u32_u24 v{dst}, {m[0]}, v{src}'); a.e(f'v_lshrrev_b32 v{dst}, {m[1]}, v{dst}')

def C_role(M, count=True):
    a = M.a
    RAW = 40960
    Lwo = M.lab('CWO'); Lend = M.lab('CEND')
    t0, t1, t2, t3, t4 = 140, 141, 142, 143, 144
    a.e(f's_sub_u32 s49, s{sID}, 160'); a.e('s_lshl_b32 s49, s49, 2'); a.e(f's_add_u32 s49, s49, s{sW}')
    a.e('s_mul_i32 s51, s49, 9363'); a.e('s_lshr_b32 s51, s51, 16')
    a.e('s_mul_i32 s50, s51, 7'); a.e('s_sub_u32 s50, s49, s50'); a.e('s_mul_i32 s50, s50, 3')
    a.e('s_cmp_eq_u32 s50, 18'); a.e(f's_cselect_b32 s64, {hex(OOB)}, 0')
    a.e('s_cmp_ge_u32 s51, 30'); a.e(f's_cbranch_scc1 {Lwo}')
    M.srd(SC, pWQ, 640 * 3840)
    a.e(f'v_lshrrev_b32 v{t0}, 3, v{vL}'); a.e(f'v_and_b32 v{t1}, 3, v{t0}'); a.e(f'v_lshrrev_b32 v{t0}, 2, v{t0}'); a.e(f'v_lshl_add_u32 v{t1}, v{t0}, 4, v{t1}')
    a.e('s_lshl_b32 s52, s50, 5'); a.e(f'v_add_u32 v{t1}, s52, v{t1}'); a.e(f'v_mul_u32_u24 v{t1}, 3840, v{t1}')
    a.e(f'v_and_b32 v{t0}, 7, v{vL}'); a.e(f'v_lshl_add_u32 v{t1}, v{t0}, 4, v{t1}'); a.e('s_lshl_b32 s52, s51, 7'); a.e(f'v_add_u32 v145, s52, v{t1}')
    for g in range(4): a.e(f'v_add_u32 v{146+g}, {4*3840*g}, v145')
    a.e('s_lshl_b32 s52, s51, 4'); a.e(f'v_add_u32 v{t0}, s52, v{vI}')
    a.e('s_mul_i32 s52, s50, 7680'); a.e(f's_add_u32 s52, s52, {hex(CSP_OFF)}'); a.e(f'v_lshl_add_u32 v139, v{t0}, 4, s52')
    divc(a, t1, t0, 160)
    a.e(f'v_mul_u32_u24 v{t2}, 160, v{t1}'); a.e(f'v_sub_u32 v{t0}, v{t0}, v{t2}')
    divc(a, t2, t0, 5)
    a.e(f'v_mul_u32_u24 v{t3}, 5, v{t2}'); a.e(f'v_sub_u32 v{t0}, v{t0}, v{t3}')
    a.e(f'v_and_b32 v{t3}, 1, v{t2}'); a.e(f'v_lshrrev_b32 v{t2}, 1, v{t2}')
    a.e(f'v_lshlrev_b32 v{t4}, 1, v{t1}'); a.e(f'v_cmp_eq_u32 vcc, 2, v{t1}'); a.e(f'v_cndmask_b32 v{t4}, v{t4}, 5, vcc')
    a.e(f'v_add_u32 v{t4}, v{t4}, v{t3}')
    a.e(f'v_mov_b32 v138, 4'); a.e(f'v_cndmask_b32 v138, v138, 7, vcc')
    a.e(f'v_cmp_eq_u32 vcc, 1, v{t1}'); a.e(f'v_cndmask_b32 v{t1}, 0, 2, vcc'); a.e(f'v_add_u32 v{t1}, v{t1}, v{t3}')
    a.e(f'v_cmp_eq_u32 vcc, 4, v{t0}')
    a.e(f'v_cndmask_b32 v{t4}, v{t4}, v138, vcc'); a.e(f'v_cndmask_b32 v{t0}, v{t0}, v{t1}, vcc')
    a.e(f'v_mul_u32_u24 v{t2}, 163840, v{t2}'); a.e(f'v_lshl_add_u32 v{t2}, v{t4}, 10, v{t2}')
    a.e(f'v_lshl_add_u32 v{t2}, v{vG}, 8, v{t2}'); a.e(f'v_lshl_add_u32 v{t2}, v{t0}, 6, v{t2}')
    a.e('s_lshl_b32 s52, s50, 13'); a.e(f's_add_u32 s52, s52, {hex(WF1_OFF)}'); a.e(f'v_add_u32 v138, s52, v{t2}')
    a.e('s_mov_b32 s56, 8192'); a.e('s_mov_b32 s57, 7680')
    for p in range(3):
        for g in range(4):
            a.e(f'v_add_u32 v{152+4*p+g}, {32*3840*p}, v{146+g}')
    a.e(f's_branch {Lend}')
    a.label(Lwo)
    a.e('s_sub_u32 s51, s51, 30')
    M.srd(SC, pWO, 640 * 1280)
    a.e('s_lshl_b32 s52, s51, 4'); a.e(f'v_add_u32 v{t0}, s52, v{vI}')
    a.e(f'v_mul_u32_u24 v{t1}, 3277, v{t0}'); a.e(f'v_lshrrev_b32 v{t1}, 16, v{t1}')
    a.e(f'v_mul_u32_u24 v{t2}, 20, v{t1}'); a.e(f'v_sub_u32 v{t0}, v{t0}, v{t2}')
    a.e(f'v_mul_u32_u24 v{t1}, 102400, v{t1}'); a.e(f'v_lshrrev_b32 v{t2}, 2, v{t0}'); a.e(f'v_lshl_add_u32 v{t1}, v{t2}, 10, v{t1}')
    a.e(f'v_and_b32 v{t0}, 3, v{t0}'); a.e(f'v_lshl_add_u32 v{t1}, v{t0}, 6, v{t1}'); a.e(f'v_lshl_add_u32 v{t1}, v{vG}, 8, v{t1}')
    a.e('s_mul_i32 s52, s50, 5120'); a.e(f's_add_u32 s52, s52, {hex(WF2_OFF)}'); a.e(f'v_add_u32 v138, s52, v{t1}')
    a.e(f'v_mov_b32 v139, {hex(OOB)}')
    a.e('s_mov_b32 s56, 5120'); a.e('s_mov_b32 s57, 0')
    a.e(f'v_lshrrev_b32 v145, 3, v{vL}'); a.e(f'v_and_b32 v{t0}, 3, v145'); a.e('v_lshrrev_b32 v145, 2, v145')
    a.e('v_mul_u32_u24 v145, 20, v145'); a.e(f'v_add_u32 v145, v145, v{t0}'); a.e('v_mul_u32_u24 v145, 1280, v145')
    a.e(f'v_and_b32 v{t0}, 7, v{vL}'); a.e(f'v_lshl_add_u32 v145, v{t0}, 4, v145'); a.e('s_lshl_b32 s52, s51, 7'); a.e('v_add_u32 v145, s52, v145')
    for p in range(3):
        for g in range(4):
            a.e(f's_add_u32 s52, s50, {p}'); a.e('s_lshl_b32 s52, s52, 2'); a.e(f's_add_u32 s52, s52, {g}')
            a.e('s_mul_i32 s54, s52, 205'); a.e('s_lshr_b32 s54, s54, 10'); a.e('s_mul_i32 s55, s54, 20'); a.e('s_lshl_b32 s52, s52, 2'); a.e('s_add_u32 s52, s52, s55')
            a.e('s_mul_i32 s52, s52, 1280')
            a.e(f'v_add_u32 v{152+4*p+g}, s52, v145')
    a.label(Lend)
    for g in range(4): a.e(f'v_or_b32 v{160+g}, s64, v{160+g}')
    a.e(f's_cmp_ge_u32 s{sID}, {160 + NC}'); a.e(f's_cselect_b32 s52, {hex(OOB)}, 0')
    for j in range(12): a.e(f'v_or_b32 v{152+j}, s52, v{152+j}')
    a.e(f's_lshl_b32 s52, s{sW}, 14'); a.e(f's_add_u32 s52, s52, {RAW}')
    for p in range(3):
        for g in range(4):
            a.e(f's_add_u32 m0, s52, {4096*p + 1024*g}'); a.e('s_nop 0')
            a.e(f'buffer_load_dwordx4 v{152+4*p+g}, s[{SC}:{SC+3}], 0 offen lds', f'C{p}', count=count)
    a.e(f'v_mov_b32 v{t4}, {hex(OOB)}'); a.e(f'v_cmp_eq_u32 vcc, 0, v{vG}'); a.e(f'v_cndmask_b32 v139, v{t4}, v139, vcc')
    return RAW

def C_finish(M, RAW):
    a = M.a
    STG = 106496
    a.e('s_mov_b32 s54, 0x05040100'); a.e('s_mov_b32 s55, 0x07060302'); a.e('s_mov_b32 s60, 0x3f803f80')
    a.e(f's_mul_i32 s49, s{sW}, 5120'); a.e(f's_add_u32 s49, s49, {STG}')
    a.e(f'v_mul_u32_u24 v6, 80, v{vL}'); a.e('v_add_u32 v6, s49, v6')
    a.e(f'v_lshrrev_b32 v7, 2, v{vI}'); a.e(f'v_lshl_add_u32 v7, v{vG}, 4, v7'); a.e('v_lshlrev_b32 v5, 2, v7')
    a.e('v_mul_u32_u24 v7, 80, v7'); a.e(f'v_and_b32 v10, 3, v{vL}'); a.e('v_lshl_add_u32 v7, v10, 4, v7'); a.e('v_add_u32 v7, s49, v7')
    a.e(f's_lshl_b32 s49, s{sW}, 14'); a.e(f's_add_u32 s49, s49, {RAW}')
    a.e(f'v_lshlrev_b32 v11, 10, v{vG}'); a.e(f'v_lshl_add_u32 v11, v{vI}, 3, v11'); a.e('v_add_u32 v11, s49, v11')
    L = 48; O = 64; CS = O + 16; T = O + 20; DST = 88
    for j in range(4): a.e(f'ds_bpermute_b32 v{DST+j}, v5, v138 offset:{16*j}', 'Cb')
    a.e('s_waitcnt lgkmcnt(0)')
    for j in range(4): a.e(f'v_lshl_add_u32 v{DST+j}, v10, 4, v{DST+j}')
    a.e('s_mov_b32 s62, 0'); a.e('s_mov_b32 s59, 0')
    for p in range(3):
        if p == 2:
            a.e('s_or_b32 s62, s62, s64'); a.e('s_or_b32 s59, s59, s64')
        a.wait_vm(f'C{p}')
        M.stamp(f'h6_Cp{p}')
        for e in range(8): a.e(f'ds_read_b64 v[{L+2*e}:{L+2*e+1}], v11 offset:{4096*p + 128*e}', 'Cq')
        a.wait_lg('Cq')
        for cc in range(4):
            for jj in range(4):
                a.e(f'v_perm_b32 v{O+4*cc+jj}, v{L+2*(2*jj+1)+(cc>>1)}, v{L+2*(2*jj)+(cc>>1)}, s{54+(cc&1)}')
        for cc in range(4): a.e(f'ds_write_b128 v6, v[{O+4*cc}:{O+4*cc+3}] offset:{16*cc}', 'Cw')
        for cc in range(4): a.e(f'v_mov_b32 v{CS+cc}, 0')
        for jj in range(4):
            for cc in range(4): a.e(f'v_dot2_f32_bf16 v{CS+cc}, v{O+4*cc+jj}, s60, v{CS+cc}')
        a.e('s_waitcnt lgkmcnt(0)')
        R_ = 96
        for j in range(4): a.e(f'ds_read_b128 v[{R_+4*j}:{R_+4*j+3}], v7 offset:{320*j}', 'Cr')
        for sw in ('v_permlane16_swap_b32', 'v_permlane32_swap_b32'):
            for j in range(4): a.e(f'v_mov_b32 v{T+j}, v{CS+j}')
            for j in range(4): a.e(f'{sw} v{CS+j}, v{T+j}')
            for j in range(4): a.e(f'v_add_f32 v{CS+j}, v{CS+j}, v{T+j}')
        a.e(f'buffer_store_dwordx4 v[{CS}:{CS+3}], v139, s[{WS}:{WS+3}], s59 offen' + CSC, 'Cst')
        a.wait_lg('Cr')
        for j in range(4): a.e(f'buffer_store_dwordx4 v[{R_+4*j}:{R_+4*j+3}], v{DST+j}, s[{WS}:{WS+3}], s62 offen' + CSC, 'Cst')
        a.e('s_add_u32 s62, s62, s56'); a.e('s_add_u32 s59, s59, s57')
    a.e(f's_sub_u32 s58, s{sID}, 160')
    M.set_flag(58, FC, 130)

def nonce(M):
    a = M.a
    a.e(f's_mul_i32 s{sN}, s{sN}, 0x9E3779B1'); a.e(f's_add_u32 s{sN}, s{sN}, 0x7F4A7C15')
    L = M.lab('NOXID')
    a.e(f's_cmp_lg_u32 s{sW}, 0'); a.e(f's_cbranch_scc1 {L}')
    a.e('s_getreg_b32 s49, hwreg(HW_REG_XCC_ID, 0, 4)')
    a.e(f's_and_b32 s50, s{sID}, 7'); a.e('s_lshl_b32 s50, s50, 5'); a.e(f's_lshr_b32 s51, s{sID}, 3'); a.e('s_add_u32 s50, s50, s51')
    a.e('s_lshl_b32 s50, s50, 3'); a.e(f's_add_u32 s50, s50, {hex(XID_OFF)}')
    a.e('v_mov_b32 v250, s50'); a.e(f'v_mov_b32 v252, s{sN}'); a.e('v_mov_b32 v253, s49')
    a.e('s_mov_b64 exec, 1'); a.e(f'buffer_store_dwordx2 v[252:253], v250, s[{WS}:{WS+3}], 0 offen sc1', count=False); a.e('s_mov_b64 exec, -1')
    a.label(L)

def helper_path(M):
    a = M.a
    a.reset_counts()
    M.srd(SA, pK, SZ); M.srd(SB, pV, SZ); M.srd(SC, pSH, 640 * 8)
    A_dma(M, sID, 8, 0, 'A')
    a.e(f's_add_u32 s65, s{sID}, 96')
    a.e('s_cmp_lt_u32 s65, 320'); a.e('s_cselect_b64 s[66:67], -1, 0')
    A_dma(M, 65, 8, ASZ, 'A', void_sgpr=66)
    A_addr(M, sID, 8, 24, 0, 'A')
    A_addr(M, 65, 16, 48, ASZ, 'A', void_sgpr=66)
    M.stamp('h1_Aissued')
    a.e('s_waitcnt lgkmcnt(0)')
    nonce(M)
    a.wait_vm('A')
    a.e('s_barrier')
    A_reads(M, 8, 24, 0, 'Ar1'); a.wait_lg('Ar1')
    A_reads(M, 16, 48, ASZ, 'Ar2')
    A_compute(M, 8, 24, 72)
    a.wait_lg('Ar2')
    A_compute(M, 16, 48, 72)
    M.stamp('h2_Acomputed')
    M.set_flag(sID, F1, 130, 'Ast')
    Ln = M.lab('NOA2')
    a.e('s_cmp_ge_u32 s65, 320'); a.e(f's_cbranch_scc1 {Ln}')
    M.write_flag(65, F1, 130)
    a.label(Ln)
    M.stamp('h3_F1set')
    Le = M.lab('HELPEND')
    a.e(f's_cmp_ge_u32 s{sID}, {160 + NC}'); a.e(f's_cbranch_scc1 {Le}')
    a.reset_counts()
    raw = C_role(M)
    M.stamp('h4_Cissued')
    C_finish(M, raw)
    M.stamp('h9_FCset')
    a.label(Le)
    M.poll(None, FC, NC, 8, sleep=8)
    a.reset_counts()
```

```python
from mcommon import *
import math

SLOT = 8192; NS = 16; DEPTH = int(os.environ.get('DEPTH', '10'))
HALO = NS * SLOT
SCR = HALO + 20480
QKV = 102400
ROW = 272
SP_OFF = SCR
CS_OFF = SCR + 1024
vCS = 124
vX3 = 132
ACC = 16
ST = 88
XB = [160, 192]
HX = 144
WPRE = 10

def W_addr(M):
    a = M.a
    a.e(f's_mul_i32 s49, s{sHP}, 163840'); a.e(f's_lshl_b32 s50, s{sW}, 11'); a.e('s_add_u32 s49, s49, s50'); a.e(f's_add_u32 s49, s49, {hex(WF1_OFF)}')
    a.e(f'v_add_u32 v142, s49, v{vL16}'); a.e('v_add_u32 v143, 1024, v142')
    a.e(f's_cmp_eq_u32 s{sW}, 3'); a.e('s_cselect_b64 s[52:53], -1, 0'); a.e(f'v_cmp_le_u32 vcc, 8, v{vI}'); a.e('s_and_b64 vcc, vcc, s[52:53]')
    a.e(f'v_mov_b32 v11, {hex(OOB)}'); a.e('v_cndmask_b32 v143, v143, v11, vcc')

def W_load(M, ks, tag):
    a = M.a
    a.e(f's_mov_b32 s49, {8192*ks}')
    a.e(f'buffer_load_dwordx4 a[{8*ks}:{8*ks+3}], v142, s[{WS}:{WS+3}], s49 offen sc1', tag)
    a.e(f'buffer_load_dwordx4 a[{8*ks+4}:{8*ks+7}], v143, s[{WS}:{WS+3}], s49 offen sc1', tag)

def p3_pre(M):
    a = M.a
    W_addr(M)
    for ks in range(WPRE): W_load(M, ks, 'wpre')
    a.e('v_and_b32 v8, 127, v0'); a.e('v_lshrrev_b32 v9, 7, v0')
    a.e('v_lshrrev_b32 v10, 4, v8'); a.e('v_and_b32 v11, 15, v8')
    a.e('v_and_b32 v12, 1, v10'); a.e('v_cmp_le_u32 vcc, 5, v10'); a.e('v_xor_b32 v13, 1, v12'); a.e('v_cndmask_b32 v12, v12, v13, vcc')
    a.e('v_mov_b32 v13, 0'); a.e('v_cmp_le_u32 vcc, 2, v10'); a.e('v_mov_b32 v14, 640'); a.e('v_cndmask_b32 v13, v13, v14, vcc')
    a.e('v_cmp_le_u32 vcc, 5, v10'); a.e('v_mov_b32 v14, 1280'); a.e('v_cndmask_b32 v13, v13, v14, vcc')
    a.e('v_mul_u32_u24 v12, 20, v12'); a.e('v_add3_u32 v12, v12, v13, v11')
    a.e('v_lshrrev_b32 v13, 3, v11'); a.e('v_mul_u32_u24 v13, 640, v13'); a.e('v_bfe_u32 v14, v11, 2, 1'); a.e('v_mul_u32_u24 v14, 20, v14')
    a.e('v_and_b32 v15, 3, v11'); a.e('v_add3_u32 v13, v13, v14, v15'); a.e('v_add_u32 v13, 16, v13')
    a.e('v_cmp_eq_u32 vcc, 4, v10'); a.e('v_cndmask_b32 v12, v12, v13, vcc')
    a.e('v_lshrrev_b32 v13, 2, v11'); a.e('v_mul_u32_u24 v13, 20, v13'); a.e('v_add_u32 v13, v13, v15'); a.e('v_add_u32 v13, 1296, v13')
    a.e('v_cmp_eq_u32 vcc, 7, v10'); a.e('v_cndmask_b32 v12, v12, v13, vcc')
    a.e(f's_mul_i32 s49, s{sHP}, 40'); a.e('v_add_u32 v12, s49, v12')
    a.e('v_mul_u32_u24 v13, 76800, v9'); a.e('v_lshl_add_u32 v12, v12, 2, v13'); a.e(f'v_add_u32 v12, {hex(CSP_OFF)}, v12')
    a.e('v_cmp_le_u32 vcc, 120, v8'); a.e(f'v_mov_b32 v13, {hex(OOB)}'); a.e('v_cndmask_b32 v12, v12, v13, vcc')
    for j in range(10):
        a.e(f's_mov_b32 s49, {7680*j}')
        a.e(f'buffer_load_dword v{88+j}, v12, s[{WS}:{WS+3}], s49 offen sc1', 'csp')

class Fill:
    def __init__(self, a): self.a = a; self.q = []
    def add(self, *items): self.q.extend(items)
    def pop(self, n=1):
        for _ in range(n):
            if not self.q: return
            x = self.q.pop(0)
            if callable(x): x()
            elif isinstance(x, tuple): self.a.e(x[0], x[1])
            else: self.a.e(x)
    def flush(self):
        while self.q: self.pop()

def p3(M, layer):
    a = M.a
    XOFF = X1_OFF if layer == 1 else X3_OFF
    OOFF = O1_OFF if layer == 1 else O2_OFF
    SOFF = STAT_OFF[layer - 1]
    P = f'p{2*layer+1}'
    if layer == 2: a.reset_counts()
    a.e(f's_lshl_b32 s58, s{sRT}, 3')
    a.e(f's_lshl_b32 s49, s{sW}, 1'); a.e('s_add_u32 s49, s49, s58'); a.e('s_mul_i32 s59, s49, 20480')
    a.e(f's_add_u32 s49, s59, {hex(XOFF)}'); a.e(f'v_add_u32 v5, s49, v{vL16}')
    a.e(f'v_add_u32 v6, {20480 - 1024}, v5')
    a.e(f's_mul_i32 s50, s{sW}, 5120')
    if layer == 1:
        a.e('s_sub_u32 s49, s58, 1'); a.e('s_mul_i32 s49, s49, 20480'); a.e(f's_add_u32 s49, s49, {hex(XOFF)}')
    else:
        a.e(f's_mul_i32 s49, s{sRT}, 20480'); a.e(f's_add_u32 s49, s49, {hex(XH_OFF)}')
    a.e('s_add_u32 s49, s49, s50'); a.e(f's_cmp_eq_u32 s{sRT}, 0'); a.e(f's_cselect_b32 s49, {hex(OOB)}, s49'); a.e(f'v_add_u32 v7, s49, v{vL16}')
    a.e(f's_add_u32 s62, s50, {HALO}')
    a.e(f's_and_b32 s49, s{sHP}, 7'); a.e('s_add_u32 s60, s49, s58'); a.e('s_mul_i32 s49, s60, 20480')
    a.e('s_add_u32 s49, s49, s50'); a.e(f's_add_u32 s49, s49, {hex(XOFF)}'); a.e(f'v_add_u32 v8, s49, v{vL16}'); a.e('v_add_u32 v9, 4096, v8')
    a.e(f's_lshl_b32 s61, s{sW}, 11')
    if layer == 1:
        a.e(f'v_lshlrev_b32 v12, 7, v{vG}'); a.e(f'v_lshl_add_u32 v12, v{vI}, 3, v12')
    else:
        a.e(f'v_mov_b32 v12, v{vL16}')
    a.e(f'v_add_u32 v13, {8*SLOT}, v12')
    a.e(f'v_add_u32 v10, {HALO}, v12')
    if layer == 1:
        M.poll(None, F2, 160, 144)
    else:
        a.e(f's_lshl_b32 s54, s{sRT}, 4')
        M.poll(54, F4, 16, 144)
    M.stamp(P + 'a_polled')
    SX = 144
    for j in range(4): a.e(f'buffer_load_dwordx4 v[{SX+4*j}:{SX+4*j+3}], v8, s[{WS}:{WS+3}], 0 offen offset:{1024*j} sc1', 'sx')
    a.e(f'buffer_load_dwordx4 v[{SX+16}:{SX+19}], v9, s[{WS}:{WS+3}], 0 offen sc1', 'sx')
    def issue(ks):
        tag = f's{ks}'
        sl = (ks % NS) * SLOT
        a.e(f's_add_u32 m0, s61, {sl}'); a.e(f's_mov_b32 s49, {1024*ks}')
        a.e(f'buffer_load_dwordx4 v5, s[{WS}:{WS+3}], s49 offen sc1 lds', tag)
        a.e(f'buffer_load_dwordx4 v6, s[{WS}:{WS+3}], s49 offen offset:1024 sc1 lds', tag)
        if layer == 1 and ks >= WPRE: W_load(M, ks, tag)
    for ks in range(3): issue(ks)
    def reads(ks):
        b = XB[ks & 1]; sl = ks % NS; off = (sl % 8) * SLOT
        L = []
        for t in range(8):
            if layer == 1:
                base = 'v12' if sl < 8 else 'v13'
                L.append(f'ds_read_b64 a[{b+4*t}:{b+4*t+1}], {base} offset:{off+1024*t}')
                L.append(f'ds_read_b64 a[{b+4*t+2}:{b+4*t+3}], {base} offset:{off+1024*t+512}')
            else:
                base = 'v12' if sl < 8 else 'v13'
                L.append(f'ds_read_b128 a[{b+4*t}:{b+4*t+3}], {base} offset:{off+1024*t}')
        return L
    RPT = 2 if layer == 1 else 1
    def mfmas(ks):
        b = XB[ks & 1]; L = []
        for t in range(8):
            for f in range(2):
                d = ACC + 36 * f + 4 * (t + 1)
                c = '0' if ks == 0 else f'v[{d}:{d+3}]'
                L.append(f'v_mfma_f32_16x16x32_bf16 v[{d}:{d+3}], a[{8*ks+4*f}:{8*ks+4*f+3}], a[{b+4*t}:{b+4*t+3}], {c}')
        return L
    BC, BP, BA = 224, 228, 232
    a.e(f'v_lshlrev_b32 v180, 2, v{vG}'); a.e(f'v_sub_u32 v180, v{vI}, v180')
    a.e('v_mov_b32 v181, 0'); a.e(f'v_mov_b32 v182, {hex(f32(-1e30))}')
    for r in range(4):
        for (dst, add) in ((BC + r, -r), (BP + r, 16 - r)):
            a.e(f'v_add_u32 v183, {add}, v180'); a.e('v_and_b32 v183, 0xfffffff1, v183')
            a.e('v_cmp_eq_u32 vcc, 0, v183'); a.e(f'v_cndmask_b32 v{dst}, v182, v181, vcc')
    a.e(f's_or_b32 s49, s{sRT}, s{sW}'); a.e('s_cmp_eq_u32 s49, 0'); a.e('s_cselect_b64 s[52:53], -1, 0')
    for r in range(4): a.e(f'v_cndmask_b32 v{BA+r}, v{BP+r}, v182, s[52:53]')
    for ks in range(3, 6): issue(ks)
    a.e(f'v_mul_u32_u24 v180, {ROW}, v{vI}'); a.e(f's_lshl_b32 s49, s{sW}, 6'); a.e(f's_add_u32 s49, s49, {QKV}')
    a.e(f'v_lshl_add_u32 v242, v{vG}, 3, s49'); a.e('v_add_u32 v242, v242, v180')
    a.e(f's_mul_i32 s49, s{sW}, {32*ROW}'); a.e(f's_add_u32 s49, s49, {QKV}')
    a.e('v_add_u32 v236, s49, v180'); a.e(f'v_lshl_add_u32 v237, v{vG}, 3, v236')
    a.e(f'v_cmp_eq_u32 s[56:57], 0, v{vG}'); a.e('v_mov_b32 v238, 240'); a.e('v_mov_b32 v181, 128'); a.e('v_cndmask_b32 v238, v238, v181, s[56:57]'); a.e('v_add_u32 v238, v238, v236')
    a.e(f'v_lshrrev_b32 v239, 2, v{vI}'); a.e(f'v_lshl_add_u32 v239, v{vG}, 2, v239'); a.e(f'v_mul_u32_u24 v239, {ROW}, v239')
    a.e(f'v_and_b32 v181, 3, v{vL}'); a.e('v_lshl_add_u32 v239, v181, 3, v239'); a.e('v_add_u32 v239, s49, v239')
    a.e(f's_mul_i32 s49, s{sHP}, 1280'); a.e('s_add_u32 s49, s49, s59'); a.e(f's_add_u32 s49, s49, {hex(OOFF)}')
    a.e(f'v_lshlrev_b32 v181, 4, v{vI}'); a.e(f'v_lshl_add_u32 v240, v{vG}, 8, v181'); a.e('v_add_u32 v240, s49, v240')
    a.e('s_add_u32 s49, s49, 1024'); a.e('v_add_u32 v241, s49, v181')
    for ks in range(6, DEPTH): issue(ks)
    T = 164; REC = 168
    a.wait_vm('sx'); a.e('s_mov_b32 s55, 0x3f803f80')
    if layer == 1:
        for j in range(4): a.e(f'v_mov_b32 v{T+j}, 0')
        for j in range(5):
            d = SX + 4 * j
            for h in range(2):
                a.e(f'v_dot2_f32_bf16 v{T}, v{d+h}, s55, v{T}'); a.e(f'v_dot2_f32_bf16 v{T+1}, v{d+h}, v{d+h}, v{T+1}')
                a.e(f'v_dot2_f32_bf16 v{T+2}, v{d+2+h}, s55, v{T+2}'); a.e(f'v_dot2_f32_bf16 v{T+3}, v{d+2+h}, v{d+2+h}, v{T+3}')
        for j in range(4): a.e(f'v_add_f32_dpp v{T+j}, v{T+j}, v{T+j} row_ror:8 row_mask:0xf bank_mask:0xf')
        nred = 4
    else:
        for j in range(4): a.e(f'v_mov_b32 v{T+j}, 0')
        for j in range(5):
            d = SX + 4 * j
            for h in range(2):
                a.e(f'v_dot2_f32_bf16 v{T}, v{d+2*h}, s55, v{T}'); a.e(f'v_dot2_f32_bf16 v{T+1}, v{d+2*h}, v{d+2*h}, v{T+1}')
                a.e(f'v_dot2_f32_bf16 v{T+2}, v{d+2*h+1}, s55, v{T+2}'); a.e(f'v_dot2_f32_bf16 v{T+3}, v{d+2*h+1}, v{d+2*h+1}, v{T+3}')
        a.e(f'v_add_f32 v{T}, v{T}, v{T+2}'); a.e(f'v_add_f32 v{T+1}, v{T+1}, v{T+3}')
        nred = 2
    for sw in ('v_permlane16_swap_b32', 'v_permlane32_swap_b32'):
        for j in range(nred): a.e(f'v_mov_b32 v{T+4+j}, v{T+j}')
        for j in range(nred): a.e(f'{sw} v{T+j}, v{T+4+j}')
        for j in range(nred): a.e(f'v_add_f32 v{T+j}, v{T+j}, v{T+4+j}')
    if layer == 1:
        a.e(f's_lshl_b32 s55, s{sW}, 7'); a.e(f's_add_u32 s55, s55, {SP_OFF}'); a.e(f'v_and_b32 v14, 7, v{vL}'); a.e('v_lshl_add_u32 v15, v14, 4, s55')
        a.e('s_mov_b64 exec, 0xff'); a.e(f'ds_write_b128 v15, v[{T}:{T+3}]', 'spw'); a.e('s_mov_b64 exec, -1')
        a.wait_vm('csp')
        for j in range(1, 10): a.e(f'v_add_f32 v88, v88, v{88+j}')
        a.e('v_lshlrev_b32 v15, 2, v0'); a.e(f'v_add_u32 v15, {CS_OFF}, v15'); a.e('ds_write_b32 v15, v88', 'spw')
    else:
        a.e(f's_lshl_b32 s55, s{sW}, 7'); a.e(f's_add_u32 s55, s55, {SP_OFF}'); a.e(f'v_lshl_add_u32 v15, v{vI}, 3, s55')
        a.e('s_mov_b64 exec, 0xffff'); a.e(f'ds_write_b64 v15, v[{T}:{T+1}]', 'spw'); a.e('s_mov_b64 exec, -1')
    a.e('s_waitcnt lgkmcnt(0)')
    a.wait_vm('s0'); a.e('s_barrier')
    M.stamp(P + 'b_firstbar')
    if layer == 1:
        a.e(f'v_lshlrev_b32 v15, 4, v14'); a.e(f'v_add_u32 v15, {SP_OFF}, v15')
        for w in range(4): a.e(f'ds_read_b128 v[{SX+4*w}:{SX+4*w+3}], v15 offset:{128*w}', 'spr')
        a.e(f's_lshl_b32 s55, s{sW}, 7'); a.e(f's_add_u32 s55, s55, {CS_OFF}'); a.e(f'v_lshl_add_u32 v11, v{vG}, 4, s55')
        a.e('ds_read_b128 v[88:91], v11', 'spr'); a.e('ds_read_b128 v[92:95], v11 offset:64', 'spr')
        a.e('ds_read_b128 v[96:99], v11 offset:512', 'spr'); a.e('ds_read_b128 v[100:103], v11 offset:576', 'spr')
    else:
        a.e(f'v_lshlrev_b32 v15, 3, v{vI}'); a.e(f'v_add_u32 v15, {SP_OFF}, v15')
        for w in range(4): a.e(f'ds_read_b64 v[{SX+2*w}:{SX+2*w+1}], v15 offset:{128*w}', 'spr')
    for ins in reads(0): a.e(ins, 'r0')
    a.wait_lg('spr')
    a.e(f'v_mov_b32 v176, {hex(f32(1e-5))}'); a.e(f's_mov_b32 s55, {hex(f32(1.0/640))}'); a.e(f's_mov_b32 s56, {hex(f32(-1.0/640))}')
    if layer == 1:
        for j in range(8): a.e(f'v_add_f32 v{vCS+j}, v{88+j}, v{96+j}')
        for j in range(4): a.e(f'v_add_f32 v{SX+j}, v{SX+j}, v{SX+4+j}'); a.e(f'v_add_f32 v{SX+8+j}, v{SX+8+j}, v{SX+12+j}')
        for j in range(4): a.e(f'v_add_f32 v{SX+j}, v{SX+j}, v{SX+8+j}')
        recs = [(REC, SX, SX + 1), (REC + 4, SX + 2, SX + 3)]
    else:
        for j in range(2): a.e(f'v_add_f32 v{SX+j}, v{SX+j}, v{SX+2+j}'); a.e(f'v_add_f32 v{SX+4+j}, v{SX+4+j}, v{SX+6+j}')
        for j in range(2): a.e(f'v_add_f32 v{SX+j}, v{SX+j}, v{SX+4+j}')
        recs = [(REC, SX, SX + 1)]
    for r, su, sq in recs:
        a.e(f'v_mul_f32 v{r}, s56, v{su}'); a.e(f'v_fma_f32 v{r+1}, v{sq}, s55, v176'); a.e(f'v_fma_f32 v{r+1}, -v{r}, v{r}, v{r+1}')
        a.e(f'v_rsq_f32 v{r+1}, v{r+1}'); a.e(f'v_mov_b32 v{r+2}, s{sN}'); a.e(f'v_mov_b32 v{r+3}, 0')
    a.e('s_lshl_b32 s55, s60, 8'); a.e(f's_add_u32 s55, s55, {hex(SOFF)}')
    if layer == 1:
        a.e('v_lshl_add_u32 v15, v14, 5, s55'); a.e(f's_cmp_eq_u32 s{sW}, 0'); a.e('s_cselect_b64 s[56:57], 0xff, 0')
    else:
        a.e(f'v_lshl_add_u32 v15, v{vI}, 4, s55'); a.e(f's_cmp_eq_u32 s{sW}, 0'); a.e('s_cselect_b64 s[56:57], 0xffff, 0')
    a.e(f'v_mov_b32 v14, {hex(OOB)}'); a.e('v_cndmask_b32 v15, v14, v15, s[56:57]')
    a.e(f'buffer_store_dwordx4 v[{REC}:{REC+3}], v15, s[{WS}:{WS+3}], 0 offen sc1', 'stw')
    if layer == 1: a.e(f'buffer_store_dwordx4 v[{REC+4}:{REC+7}], v15, s[{WS}:{WS+3}], 0 offen offset:16 sc1', 'stw')
    F = Fill(a)
    def halo_dma():
        for j in range(5):
            F.add(lambda j=j: (a.e(f's_add_u32 m0, s62, {1024*j}'), a.e(f's_mov_b32 s55, {1024*j}'),
                               a.e(f'buffer_load_dwordx4 v7, s[{WS}:{WS+3}], s55 offen sc1 lds', 'halo')))
    def stat_addr():
        F.add('s_sub_u32 s55, s58, 1', 's_lshl_b32 s55, s55, 8', f's_add_u32 s55, s55, {hex(SOFF)}', f'v_lshl_add_u32 v11, v{vI}, 4, s55',
              'v_add_u32 v14, 256, v11', f's_cmp_eq_u32 s{sRT}, 0', 's_cselect_b64 s[56:57], -1, 0', 'v_cndmask_b32 v15, v11, v14, s[56:57]')
        for t in range(9):
            F.add((f'buffer_load_dwordx3 v[{ST+4*t}:{ST+4*t+2}], {"v15" if t == 0 else "v11"}, s[{WS}:{WS+3}], 0 offen' + ('' if t == 0 else f' offset:{256*t}') + ' sc1', 'st'))
    def halo_reads():
        for ks in range(20):
            if layer == 1:
                F.add((f'ds_read_b64 v[{HX+4*ks}:{HX+4*ks+1}], v10 offset:{1024*ks}', 'hr'), (f'ds_read_b64 v[{HX+4*ks+2}:{HX+4*ks+3}], v10 offset:{1024*ks+512}', 'hr'))
            else:
                F.add((f'ds_read_b128 v[{HX+4*ks}:{HX+4*ks+3}], v10 offset:{1024*ks}', 'hr'))
    def xid_load():
        a_ = f'v{PXA}'
        F.add(f's_and_b32 s55, s{sID}, 7', 's_lshl_b32 s55, s55, 8', f's_add_u32 s55, s55, {hex(XID_OFF)}', f'v_and_b32 v{PXA}, 31, v{vL}',
              f'v_lshl_add_u32 v{PXA}, v{PXA}, 3, s55', (f'buffer_load_dwordx2 v[{PXA+2}:{PXA+3}], v{PXA}, s[{WS}:{WS+3}], 0 offen sc1', 'xid'))
    def xid_eval():
        F.add(lambda: a.wait_vm('xid'), 's_getreg_b32 s55, hwreg(HW_REG_XCC_ID, 0, 4)', f'v_cmp_ne_u32 vcc, s{sN}, v{PXA+2}', f'v_cmp_ne_u32 s[56:57], s55, v{PXA+3}',
              's_or_b64 vcc, vcc, s[56:57]', 's_cmp_eq_u64 vcc, 0', f's_cselect_b32 s{sLOC}, 1, 0')
    PXA = 244
    hpoll = {}
    def hflag_issue():
        F.add(f's_lshl_b32 s54, s{sRT}, 3')
        def f():
            hpoll['nl'] = M.poll_addr(54, F4H, 8, 248); M.poll_issue(1, 248, tag='hf')
        F.add(f)
    def hflag_check():
        def f():
            Lok = M.lab('HFOK')
            a.wait_vm('hf')
            a.e(f's_cmp_eq_u32 s{sRT}, 0'); a.e(f's_cbranch_scc1 {Lok}')
            M.poll_check(1, 248, Lok)
            M.poll_loop(1, 248, Lok, sleep=4)
            a.label(Lok)
        F.add(f)
    M.stamp(P + 'c_mainstart')
    for ks in range(20):
        mf = mfmas(ks)
        rd = reads(ks + 1) if ks < 19 else []
        if ks == 0:
            if layer == 2: hflag_issue()
            else: xid_load()
        if ks == 3:
            if layer == 2: hflag_check()
            halo_dma()
        if ks == 6 and layer == 1: xid_eval()
        if ks == 8: stat_addr()
        if ks == (10 if layer == 1 else 13): halo_reads()
        ri = 0
        for n, ins in enumerate(mf):
            if n % 8 == 0:
                need = [f'r{ks}_{t}' for t in range(n // 2, n // 2 + 4)] if ks > 0 else ['r0']
                a.wait_lg(need)
            a.e(ins)
            if n == 3:
                if ks < 19:
                    a.wait_vm([f's{ks+1}'] + (['halo'] if ks == 9 else []))
                    a.e('s_barrier')
                if ks + DEPTH < 20: issue(ks + DEPTH)
            if n >= 4 and ri < len(rd):
                while ri < len(rd) and ri < ((n - 3) * len(rd) + 11) // 12:
                    a.e(rd[ri], f'r{ks+1}_{ri//RPT}'); ri += 1
            if n % 4 == 1 or (layer == 2 and n % 4 == 2): F.pop(1)
        assert ri == len(rd), (ks, ri)
    F.flush()
    a.wait_lg('hr')
    for ks in range(20):
        for f in range(2):
            d = ACC + 36 * f
            c = '0' if ks == 0 else f'v[{d}:{d+3}]'
            a.e(f'v_mfma_f32_16x16x32_bf16 v[{d}:{d+3}], a[{8*ks+4*f}:{8*ks+4*f+3}], v[{HX+4*ks}:{HX+4*ks+3}], {c}')
        if ks == 0:
            a.e('s_barrier')
            a.e(f's_mul_i32 s54, s{sC}, 102400'); a.e(f's_lshl_b32 s63, s{sW}, 10'); a.e('s_add_u32 s54, s54, s63'); a.e(f's_add_u32 s54, s54, {hex(WF2_OFF)}')
            a.e(f'v_add_u32 v9, s54, v{vL16}')
        if ks in (4, 10, 16):
            n = (ks - 4) // 6
            a.e(f's_mov_b32 s55, {4096*n}'); a.e('s_add_u32 m0, s55, s63')
            a.e(f'buffer_load_dwordx4 v9, s[{WS}:{WS+3}], s55 offen sc1 lds', 'wo')
    M.stamp(P + 'd_mainend')
    Lc = M.lab('STCHK'); Lok = M.lab('STOK')
    a.wait_vm('st')
    a.e('s_mov_b32 s54, 0x4000')
    a.label(Lc)
    a.e(f'v_cmp_ne_u32 vcc, s{sN}, v{ST+2}')
    for t in range(1, 9):
        a.e(f'v_cmp_ne_u32 s[52:53], s{sN}, v{ST+4*t+2}'); a.e('s_or_b64 vcc, vcc, s[52:53]')
    a.e(f's_cbranch_vccz {Lok}')
    for t in range(9):
        if t == 0: a.e(f'buffer_load_dwordx3 v[{ST}:{ST+2}], v15, s[{WS}:{WS+3}], 0 offen sc1', count=False)
        else: a.e(f'buffer_load_dwordx3 v[{ST+4*t}:{ST+4*t+2}], v11, s[{WS}:{WS+3}], 0 offen offset:{256*t} sc1', count=False)
    a.e('s_waitcnt vmcnt(0)', count=False)
    a.e('s_sub_u32 s54, s54, 1'); a.e('s_cmp_lg_u32 s54, 0'); a.e(f's_cbranch_scc1 {Lc}')
    a.label(Lok)
    M.stamp(P + 'e_statsok')
    WO = Fill(a)
    for n in range(3, 25):
        WO.add(lambda n=n: (a.e(f's_mov_b32 s55, {4096*n}'), a.e('s_add_u32 m0, s55, s63'), a.e('s_nop 0'),
                            a.e(f'buffer_load_dwordx4 v9, s[{WS}:{WS+3}], s55 offen sc1 lds', 'wo')))
    PK = 144
    order = [1, 2, 3, 4, 5, 6, 7, 8, 0]
    for n_, t in enumerate(order):
        m = ST + 4 * t
        for f in range(2):
            d = ACC + 36 * f + 4 * t; cs = vCS + 4 * f; p = PK + 2 * ((2 * n_ + f) % 8)
            for h in range(2):
                a.e(f'v_pk_fma_f32 v[{d+2*h}:{d+2*h+1}], v[{cs+2*h}:{cs+2*h+1}], v[{m}:{m+1}], v[{d+2*h}:{d+2*h+1}] op_sel:[0,0,0] op_sel_hi:[1,0,1]')
            for h in range(2):
                a.e(f'v_pk_mul_f32 v[{d+2*h}:{d+2*h+1}], v[{d+2*h}:{d+2*h+1}], v[{m}:{m+1}] op_sel:[0,1] op_sel_hi:[1,1]')
            a.e(f'v_cvt_pk_bf16_f32 v{p}, v{d}, v{d+1}'); a.e(f'v_cvt_pk_bf16_f32 v{p+1}, v{d+2}, v{d+3}')
            a.e(f'ds_write_b64 v242, v[{p}:{p+1}] offset:{16*ROW*t + 32*f}')
            if (2 * n_ + f) % 2 == 0: WO.pop(1)
    a.e('s_waitcnt lgkmcnt(0)')
    a.e('s_barrier')
    M.stamp(P + 'f_qkvbar')
    KT = {(k, h): 164 + 8 * k + 4 * h for k in range(3) for h in range(2)}
    QT = {(t, h): 188 + 8 * t + 4 * h for t in range(2) for h in range(2)}
    VV = [204, 210, 216]
    R16 = 16 * ROW
    for k in range(3):
        for h in range(2):
            d = KT[(k, h)]
            a.e(f'ds_read_b64 v[{d}:{d+1}], v237 offset:{k*R16 + 64 + 32*h}', 'op'); a.e(f'ds_read_b64 v[{d+2}:{d+3}], v236 offset:{k*R16 + 144 + 8*h}', 'op')
    for t in range(2):
        for h in range(2):
            d = QT[(t, h)]
            a.e(f'ds_read_b64 v[{d}:{d+1}], v237 offset:{(t+1)*R16 + 32*h}', 'op'); a.e(f'ds_read_b64 v[{d+2}:{d+3}], v238 offset:{(t+1)*R16 + 8*h}', 'op')
    for k in range(3):
        for y, off in enumerate((160, 192, 224)):
            a.e(f'ds_read_b64_tr_b16 v[{VV[y]+2*k}:{VV[y]+2*k+1}], v239 offset:{k*R16 + off}', 'opv')
    a.wait_lg('op')
    tasks = [(0, 0), (0, 1), (1, 0), (1, 1)]
    for ti, (t, h) in enumerate(tasks):
        S = 16 + 8 * ti; q = QT[(t, h)]; bp = BA if t == 0 else BP
        a.e(f'v_mfma_f32_16x16x32_bf16 v[{S}:{S+3}], v[{KT[(t,h)]}:{KT[(t,h)]+3}], v[{q}:{q+3}], v[{bp}:{bp+3}]')
        a.e(f'v_mfma_f32_16x16x32_bf16 v[{S+4}:{S+7}], v[{KT[(t+1,h)]}:{KT[(t+1,h)]+3}], v[{q}:{q+3}], v[{BC}:{BC+3}]')
    Mx = 48
    for ti in range(4):
        S = 16 + 8 * ti; m = Mx + 4 * ti
        a.e(f'v_max3_f32 v{m}, v{S}, v{S+1}, v{S+2}'); a.e(f'v_max3_f32 v{m}, v{m}, v{S+3}, v{S+4}')
        a.e(f'v_max3_f32 v{m}, v{m}, v{S+5}, v{S+6}'); a.e(f'v_max_f32 v{m}, v{m}, v{S+7}')
        WO.pop(1)
    for sw in ('v_permlane16_swap_b32', 'v_permlane32_swap_b32'):
        for ti in range(4): a.e(f'v_mov_b32 v{Mx+4*ti+1}, v{Mx+4*ti}')
        for ti in range(4): a.e(f'{sw} v{Mx+4*ti}, v{Mx+4*ti+1}')
        for ti in range(4): a.e(f'v_max_f32 v{Mx+4*ti}, v{Mx+4*ti}, v{Mx+4*ti+1}')
    QS = (20 ** -0.5) * math.log2(math.e)
    a.e(f's_mov_b32 s50, {hex(f32(QS))}'); a.e(f'v_mov_b32 v64, s50')
    for ti in range(4): a.e(f'v_mul_f32 v{Mx+4*ti}, s50, v{Mx+4*ti}')
    for ti in range(4):
        S = 16 + 8 * ti; m = Mx + 4 * ti
        for j in range(4):
            a.e(f'v_pk_fma_f32 v[{S+2*j}:{S+2*j+1}], v[{S+2*j}:{S+2*j+1}], v[64:65], v[{m}:{m+1}] op_sel_hi:[1,0,0] neg_lo:[0,0,1] neg_hi:[0,0,1]')
    for ti in range(4):
        S = 16 + 8 * ti
        for j in range(8): a.e(f'v_exp_f32 v{S+j}, v{S+j}')
        WO.pop(1)
    PP = 68
    for ti in range(4):
        S = 16 + 8 * ti; m = Mx + 4 * ti
        for j in range(4): a.e(f'v_cvt_pk_bf16_f32 v{PP+4*ti+j}, v{S+2*j}, v{S+2*j+1}')
        a.e(f'v_pk_add_f32 v[{S}:{S+1}], v[{S}:{S+1}], v[{S+2}:{S+3}]'); a.e(f'v_pk_add_f32 v[{S+4}:{S+5}], v[{S+4}:{S+5}], v[{S+6}:{S+7}]')
        a.e(f'v_pk_add_f32 v[{S}:{S+1}], v[{S}:{S+1}], v[{S+4}:{S+5}]'); a.e(f'v_add_f32 v{m+2}, v{S}, v{S+1}')
        WO.pop(1)
    OO = 88
    a.wait_lg('opv')
    for ti, (t, h) in enumerate(tasks):
        a.e(f'v_mfma_f32_16x16x32_bf16 v[{OO+8*ti}:{OO+8*ti+3}], v[{VV[h]+2*t}:{VV[h]+2*t+3}], v[{PP+4*ti}:{PP+4*ti+3}], 0')
        a.e(f'v_mfma_f32_16x16x32_bf16 v[{OO+8*ti+4}:{OO+8*ti+7}], v[{VV[2]+2*t}:{VV[2]+2*t+3}], v[{PP+4*ti}:{PP+4*ti+3}], 0')
    for sw in ('v_permlane16_swap_b32', 'v_permlane32_swap_b32'):
        for ti in range(4): a.e(f'v_mov_b32 v{Mx+4*ti+3}, v{Mx+4*ti+2}')
        for ti in range(4): a.e(f'{sw} v{Mx+4*ti+2}, v{Mx+4*ti+3}')
        for ti in range(4): a.e(f'v_add_f32 v{Mx+4*ti+2}, v{Mx+4*ti+2}, v{Mx+4*ti+3}')
    for ti in range(4): a.e(f'v_rcp_f32 v{Mx+4*ti+2}, v{Mx+4*ti+2}')
    for ti in range(4):
        o = OO + 8 * ti; s = Mx + 4 * ti + 2
        for j in range(4):
            a.e(f'v_pk_mul_f32 v[{o+2*j}:{o+2*j+1}], v[{o+2*j}:{o+2*j+1}], v[{s}:{s+1}] op_sel_hi:[1,0]')
    for t in range(2):
        o0 = OO + 8 * (2 * t); o1 = OO + 8 * (2 * t + 1); d = 16 + 12 * t
        a.e(f'v_cvt_pk_bf16_f32 v{d}, v{o0}, v{o0+1}'); a.e(f'v_cvt_pk_bf16_f32 v{d+1}, v{o0+2}, v{o0+3}')
        a.e(f'v_cvt_pk_bf16_f32 v{d+2}, v{o1}, v{o1+1}'); a.e(f'v_cvt_pk_bf16_f32 v{d+3}, v{o1+2}, v{o1+3}')
        a.e(f'v_cvt_pk_bf16_f32 v{d+4}, v{o0+4}, v{o0+5}'); a.e(f'v_cvt_pk_bf16_f32 v{d+5}, v{o0+6}, v{o0+7}')
        a.e(f'v_cvt_pk_bf16_f32 v{d+8}, v{o1+4}, v{o1+5}'); a.e(f'v_cvt_pk_bf16_f32 v{d+9}, v{o1+6}, v{o1+7}')
        a.e(f'v_permlane16_swap_b32 v{d+8}, v{d+6}'); a.e(f'v_permlane16_swap_b32 v{d+9}, v{d+7}')
    WO.flush()
    M.stamp(P + 'g_attn')
    a.e('s_movk_i32 s55, 20480')
    M.stores([f'buffer_store_dwordx4 v[16:19], v240, s[{WS}:{WS+3}], 0 offen', f'buffer_store_dwordx4 v[28:31], v240, s[{WS}:{WS+3}], s55 offen'])
    a.e('s_mov_b64 exec, 0xffff')
    M.stores([f'buffer_store_dwordx4 v[20:23], v241, s[{WS}:{WS+3}], 0 offen', f'buffer_store_dwordx4 v[32:35], v241, s[{WS}:{WS+3}], s55 offen'])
    a.e('s_mov_b64 exec, -1')
    a.e(f's_lshl_b32 s58, s{sRT}, 4'); a.e(f's_add_u32 s58, s58, s{sHP}')
    M.set_flag_dual(58, F3 if layer == 1 else F5, 8)
    M.stamp(P + 'h_flag')
```

```python
from mcommon import *
from m_p3 import vX3

def p4(M, layer):
    a = M.a
    a.reset_counts()
    OOFF = O1_OFF if layer == 1 else O2_OFF
    a.e(f's_lshl_b32 s58, s{sR64}, 2'); a.e(f's_add_u32 s58, s58, s{sW}')
    a.e('s_mul_i32 s59, s58, 20480')
    a.e(f's_add_u32 s49, s59, {hex(OOFF)}'); a.e(f'v_add_u32 v6, s49, v{vL16}')
    a.e(f's_mul_i32 s49, s{sC}, 2560'); a.e('s_add_u32 s49, s49, s59')
    a.e(f'v_lshlrev_b32 v8, 7, v{vG}'); a.e(f'v_lshl_add_u32 v8, v{vI}, 3, v8'); a.e('v_add_u32 v8, s49, v8')
    XR = 16; YR = 26
    if layer == 1:
        a.e(f's_mov_b32 s49, {hex(X1_OFF)}'); a.e(f's_mov_b32 s50, {hex(Y_OFF)}')
        for ft in range(5): a.e(f'buffer_load_dwordx2 v[{XR+2*ft}:{XR+2*ft+1}], v8, s[{WS}:{WS+3}], s49 offen offset:{512*ft} sc1', 'res')
        for ft in range(5): a.e(f'buffer_load_dwordx2 v[{YR+2*ft}:{YR+2*ft+1}], v8, s[{WS}:{WS+3}], s50 offen offset:{512*ft} sc1', 'res')
    a.e(f'v_mov_b32 v10, v{vL16}'); a.e(f'v_add_u32 v11, 61440, v{vL16}')
    a.e(f's_lshr_b32 s54, s{sR64}, 1'); a.e('s_lshl_b32 s54, s54, 4')
    M.poll(54, F3 if layer == 1 else F5, 16, 144)
    P = f'p{2*layer+2}'
    M.stamp(P + 'a_polled')
    for j in range(5): a.e(f's_mov_b32 s{60+j}, {4096*j}')
    OA = 160
    def oload(ks):
        a.e(f'buffer_load_dwordx4 a[{OA+4*ks}:{OA+4*ks+3}], v6, s[{WS}:{WS+3}], s{60+(ks>>2)} offen offset:{1024*(ks&3)} sc1', f'o{ks}')
    for ks in range(8): oload(ks)
    WB = [144, 184]; ACC = 40
    def reads(st):
        b = WB[st & 1]; L = []
        for j in range(10):
            f = 10 * st + j
            base, off = ('v10', 1024 * f) if f < 60 else ('v11', 1024 * (f - 60))
            L.append(f'ds_read_b128 v[{b+4*j}:{b+4*j+3}], {base} offset:{off}')
        return L
    M.stamp(P + 'a_issued')
    for ins in reads(0): a.e(ins)
    for st in range(10):
        rd = reads(st + 1) if st < 9 else []
        a.e('s_waitcnt lgkmcnt(0)')
        a.wait_vm(f'o{2*st+1}')
        if st in (0, 1, 4, 8): M.stamp(P + f'a_o{st}')
        b = WB[st & 1]; j = 0
        for h in range(2):
            ks = 2 * st + h
            for ft in range(5):
                c = '0' if ks == 0 else f'v[{ACC+4*ft}:{ACC+4*ft+3}]'
                a.e(f'v_mfma_f32_16x16x32_bf16 v[{ACC+4*ft}:{ACC+4*ft+3}], v[{b+4*(5*h+ft)}:{b+4*(5*h+ft)+3}], a[{OA+4*ks}:{OA+4*ks+3}], {c}')
                if j < len(rd): a.e(rd[j]); j += 1
                if ft == 2 and ks + 8 < 20: oload(ks + 8)
    M.stamp(P + 'b_mainend')
    a.e('s_mov_b32 s52, 0xffff0000')
    X = 64
    src = XR if layer == 1 else vX3
    for ft in range(5):
        for h in range(2):
            a.e(f'v_lshlrev_b32 v{X+4*ft+2*h}, 16, v{src+2*ft+h}'); a.e(f'v_and_b32 v{X+4*ft+2*h+1}, s52, v{src+2*ft+h}')
    for j in range(10):
        a.e(f'v_pk_add_f32 v[{X+2*j}:{X+2*j+1}], v[{X+2*j}:{X+2*j+1}], v[{ACC+2*j}:{ACC+2*j+1}]')
    if layer == 2:
        for j in range(10): a.e(f'v_cvt_pk_bf16_f32 v{XR+j}, v{X+2*j}, v{X+2*j+1}')
        M.srd(SA, pOUT, SZ)
        a.e('s_lshl_b32 s49, s58, 4'); a.e(f'v_add_u32 v9, s49, v{vI}'); a.e('v_mul_u32_u24 v9, 1280, v9')
        a.e(f's_mul_i32 s49, s{sC}, 160'); a.e(f'v_lshl_add_u32 v9, v{vG}, 3, v9'); a.e('v_add_u32 v9, s49, v9')
        for ft in range(5):
            a.e(f'buffer_store_dwordx2 v[{XR+2*ft}:{XR+2*ft+1}], v9, s[{SA}:{SA+3}], 0 offen offset:{32*ft}')
        return
    T = 84
    a.e(f'v_pk_add_f32 v[{T}:{T+1}], v[{X}:{X+1}], v[{X+2}:{X+3}]'); a.e(f'v_pk_mul_f32 v[{T+2}:{T+3}], v[{X}:{X+1}], v[{X}:{X+1}]')
    for j in range(1, 10):
        if j > 1: a.e(f'v_pk_add_f32 v[{T}:{T+1}], v[{T}:{T+1}], v[{X+2*j}:{X+2*j+1}]')
        a.e(f'v_pk_fma_f32 v[{T+2}:{T+3}], v[{X+2*j}:{X+2*j+1}], v[{X+2*j}:{X+2*j+1}], v[{T+2}:{T+3}]')
    a.e(f'v_add_f32 v{T}, v{T}, v{T+1}'); a.e(f'v_add_f32 v{T+1}, v{T+2}, v{T+3}')
    def redg(r0, cnt, tmp):
        for sw in ('v_permlane16_swap_b32', 'v_permlane32_swap_b32'):
            for j in range(cnt): a.e(f'v_mov_b32 v{tmp+j}, v{r0+j}')
            for j in range(cnt): a.e(f'{sw} v{r0+j}, v{tmp+j}')
            for j in range(cnt): a.e(f'v_add_f32 v{r0+j}, v{r0+j}, v{tmp+j}')
    redg(T, 2, 120)
    a.e(f'v_mov_b32 v{T+2}, s{sN}'); a.e(f'v_mov_b32 v{T+3}, 0')
    a.e('s_lshl_b32 s53, s58, 11'); a.e(f's_add_u32 s53, s53, {hex(EX_OFF)}')
    a.e(f's_lshl_b32 s49, s{sC}, 8'); a.e('s_add_u32 s49, s49, s53'); a.e(f'v_lshl_add_u32 v9, v{vI}, 4, s49')
    a.e('s_mov_b64 exec, 0xffff')
    M.stores([f'buffer_store_dwordx4 v[{T}:{T+3}], v9, s[{WS}:{WS+3}], 0 offen'])
    a.e('s_mov_b64 exec, -1')
    Yf = 88
    for ft in range(5):
        for h in range(2):
            a.e(f'v_lshlrev_b32 v{Yf+4*ft+2*h}, 16, v{YR+2*ft+h}'); a.e(f'v_and_b32 v{Yf+4*ft+2*h+1}, s52, v{YR+2*ft+h}')
    a.e(f'v_lshlrev_b32 v9, 9, v{vG}'); a.e(f'v_lshl_add_u32 v9, v{vI}, 4, v9'); a.e('v_add_u32 v9, s53, v9')
    M.stamp(P + 'c_expub')
    Lp = M.lab('EXPOLL'); Lg = M.lab('EXGOT')
    a.e('s_mov_b32 s54, 0x8000')
    a.label(Lp)
    a.e(f'buffer_load_dwordx3 v[108:110], v9, s[{WS}:{WS+3}], 0 offen sc1'); a.e(f'buffer_load_dwordx3 v[112:114], v9, s[{WS}:{WS+3}], 0 offen offset:256 sc1')
    a.e('s_waitcnt vmcnt(0)')
    a.e(f'v_cmp_ne_u32 vcc, s{sN}, v110'); a.e(f'v_cmp_ne_u32 s[56:57], s{sN}, v114'); a.e('s_or_b64 vcc, vcc, s[56:57]')
    a.e(f's_cbranch_vccz {Lg}')
    a.e('s_sub_u32 s54, s54, 1'); a.e('s_cmp_lg_u32 s54, 0'); a.e(f's_cbranch_scc1 {Lp}')
    a.label(Lg)
    a.reset_counts()
    M.stamp(P + 'd_exgot')
    a.e(f'v_add_f32 v{T}, v108, v112'); a.e(f'v_add_f32 v{T+1}, v109, v113')
    redg(T, 2, 120)
    a.e(f'v_mul_f32 v{T}, {hex(f32(-1.0/640))}, v{T}')
    a.e(f'v_mov_b32 v{T+2}, {hex(f32(1e-5))}'); a.e(f'v_fmac_f32 v{T+2}, {hex(f32(1.0/640))}, v{T+1}')
    a.e(f'v_fma_f32 v{T+2}, -v{T}, v{T}, v{T+2}'); a.e(f'v_rsq_f32 v{T+2}, v{T+2}')
    for j in range(10): a.e(f'v_pk_add_f32 v[{ACC+2*j}:{ACC+2*j+1}], v[{X+2*j}:{X+2*j+1}], v[{T}:{T+1}] op_sel_hi:[1,0]')
    for j in range(10): a.e(f'v_pk_mul_f32 v[{Yf+2*j}:{Yf+2*j+1}], v[{Yf+2*j}:{Yf+2*j+1}], v[{T+2}:{T+3}] op_sel_hi:[1,0]')
    for j in range(10): a.e(f'v_pk_fma_f32 v[{X+2*j}:{X+2*j+1}], v[{ACC+2*j}:{ACC+2*j+1}], v[{Yf+2*j}:{Yf+2*j+1}], v[{X+2*j}:{X+2*j+1}]')
    for j in range(10): a.e(f'v_cvt_pk_bf16_f32 v{vX3+j}, v{X+2*j}, v{X+2*j+1}')
    a.e(f's_mul_i32 s54, s{sC}, 5'); a.e('s_lshr_b32 s54, s54, 1'); a.e('s_lshl_b32 s54, s54, 10'); a.e('s_add_u32 s54, s54, s59')
    a.e(f'v_add_u32 v9, s54, v{vL16}')
    def x3_stores(voff, soff, emit):
        Lo = M.lab('X3ODD'); Le = M.lab('X3END')
        a.e(f's_bitcmp1_b32 s{sC}, 0'); a.e(f's_cbranch_scc1 {Lo}')
        emit([f'buffer_store_dwordx4 v[{vX3}:{vX3+3}], {voff}, s[{WS}:{WS+3}], {soff} offen',
              f'buffer_store_dwordx4 v[{vX3+4}:{vX3+7}], {voff}, s[{WS}:{WS+3}], {soff} offen offset:1024',
              f'buffer_store_dwordx2 v[{vX3+8}:{vX3+9}], {voff}, s[{WS}:{WS+3}], {soff} offen offset:2048'], False)
        a.e(f's_branch {Le}')
        a.label(Lo)
        emit([f'buffer_store_dwordx2 v[{vX3}:{vX3+1}], {voff}, s[{WS}:{WS+3}], {soff} offen offset:8',
              f'buffer_store_dwordx4 v[{vX3+2}:{vX3+5}], {voff}, s[{WS}:{WS+3}], {soff} offen offset:1024',
              f'buffer_store_dwordx4 v[{vX3+6}:{vX3+9}], {voff}, s[{WS}:{WS+3}], {soff} offen offset:2048'], True)
        a.label(Le)
    a.e(f's_mov_b32 s55, {hex(X3_OFF)}')
    def emit_dual(L, last):
        saved = list(a.vm); M.stores(L)
        if not last: a.vm = saved
    x3_stores('v9', 's55', emit_dual)
    Lh = M.lab('NOHALO')
    a.e(f's_and_b32 s49, s58, 7'); a.e('s_cmp_lg_u32 s49, 7'); a.e(f's_cbranch_scc1 {Lh}')
    a.e('s_lshr_b32 s50, s58, 3'); a.e('s_add_u32 s50, s50, 1')
    a.e('s_mul_i32 s51, s50, 20480'); a.e(f's_add_u32 s51, s51, {hex(XH_OFF)}'); a.e('s_sub_u32 s51, s51, s59')
    def emit_sc1(L, last):
        for x in L: a.e(x + ' sc1', count=False)
    x3_stores('v9', 's51', emit_sc1)
    a.e('s_waitcnt vmcnt(0)', count=False)
    a.e('s_lshl_b32 s50, s50, 3'); a.e(f's_add_u32 s50, s50, s{sC}'); a.e('s_lshl_b32 s50, s50, 2'); a.e(f's_add_u32 s50, s50, {hex(FLG_OFF + 4*F4H)}')
    a.e('v_mov_b32 v9, s50'); a.e(f'v_mov_b32 v10, s{sN}')
    a.e('s_mov_b64 exec, 1'); a.e(f'buffer_store_dword v10, v9, s[{WS}:{WS+3}], 0 offen sc1', count=False); a.e('s_mov_b64 exec, -1')
    a.label(Lh)
    M.stamp(P + 'e_stores')
    a.e(f's_lshl_b32 s58, s{sR64}, 3'); a.e(f's_add_u32 s58, s58, s{sC}')
    M.set_flag_dual(58, F4, 8)
    M.stamp(P + 'f_flag')
```

```python
from asmgen import Asm
import os, struct
NAME = 'interleave_layers__ssm_conv_h3__sliding_local_dilated__prompt'
R_OFF    = 0x0000000
XQ2_OFF  = 0x0280000
WF1_OFF  = 0x0780000
WF2_OFF  = 0x0A00000
CSP_OFF  = 0x0B00000
FLG_OFF  = 0x0B40000
NONCE_OFF = FLG_OFF + 0xC000
STAT_OFF = [0x0B50000, 0x0B60000]
ST0_OFF  = 0x0B70000
XQ0_OFF  = XQ2_OFF
EX_OFF   = 0x0B80000
Y_OFF    = 0x0C00000
X1_OFF   = 0x0E80000
O1_OFF   = 0x1100000
X3_OFF   = 0x1380000
O2_OFF   = 0x1600000
XH_OFF   = 0x1880000
XID_OFF  = 0x0B78000
WS_END   = 0x1900000
SZ = 2048 * 640 * 2
OOB = 0x7ff00000
F1 = 0; F3 = 512; F4 = 768; F5 = 1024; F4H = 1280
NB = 128; NC = 70
RSTR = 512
FB = 0x1000; FC = FB + 128; F2 = FB + 256
REPL = (FB, FC, F2)
DIAG = bool(int(os.environ.get('DIAG', '0')))
DIAG_OFF = 0x2000000
EXPL = os.environ.get('EXPL', '')
LS = '' if 'local' in EXPL else ' sc1'
def f32(x): return struct.unpack('<I', struct.pack('<f', x))[0]

sID = 2; sW = 3
pQ, pK, pV, pSH, pSK, pSD, pBX, pWQ, pWO, pOUT, pDBG, pWS = range(4, 28, 2)
WS = 28
SA, SB, SC = 32, 36, 40
sN = 44
sRT, sHP, sR64, sC = 45, 46, 47, 48
sLOC = 67
vL, vI, vG, vL16 = 1, 2, 3, 4

class MK:
    def __init__(self):
        self.a = Asm(); self.nlab = 0; self.names = {'c': [], 'h': [], 'p': []}
    def lab(self, p):
        self.nlab += 1; return f'{p}_{self.nlab}'
    def stamp(self, name):
        if not DIAG: return
        name = str(name)
        if name == 'start': i = 0
        else:
            sel = os.environ.get('STAMPS', '').split(',')
            if not any(name.startswith(p) for p in sel if p): return
            cls = name[0] if name[0] in 'ch' else 'p'
            lists = self.names
            if name not in lists[cls]: lists[cls].append(name)
            k = lists[cls].index(name)
            i = 1 + k + (0 if cls in 'ch' else max(len(lists['c']), len(lists['h'])))
            if i > 15: print('stamp dropped', name); lists[cls].remove(name); return
        self.a.e(f's_mem{"time" if name.endswith("_cyc") else "realtime"} s[{68+2*i}:{69+2*i}]')
    def srd(self, d, ptr, nbytes):
        a = self.a
        a.e(f's_mov_b32 s{d}, s{ptr}'); a.e(f's_mov_b32 s{d+1}, s{ptr+1}')
        a.e(f's_mov_b32 s{d+2}, {hex(nbytes)}'); a.e(f's_mov_b32 s{d+3}, 0x20000')
    def set_flag(self, idx_sgpr, base, vt, tag=None, local=False):
        a = self.a
        if tag is None: a.e('s_waitcnt vmcnt(0)')
        else: a.wait_vm(tag)
        a.e('s_barrier')
        self.write_flag(idx_sgpr, base, vt, local)
    def write_flag(self, idx_sgpr, base, vt, local=False):
        a = self.a
        L = self.lab('NOFLAG')
        a.e(f's_cmp_lg_u32 s{sW}, 0'); a.e(f's_cbranch_scc1 {L}')
        a.e(f's_lshl_b32 s49, s{idx_sgpr}, 2'); a.e(f's_add_u32 s49, s49, {hex(FLG_OFF + 4*base)}')
        if base in REPL:
            a.e(f'v_mul_u32_u24 v{vt}, {4*RSTR}, v{vL}'); a.e(f'v_add_u32 v{vt}, s49, v{vt}')
        else:
            a.e(f'v_mov_b32 v{vt}, s49')
        a.e(f'v_mov_b32 v{vt+1}, s{sN}')
        a.e(f's_mov_b64 exec, {0xff if base in REPL else 1}')
        a.e(f'buffer_store_dword v{vt+1}, v{vt}, s[{WS}:{WS+3}], 0 offen' + ('' if local else ' sc1'), count=False)
        a.e('s_mov_b64 exec, -1')
        a.label(L)
    def poll_addr(self, first_sgpr, base, n, vt, n_sgpr=None):
        a = self.a
        nl = (n + 63) // 64
        if first_sgpr is None: a.e(f's_mov_b32 s49, {hex(FLG_OFF + 4*base)}')
        else:
            a.e(f's_lshl_b32 s49, s{first_sgpr}, 2'); a.e(f's_add_u32 s49, s49, {hex(FLG_OFF + 4*base)}')
        if base in REPL:
            a.e(f's_and_b32 s50, s{sID}, 7'); a.e(f's_mul_i32 s50, s50, {4*RSTR}'); a.e('s_add_u32 s49, s49, s50')
        for j in range(nl):
            if n_sgpr is not None:
                a.e(f's_sub_u32 s50, s{n_sgpr}, 1'); a.e(f'v_min_u32 v{vt+j}, s50, v{vL}')
            elif 64 * (j + 1) <= n:
                a.e(f'v_add_u32 v{vt+j}, {64*j}, v{vL}')
            else:
                a.e(f'v_add_u32 v{vt+j}, {64*j}, v{vL}'); a.e(f'v_min_u32 v{vt+j}, {n-1}, v{vt+j}')
            a.e(f'v_lshl_add_u32 v{vt+j}, v{vt+j}, 2, s49')
        return nl
    def poll_issue(self, nl, vt, count=True, tag=None):
        for j in range(nl):
            self.a.e(f'buffer_load_dword v{vt+nl+j}, v{vt+j}, s[{WS}:{WS+3}], 0 offen sc1', tag, count=count)
    def poll_check(self, nl, vt, done):
        a = self.a
        for j in range(nl):
            a.e(f'v_cmp_ne_u32 {"vcc" if j == 0 else "s[52:53]"}, s{sN}, v{vt+nl+j}')
            if j: a.e('s_or_b64 vcc, vcc, s[52:53]')
        a.e(f's_cbranch_vccz {done}')
    def poll_loop(self, nl, vt, done, sleep=2):
        a = self.a
        Lp = self.lab('POLL')
        a.e('s_mov_b32 s51, 0x8000')
        a.label(Lp)
        self.poll_issue(nl, vt, count=False)
        a.e('s_waitcnt vmcnt(0)', count=False)
        self.poll_check(nl, vt, done)
        a.e(f's_sleep {sleep}')
        a.e('s_sub_u32 s51, s51, 1'); a.e('s_cmp_lg_u32 s51, 0')
        a.e(f's_cbranch_scc1 {Lp}')
    def poll(self, first_sgpr, base, n, vt, barrier=True, allwaves=False, n_sgpr=None, sleep=2):
        a = self.a
        Ld = self.lab('POLLDONE')
        if not allwaves:
            a.e(f's_cmp_lg_u32 s{sW}, 0'); a.e(f's_cbranch_scc1 {Ld}')
        nl = self.poll_addr(first_sgpr, base, n, vt, n_sgpr)
        self.poll_loop(nl, vt, Ld, sleep)
        a.label(Ld)
        if barrier: a.e('s_barrier')
        if allwaves: a.vm = []
    def stores(self, ins, tag=None):
        a = self.a
        if 'nolocal' in EXPL:
            for x in ins: a.e(x + ' sc1', tag)
            return
        Lg = self.lab('STG'); Le = self.lab('STE')
        a.e(f's_cmp_eq_u32 s{sLOC}, 0'); a.e(f's_cbranch_scc1 {Lg}')
        for x in ins: a.e(x, tag, count=False)
        a.e(f's_branch {Le}')
        a.label(Lg)
        for x in ins: a.e(x + ' sc1', tag)
        a.label(Le)
    def set_flag_dual(self, idx_sgpr, base, vt):
        a = self.a
        a.e('s_waitcnt vmcnt(0)'); a.e('s_barrier')
        L = self.lab('NOFLAG')
        a.e(f's_cmp_lg_u32 s{sW}, 0'); a.e(f's_cbranch_scc1 {L}')
        a.e(f's_lshl_b32 s49, s{idx_sgpr}, 2'); a.e(f's_add_u32 s49, s49, {hex(FLG_OFF + 4*base)}')
        a.e(f'v_mov_b32 v{vt}, s49'); a.e(f'v_mov_b32 v{vt+1}, s{sN}')
        a.e('s_mov_b64 exec, 1')
        self.stores([f'buffer_store_dword v{vt+1}, v{vt}, s[{WS}:{WS+3}], 0 offen'])
        a.vm = []
        a.e('s_mov_b64 exec, -1')
        a.label(L)
    def dump(self, n):
        if not DIAG: return
        a = self.a
        a.e('s_waitcnt lgkmcnt(0) vmcnt(0)')
        a.e(f's_add_u32 s52, s{pWS}, {hex(DIAG_OFF)}'); a.e(f's_addc_u32 s53, s{pWS+1}, 0')
        a.e(f's_lshl_b32 s54, s{sID}, 6'); a.e('v_mov_b32 v8, s54')
        L = self.lab('NODUMP')
        a.e(f's_cmp_lg_u32 s{sW}, 0'); a.e(f's_cbranch_scc1 {L}')
        a.e('s_mov_b64 exec, 1')
        for i in range(n):
            a.e(f'v_mov_b32 v9, s{68+2*i}')
            a.e(f'global_store_dword v8, v9, s[52:53] offset:{4*i}')
        a.e('s_mov_b64 exec, -1')
        a.label(L)
```

```python
import sys
from mcommon import *
from m_p1 import helper_path
from m_conv import conv_path, WSZ

PREFETCH = int(os.environ.get('PREFETCH', '1'))
def build(upto=99):
    M = MK(); a = M.a
    M.stamp('start')
    a.e(f's_cmp_ge_u32 s{sID}, 256'); a.e('s_cbranch_scc1 MEGA_END')
    a.e('s_load_dwordx16 s[4:19], s[0:1], 0'); a.e('s_load_dwordx8 s[20:27], s[0:1], 64')
    a.e(f'v_lshrrev_b32 v{vL}, 6, v0'); a.e('s_nop 0'); a.e(f'v_readfirstlane_b32 s{sW}, v{vL}')
    a.e(f'v_and_b32 v{vL}, 63, v0'); a.e(f'v_and_b32 v{vI}, 15, v{vL}'); a.e(f'v_lshrrev_b32 v{vG}, 4, v{vL}'); a.e(f'v_lshlrev_b32 v{vL16}, 4, v{vL}')
    if not PREFETCH: a.label('MEGA_PC')
    if PREFETCH:
        a.e('s_getpc_b64 s[52:53]')
        a.label('MEGA_PC')
        a.e(f's_lshr_b32 s49, s{sID}, 3'); a.e('s_lshl_b32 s49, s49, 2'); a.e(f's_add_u32 s49, s49, s{sW}'); a.e('s_lshl_b32 s49, s49, 11')
        a.e(f'v_and_b32 v5, 15, v{vL}'); a.e('v_lshl_add_u32 v5, v5, 7, s49')
        a.e('v_min_u32 v5, CODE_BYTES, v5')
        a.e('global_load_dword v255, v5, s[52:53]', count=False)
    a.e(f's_and_b32 s49, s{sID}, 7'); a.e(f's_lshr_b32 s50, s{sID}, 3')
    a.e(f's_lshl_b32 s{sRT}, s49, 1'); a.e('s_and_b32 s51, s50, 1'); a.e(f's_add_u32 s{sRT}, s{sRT}, s51'); a.e(f's_lshr_b32 s{sHP}, s50, 1')
    a.e(f's_lshl_b32 s{sR64}, s49, 2'); a.e('s_and_b32 s51, s50, 3'); a.e(f's_add_u32 s{sR64}, s{sR64}, s51'); a.e(f's_lshr_b32 s{sC}, s50, 2')
    a.e('s_waitcnt lgkmcnt(0)')
    M.srd(WS, pWS, WS_END)
    a.e(f's_mov_b32 s49, {hex(NONCE_OFF)}'); a.e(f's_load_dword s{sN}, s[{pWS}:{pWS+1}], s49')
    a.e(f's_cmp_ge_u32 s{sID}, 160'); a.e('s_cbranch_scc1 MEGA_HELPER')
    conv_path(M)
    a.e('s_branch MEGA_P3')
    a.label('MEGA_HELPER')
    helper_path(M)
    a.label('MEGA_P3')
    a.reset_counts()
    if upto >= 3:
        from m_p3 import p3, p3_pre
        from m_p4 import p4
        p3_pre(M)
        p3(M, 1)
        if upto >= 4: p4(M, 1)
        if upto >= 5: p3(M, 2)
        if upto >= 6: p4(M, 2)
    M.stamp('zend')
    L = M.lab('NONONCE')
    a.e(f's_or_b32 s49, s{sID}, s{sW}'); a.e('s_cmp_lg_u32 s49, 0'); a.e(f's_cbranch_scc1 {L}')
    if upto < 3:
        M.poll(None, F2, 160, 8, barrier=False, allwaves=True)
    a.e(f'v_mov_b32 v8, {hex(NONCE_OFF)}'); a.e(f'v_mov_b32 v9, s{sN}')
    a.e('s_mov_b64 exec, 1'); a.e(f'buffer_store_dword v9, v8, s[{WS}:{WS+3}], 0 offen sc1'); a.e('s_mov_b64 exec, -1')
    a.label(L)
    M.dump(16)
    a.label('MEGA_END')
    a.e('s_endpgm')
    n = a.fix_hazards()
    name = NAME + '_kernel'
    s = '''; single persistent kernel: 256 workgroups (one per CU), phases separated by tagged flags in the workspace
; @launch grid=(256,1,1) block=(256,1,1) lds=163840
.amdgcn_target "amdgcn-amd-amdhsa--gfx950"
.text
'''
    s += '.set CODE_BYTES, MEGA_END - MEGA_PC\n'
    s += f'.globl {name}\n.p2align 8\n.type {name},@function\n{name}:\n' + a.text()
    s += f'''.section .rodata,"a"
.p2align 6
.amdhsa_kernel {name}
  .amdhsa_next_free_vgpr 512
  .amdhsa_next_free_sgpr 102
  .amdhsa_accum_offset 256
  .amdhsa_group_segment_fixed_size 0
  .amdhsa_kernarg_size 96
  .amdhsa_user_sgpr_count 2
  .amdhsa_user_sgpr_kernarg_segment_ptr 1
  .amdhsa_system_sgpr_workgroup_id_x 1
  .amdhsa_float_denorm_mode_32 3
.end_amdhsa_kernel
'''
    if DIAG: s = '; stamps: ' + repr(M.names) + '\n' + s
    return s
if __name__ == '__main__':
    upto = int(sys.argv[2]) if len(sys.argv) > 2 else 99
    open(sys.argv[1], 'w').write(build(upto))
```

```python
from mcommon import *
import math

SLOT = 8192; NS = 16; DEPTHS = (int(os.environ.get('DEPTH1', '10')), int(os.environ.get('DEPTH2', '10')))
HALO = NS * SLOT
SCR = HALO + 20480
QKV = 102400
ROW = 272
SP_OFF = SCR
CS_OFF = SCR + 1024
vCS = 124
vX3 = 132
ACC = 16
ST = 88
XB = [160, 192]
HX = 144
WPRE = int(os.environ.get('WPRE', '14'))

def W_addr(M):
    a = M.a
    a.e(f's_mul_i32 s49, s{sHP}, 163840'); a.e(f's_lshl_b32 s50, s{sW}, 11'); a.e('s_add_u32 s49, s49, s50'); a.e(f's_add_u32 s49, s49, {hex(WF1_OFF)}')
    a.e(f'v_add_u32 v142, s49, v{vL16}'); a.e('v_add_u32 v143, 1024, v142')
    a.e(f's_cmp_eq_u32 s{sW}, 3'); a.e('s_cselect_b64 s[52:53], -1, 0'); a.e(f'v_cmp_le_u32 vcc, 8, v{vI}'); a.e('s_and_b64 vcc, vcc, s[52:53]')
    a.e(f'v_mov_b32 v11, {hex(OOB)}'); a.e('v_cndmask_b32 v143, v143, v11, vcc')

def W_load(M, ks, tag):
    a = M.a
    a.e(f's_mov_b32 s49, {8192*ks}')
    a.e(f'buffer_load_dwordx4 a[{8*ks}:{8*ks+3}], v142, s[{WS}:{WS+3}], s49 offen sc1', tag)
    a.e(f'buffer_load_dwordx4 a[{8*ks+4}:{8*ks+7}], v143, s[{WS}:{WS+3}], s49 offen sc1', tag)

def p3_pre(M):
    a = M.a
    W_addr(M)
    for ks in range(WPRE): W_load(M, ks, 'wpre')
    a.e('v_and_b32 v8, 127, v0'); a.e('v_lshrrev_b32 v9, 7, v0')
    a.e('v_lshrrev_b32 v10, 4, v8'); a.e('v_and_b32 v11, 15, v8')
    a.e('v_and_b32 v12, 1, v10'); a.e('v_cmp_le_u32 vcc, 5, v10'); a.e('v_xor_b32 v13, 1, v12'); a.e('v_cndmask_b32 v12, v12, v13, vcc')
    a.e('v_mov_b32 v13, 0'); a.e('v_cmp_le_u32 vcc, 2, v10'); a.e('v_mov_b32 v14, 640'); a.e('v_cndmask_b32 v13, v13, v14, vcc')
    a.e('v_cmp_le_u32 vcc, 5, v10'); a.e('v_mov_b32 v14, 1280'); a.e('v_cndmask_b32 v13, v13, v14, vcc')
    a.e('v_mul_u32_u24 v12, 20, v12'); a.e('v_add3_u32 v12, v12, v13, v11')
    a.e('v_lshrrev_b32 v13, 3, v11'); a.e('v_mul_u32_u24 v13, 640, v13'); a.e('v_bfe_u32 v14, v11, 2, 1'); a.e('v_mul_u32_u24 v14, 20, v14')
    a.e('v_and_b32 v15, 3, v11'); a.e('v_add3_u32 v13, v13, v14, v15'); a.e('v_add_u32 v13, 16, v13')
    a.e('v_cmp_eq_u32 vcc, 4, v10'); a.e('v_cndmask_b32 v12, v12, v13, vcc')
    a.e('v_lshrrev_b32 v13, 2, v11'); a.e('v_mul_u32_u24 v13, 20, v13'); a.e('v_add_u32 v13, v13, v15'); a.e('v_add_u32 v13, 1296, v13')
    a.e('v_cmp_eq_u32 vcc, 7, v10'); a.e('v_cndmask_b32 v12, v12, v13, vcc')
    a.e(f's_mul_i32 s49, s{sHP}, 40'); a.e('v_add_u32 v12, s49, v12')
    a.e('v_mul_u32_u24 v13, 76800, v9'); a.e('v_lshl_add_u32 v12, v12, 2, v13'); a.e(f'v_add_u32 v12, {hex(CSP_OFF)}, v12')
    a.e('v_cmp_le_u32 vcc, 120, v8'); a.e(f'v_mov_b32 v13, {hex(OOB)}'); a.e('v_cndmask_b32 v12, v12, v13, vcc')
    for j in range(10):
        a.e(f's_mov_b32 s49, {7680*j}')
        a.e(f'buffer_load_dword v{88+j}, v12, s[{WS}:{WS+3}], s49 offen sc1', 'csp')

class Fill:
    def __init__(self, a): self.a = a; self.q = []
    def add(self, *items): self.q.extend(items)
    def pop(self, n=1):
        for _ in range(n):
            if not self.q: return
            x = self.q.pop(0)
            if callable(x): x()
            elif isinstance(x, tuple): self.a.e(x[0], x[1])
            else: self.a.e(x)
    def flush(self):
        while self.q: self.pop()

def p3(M, layer):
    a = M.a
    XOFF = X1_OFF if layer == 1 else X3_OFF
    OOFF = O1_OFF if layer == 1 else O2_OFF
    SOFF = STAT_OFF[layer - 1]
    P = f'p{2*layer+1}'
    DEPTH = DEPTHS[layer - 1]
    if layer == 2: a.reset_counts()
    a.e(f's_lshl_b32 s58, s{sRT}, 3')
    a.e(f's_lshl_b32 s49, s{sW}, 1'); a.e('s_add_u32 s49, s49, s58'); a.e('s_mul_i32 s59, s49, 20480')
    a.e(f's_add_u32 s49, s59, {hex(XOFF)}'); a.e(f'v_add_u32 v5, s49, v{vL16}')
    a.e(f'v_add_u32 v6, {20480 - 1024}, v5')
    a.e(f's_mul_i32 s50, s{sW}, 5120')
    if layer == 1:
        a.e('s_sub_u32 s49, s58, 1'); a.e('s_mul_i32 s49, s49, 20480'); a.e(f's_add_u32 s49, s49, {hex(XOFF)}')
    else:
        a.e(f's_mul_i32 s49, s{sRT}, 20480'); a.e(f's_add_u32 s49, s49, {hex(XH_OFF)}')
    a.e('s_add_u32 s49, s49, s50'); a.e(f's_cmp_eq_u32 s{sRT}, 0'); a.e(f's_cselect_b32 s49, {hex(OOB)}, s49'); a.e(f'v_add_u32 v7, s49, v{vL16}')
    a.e(f's_add_u32 s62, s50, {HALO}')
    a.e(f's_and_b32 s49, s{sHP}, 7'); a.e('s_add_u32 s60, s49, s58'); a.e('s_mul_i32 s49, s60, 20480')
    a.e('s_add_u32 s49, s49, s50'); a.e(f's_add_u32 s49, s49, {hex(XOFF)}'); a.e(f'v_add_u32 v8, s49, v{vL16}'); a.e('v_add_u32 v9, 4096, v8')
    a.e(f's_lshl_b32 s61, s{sW}, 11')
    if layer == 1:
        a.e(f'v_lshlrev_b32 v12, 7, v{vG}'); a.e(f'v_lshl_add_u32 v12, v{vI}, 3, v12')
    else:
        a.e(f'v_mov_b32 v12, v{vL16}')
    a.e(f'v_add_u32 v13, {8*SLOT}, v12')
    a.e(f'v_add_u32 v10, {HALO}, v12')
    BC, BP, BA = 224, 228, 232
    a.e(f'v_lshlrev_b32 v180, 2, v{vG}'); a.e(f'v_sub_u32 v180, v{vI}, v180')
    a.e('v_mov_b32 v181, 0'); a.e(f'v_mov_b32 v182, {hex(f32(-1e30))}')
    for r in range(4):
        for (dst, add) in ((BC + r, -r), (BP + r, 16 - r)):
            a.e(f'v_add_u32 v183, {add}, v180'); a.e('v_and_b32 v183, 0xfffffff1, v183')
            a.e('v_cmp_eq_u32 vcc, 0, v183'); a.e(f'v_cndmask_b32 v{dst}, v182, v181, vcc')
    a.e(f's_or_b32 s49, s{sRT}, s{sW}'); a.e('s_cmp_eq_u32 s49, 0'); a.e('s_cselect_b64 s[52:53], -1, 0')
    for r in range(4): a.e(f'v_cndmask_b32 v{BA+r}, v{BP+r}, v182, s[52:53]')
    a.e(f'v_mul_u32_u24 v180, {ROW}, v{vI}'); a.e(f's_lshl_b32 s49, s{sW}, 6'); a.e(f's_add_u32 s49, s49, {QKV}')
    a.e(f'v_lshl_add_u32 v242, v{vG}, 3, s49'); a.e('v_add_u32 v242, v242, v180')
    a.e(f's_mul_i32 s49, s{sW}, {32*ROW}'); a.e(f's_add_u32 s49, s49, {QKV}')
    a.e('v_add_u32 v236, s49, v180'); a.e(f'v_lshl_add_u32 v237, v{vG}, 3, v236')
    a.e(f'v_cmp_eq_u32 s[56:57], 0, v{vG}'); a.e('v_mov_b32 v238, 240'); a.e('v_mov_b32 v181, 128'); a.e('v_cndmask_b32 v238, v238, v181, s[56:57]'); a.e('v_add_u32 v238, v238, v236')
    a.e(f'v_lshrrev_b32 v239, 2, v{vI}'); a.e(f'v_lshl_add_u32 v239, v{vG}, 2, v239'); a.e(f'v_mul_u32_u24 v239, {ROW}, v239')
    a.e(f'v_and_b32 v181, 3, v{vL}'); a.e('v_lshl_add_u32 v239, v181, 3, v239'); a.e('v_add_u32 v239, s49, v239')
    a.e(f's_mul_i32 s49, s{sHP}, 1280'); a.e('s_add_u32 s49, s49, s59'); a.e(f's_add_u32 s49, s49, {hex(OOFF)}')
    a.e(f'v_lshlrev_b32 v181, 4, v{vI}'); a.e(f'v_lshl_add_u32 v240, v{vG}, 8, v181'); a.e('v_add_u32 v240, s49, v240')
    a.e('s_add_u32 s49, s49, 1024'); a.e('v_add_u32 v241, s49, v181')
    if layer == 1:
        M.poll(None, F2, 160, 144)
    else:
        a.e(f's_lshl_b32 s54, s{sRT}, 4')
        M.poll(54, F4, 16, 144)
    M.stamp(P + 'a_polled')
    SX = 144
    for j in range(4): a.e(f'buffer_load_dwordx4 v[{SX+4*j}:{SX+4*j+3}], v8, s[{WS}:{WS+3}], 0 offen offset:{1024*j} sc1', 'sx')
    a.e(f'buffer_load_dwordx4 v[{SX+16}:{SX+19}], v9, s[{WS}:{WS+3}], 0 offen sc1', 'sx')
    def issue_parts(ks):
        tag = f's{ks}'
        sl = (ks % NS) * SLOT
        xf = '' if ('plainld' in EXPL and layer == 2) else ' sc1'
        P_ = [[(f's_add_u32 m0, s61, {sl}', None)], [(f's_mov_b32 s64, {1024*ks}', None)],
              [(f'buffer_load_dwordx4 v5, s[{WS}:{WS+3}], s64 offen{xf} lds', tag)],
              [(f'buffer_load_dwordx4 v6, s[{WS}:{WS+3}], s64 offen offset:1024{xf} lds', tag)]]
        if layer == 1 and ks >= WPRE:
            P_ += [[(f's_mov_b32 s65, {8192*ks}', None)],
                   [(f'buffer_load_dwordx4 a[{8*ks}:{8*ks+3}], v142, s[{WS}:{WS+3}], s65 offen sc1', tag)],
                   [(f'buffer_load_dwordx4 a[{8*ks+4}:{8*ks+7}], v143, s[{WS}:{WS+3}], s65 offen sc1', tag)]]
        return P_
    def issue(ks):
        for part in issue_parts(ks):
            for ins, tag in part: a.e(ins, tag)
    UP = int(os.environ.get('UP', '7'))
    for ks in range(UP): issue(ks)
    def reads(ks):
        b = XB[ks & 1]; sl = ks % NS; off = (sl % 8) * SLOT
        L = []
        for t in range(8):
            if layer == 1:
                base = 'v12' if sl < 8 else 'v13'
                L.append(f'ds_read_b64 a[{b+4*t}:{b+4*t+1}], {base} offset:{off+1024*t}')
                L.append(f'ds_read_b64 a[{b+4*t+2}:{b+4*t+3}], {base} offset:{off+1024*t+512}')
            else:
                base = 'v12' if sl < 8 else 'v13'
                L.append(f'ds_read_b128 a[{b+4*t}:{b+4*t+3}], {base} offset:{off+1024*t}')
        return L
    RPT = 2 if layer == 1 else 1
    def mfmas(ks):
        b = XB[ks & 1]; L = []
        for t in range(8):
            for f in range(2):
                d = ACC + 36 * f + 4 * (t + 1)
                c = '0' if ks == 0 else f'v[{d}:{d+3}]'
                L.append(f'v_mfma_f32_16x16x32_bf16 v[{d}:{d+3}], a[{8*ks+4*f}:{8*ks+4*f+3}], a[{b+4*t}:{b+4*t+3}], {c}')
        return L
    T = 164; REC = 168
    a.wait_vm('sx'); a.e('s_mov_b32 s55, 0x3f803f80')
    if layer == 1:
        for j in range(4): a.e(f'v_mov_b32 v{T+j}, 0')
        for j in range(5):
            d = SX + 4 * j
            for h in range(2):
                a.e(f'v_dot2_f32_bf16 v{T}, v{d+h}, s55, v{T}'); a.e(f'v_dot2_f32_bf16 v{T+1}, v{d+h}, v{d+h}, v{T+1}')
                a.e(f'v_dot2_f32_bf16 v{T+2}, v{d+2+h}, s55, v{T+2}'); a.e(f'v_dot2_f32_bf16 v{T+3}, v{d+2+h}, v{d+2+h}, v{T+3}')
        for j in range(4): a.e(f'v_add_f32_dpp v{T+j}, v{T+j}, v{T+j} row_ror:8 row_mask:0xf bank_mask:0xf')
        nred = 4
    else:
        for j in range(4): a.e(f'v_mov_b32 v{T+j}, 0')
        for j in range(5):
            d = SX + 4 * j
            for h in range(2):
                a.e(f'v_dot2_f32_bf16 v{T}, v{d+2*h}, s55, v{T}'); a.e(f'v_dot2_f32_bf16 v{T+1}, v{d+2*h}, v{d+2*h}, v{T+1}')
                a.e(f'v_dot2_f32_bf16 v{T+2}, v{d+2*h+1}, s55, v{T+2}'); a.e(f'v_dot2_f32_bf16 v{T+3}, v{d+2*h+1}, v{d+2*h+1}, v{T+3}')
        a.e(f'v_add_f32 v{T}, v{T}, v{T+2}'); a.e(f'v_add_f32 v{T+1}, v{T+1}, v{T+3}')
        nred = 2
    for sw in ('v_permlane16_swap_b32', 'v_permlane32_swap_b32'):
        for j in range(nred): a.e(f'v_mov_b32 v{T+4+j}, v{T+j}')
        for j in range(nred): a.e(f'{sw} v{T+j}, v{T+4+j}')
        for j in range(nred): a.e(f'v_add_f32 v{T+j}, v{T+j}, v{T+4+j}')
    if layer == 1:
        a.e(f's_lshl_b32 s55, s{sW}, 7'); a.e(f's_add_u32 s55, s55, {SP_OFF}'); a.e(f'v_and_b32 v14, 7, v{vL}'); a.e('v_lshl_add_u32 v15, v14, 4, s55')
        a.e('s_mov_b64 exec, 0xff'); a.e(f'ds_write_b128 v15, v[{T}:{T+3}]', 'spw'); a.e('s_mov_b64 exec, -1')
        a.wait_vm('csp')
        for j in range(1, 10): a.e(f'v_add_f32 v88, v88, v{88+j}')
        a.e('v_lshlrev_b32 v15, 2, v0'); a.e(f'v_add_u32 v15, {CS_OFF}, v15'); a.e('ds_write_b32 v15, v88', 'spw')
    else:
        a.e(f's_lshl_b32 s55, s{sW}, 7'); a.e(f's_add_u32 s55, s55, {SP_OFF}'); a.e(f'v_lshl_add_u32 v15, v{vI}, 3, s55')
        a.e('s_mov_b64 exec, 0xffff'); a.e(f'ds_write_b64 v15, v[{T}:{T+1}]', 'spw'); a.e('s_mov_b64 exec, -1')
    a.e('s_waitcnt lgkmcnt(0)')
    a.wait_vm('s0'); a.e('s_barrier')
    M.stamp(P + 'b_firstbar')
    if layer == 1:
        a.e(f'v_lshlrev_b32 v15, 4, v14'); a.e(f'v_add_u32 v15, {SP_OFF}, v15')
        for w in range(4): a.e(f'ds_read_b128 v[{SX+4*w}:{SX+4*w+3}], v15 offset:{128*w}', 'spr')
        a.e(f's_lshl_b32 s55, s{sW}, 7'); a.e(f's_add_u32 s55, s55, {CS_OFF}'); a.e(f'v_lshl_add_u32 v11, v{vG}, 4, s55')
        a.e('ds_read_b128 v[88:91], v11', 'spr'); a.e('ds_read_b128 v[92:95], v11 offset:64', 'spr')
        a.e('ds_read_b128 v[96:99], v11 offset:512', 'spr'); a.e('ds_read_b128 v[100:103], v11 offset:576', 'spr')
    else:
        a.e(f'v_lshlrev_b32 v15, 3, v{vI}'); a.e(f'v_add_u32 v15, {SP_OFF}, v15')
        for w in range(4): a.e(f'ds_read_b64 v[{SX+2*w}:{SX+2*w+1}], v15 offset:{128*w}', 'spr')
    for ins in reads(0): a.e(ins, 'r0')
    a.wait_lg('spr')
    a.e(f'v_mov_b32 v176, {hex(f32(1e-5))}'); a.e(f's_mov_b32 s55, {hex(f32(1.0/640))}'); a.e(f's_mov_b32 s56, {hex(f32(-1.0/640))}')
    if layer == 1:
        for j in range(8): a.e(f'v_add_f32 v{vCS+j}, v{88+j}, v{96+j}')
        for j in range(4): a.e(f'v_add_f32 v{SX+j}, v{SX+j}, v{SX+4+j}'); a.e(f'v_add_f32 v{SX+8+j}, v{SX+8+j}, v{SX+12+j}')
        for j in range(4): a.e(f'v_add_f32 v{SX+j}, v{SX+j}, v{SX+8+j}')
        recs = [(REC, SX, SX + 1), (REC + 4, SX + 2, SX + 3)]
    else:
        for j in range(2): a.e(f'v_add_f32 v{SX+j}, v{SX+j}, v{SX+2+j}'); a.e(f'v_add_f32 v{SX+4+j}, v{SX+4+j}, v{SX+6+j}')
        for j in range(2): a.e(f'v_add_f32 v{SX+j}, v{SX+j}, v{SX+4+j}')
        recs = [(REC, SX, SX + 1)]
    for r, su, sq in recs:
        a.e(f'v_mul_f32 v{r}, s56, v{su}'); a.e(f'v_fma_f32 v{r+1}, v{sq}, s55, v176'); a.e(f'v_fma_f32 v{r+1}, -v{r}, v{r}, v{r+1}')
        a.e(f'v_rsq_f32 v{r+1}, v{r+1}'); a.e(f'v_mov_b32 v{r+2}, s{sN}'); a.e(f'v_mov_b32 v{r+3}, 0')
    a.e('s_lshl_b32 s55, s60, 8'); a.e(f's_add_u32 s55, s55, {hex(SOFF)}')
    if layer == 1:
        a.e('v_lshl_add_u32 v15, v14, 5, s55'); a.e(f's_cmp_eq_u32 s{sW}, 0'); a.e('s_cselect_b64 s[56:57], 0xff, 0')
    else:
        a.e(f'v_lshl_add_u32 v15, v{vI}, 4, s55'); a.e(f's_cmp_eq_u32 s{sW}, 0'); a.e('s_cselect_b64 s[56:57], 0xffff, 0')
    a.e(f'v_mov_b32 v14, {hex(OOB)}'); a.e('v_cndmask_b32 v15, v14, v15, s[56:57]')
    a.e(f'buffer_store_dwordx4 v[{REC}:{REC+3}], v15, s[{WS}:{WS+3}], 0 offen sc1', 'stw')
    if layer == 1: a.e(f'buffer_store_dwordx4 v[{REC+4}:{REC+7}], v15, s[{WS}:{WS+3}], 0 offen offset:16 sc1', 'stw')
    F = Fill(a)
    def halo_dma():
        for j in range(5):
            F.add(lambda j=j: (a.e(f's_add_u32 m0, s62, {1024*j}'), a.e(f's_mov_b32 s55, {1024*j}'),
                               a.e(f'buffer_load_dwordx4 v7, s[{WS}:{WS+3}], s55 offen sc1 lds', 'halo')))
    SR_OFF = SCR + 2048
    def stat_addr():
        def seq(*L): return lambda: [a.e(x) for x in L]
        F.add(seq('s_sub_u32 s55, s58, 1', f's_add_u32 s55, s55, s{sW}'), seq('s_lshl_b32 s55, s55, 8', f's_add_u32 s55, s55, {hex(SOFF)}'),
              f'v_lshl_add_u32 v11, v{vI}, 4, s55', seq(f's_or_b32 s55, s{sRT}, s{sW}', 's_cmp_eq_u32 s55, 0', 's_cselect_b32 s55, 256, 0'), 'v_add_u32 v15, s55, v11',
              seq('s_movk_i32 s55, 1024', f's_cmp_eq_u32 s{sW}, 0', f's_cselect_b32 s55, 2048, s55'), 'v_add_u32 v14, s55, v11')
        F.add(lambda: rec_loads('st', True))
    def rec_loads(tag, count):
        a.e(f'buffer_load_dwordx3 v[{ST}:{ST+2}], v15, s[{WS}:{WS+3}], 0 offen sc1', tag, count=count)
        a.e(f'buffer_load_dwordx3 v[{ST+4}:{ST+6}], v11, s[{WS}:{WS+3}], 0 offen offset:1024 sc1', tag, count=count)
        a.e(f'buffer_load_dwordx3 v[{ST+8}:{ST+10}], v14, s[{WS}:{WS+3}], 0 offen sc1', tag, count=count)
    def rec_publish():
        Lc = M.lab('STCHK'); Lok = M.lab('STOK')
        a.wait_vm('st')
        a.e('s_mov_b32 s54, 0x4000')
        a.label(Lc)
        a.e(f'v_cmp_ne_u32 vcc, s{sN}, v{ST+2}')
        for t in (1, 2):
            a.e(f'v_cmp_ne_u32 s[52:53], s{sN}, v{ST+4*t+2}'); a.e('s_or_b64 vcc, vcc, s[52:53]')
        a.e(f's_cbranch_vccz {Lok}')
        rec_loads(None, False)
        a.e('s_waitcnt vmcnt(0)', count=False)
        a.e('s_sub_u32 s54, s54, 1'); a.e('s_cmp_lg_u32 s54, 0'); a.e(f's_cbranch_scc1 {Lc}')
        a.label(Lok)
        a.e(f's_lshl_b32 s55, s{sW}, 7'); a.e(f's_add_u32 s55, s55, {SR_OFF}'); a.e(f'v_lshl_add_u32 v11, v{vI}, 3, s55')
        a.e('s_movk_i32 s55, 512'); a.e(f's_cmp_eq_u32 s{sW}, 0'); a.e(f's_cselect_b32 s55, 1024, s55'); a.e('v_add_u32 v14, s55, v11')
        a.e('s_mov_b64 exec, 0xffff')
        a.e(f'ds_write_b64 v11, v[{ST}:{ST+1}]', 'srw'); a.e(f'ds_write_b64 v11, v[{ST+4}:{ST+5}] offset:512', 'srw'); a.e(f'ds_write_b64 v14, v[{ST+8}:{ST+9}]', 'srw')
        a.e('s_mov_b64 exec, -1')
    def halo_reads():
        for ks in range(20):
            if layer == 1:
                F.add((f'ds_read_b64 v[{HX+4*ks}:{HX+4*ks+1}], v10 offset:{1024*ks}', 'hr'), (f'ds_read_b64 v[{HX+4*ks+2}:{HX+4*ks+3}], v10 offset:{1024*ks+512}', 'hr'))
            else:
                F.add((f'ds_read_b128 v[{HX+4*ks}:{HX+4*ks+3}], v10 offset:{1024*ks}', 'hr'))
    def xid_load():
        a_ = f'v{PXA}'
        F.add(f's_and_b32 s55, s{sID}, 7', 's_lshl_b32 s55, s55, 8', f's_add_u32 s55, s55, {hex(XID_OFF)}', f'v_and_b32 v{PXA}, 31, v{vL}',
              f'v_lshl_add_u32 v{PXA}, v{PXA}, 3, s55', (f'buffer_load_dwordx2 v[{PXA+2}:{PXA+3}], v{PXA}, s[{WS}:{WS+3}], 0 offen sc1', 'xid'))
    def xid_eval():
        F.add(lambda: a.wait_vm('xid'), 's_getreg_b32 s55, hwreg(HW_REG_XCC_ID, 0, 4)',
              lambda: [a.e(x) for x in (f'v_cmp_ne_u32 vcc, s{sN}, v{PXA+2}', f'v_cmp_ne_u32 s[56:57], s55, v{PXA+3}',
                                        's_or_b64 vcc, vcc, s[56:57]', 's_cmp_eq_u64 vcc, 0', f's_cselect_b32 s{sLOC}, 1, 0')])
    PXA = 244
    hpoll = {}
    def hflag_issue():
        F.add(f's_lshl_b32 s54, s{sRT}, 3')
        def f():
            hpoll['nl'] = M.poll_addr(54, F4H, 8, 248); M.poll_issue(1, 248, tag='hf')
        F.add(f)
    def hflag_check():
        def f():
            Lok = M.lab('HFOK')
            a.wait_vm('hf')
            a.e(f's_cmp_eq_u32 s{sRT}, 0'); a.e(f's_cbranch_scc1 {Lok}')
            M.poll_check(1, 248, Lok)
            M.poll_loop(1, 248, Lok, sleep=4)
            a.label(Lok)
        F.add(f)
    M.stamp(P + 'c_mainstart')
    M.stamp(P + 'c_mainstart_cyc')
    nxt = [UP]
    for ks in range(20):
        mf = mfmas(ks)
        rd = reads(ks + 1) if (ks < 19 and 'noread' not in EXPL) else []
        if ks == 0:
            if layer == 2: hflag_issue()
            else: xid_load()
        if ks == 3:
            if layer == 2: hflag_check()
        if ks == 6 and layer == 1: xid_eval()
        if ks == 8: stat_addr()
        if ks == (10 if layer == 1 else 13): halo_reads()
        gaps = [[] for _ in range(16)]
        if ks < 19:
            gaps[0].append(lambda ks=ks: (a.wait_vm([f's{ks+1}'] + (['halo'] if ks == 9 else [])), None if 'nobar' in EXPL else a.e('s_barrier')))
        st = []
        while nxt[0] < 20 and nxt[0] <= ks + DEPTH and len(st) < (2 if ks < 6 else 1):
            st.append(issue_parts(nxt[0]) if 'nodma' not in EXPL else []); nxt[0] += 1
        def emit_part(part):
            return lambda: [a.e(i_, t_) for i_, t_ in part]
        rdl = [(lambda x=x, tg=f'r{ks+1}_{j//RPT}': a.e(x, tg)) for j, x in enumerate(rd)]
        if layer == 1:
            rslots = [1, 2, 4, 4, 6, 6, 7, 8, 8, 9, 9, 10, 10, 11, 11, 12]
        else:
            rslots = [1, 2, 4, 6, 7, 8, 9, 10]
        for j, f_ in enumerate(rdl): gaps[rslots[j]].append(f_)
        if st and st[0]:
            p_ = st[0]
            gaps[1].append(emit_part(p_[0])); gaps[2].append(emit_part(p_[1])); gaps[3].append(emit_part(p_[2])); gaps[5].append(emit_part(p_[3]))
            if len(p_) > 4: gaps[12].append(emit_part(p_[4])); gaps[13].append(emit_part(p_[5])); gaps[14].append(emit_part(p_[6]))
        if len(st) > 1 and st[1]:
            p_ = st[1]
            assert len(p_) == 4
            gaps[11].append(emit_part(p_[0])); gaps[12].append(emit_part(p_[1])); gaps[13].append(emit_part(p_[2])); gaps[14].append(emit_part(p_[3]))
        if 4 <= ks <= 8:
            j = ks - 4
            gaps[7].append(lambda j=j: (a.e(f's_add_u32 m0, s62, {1024*j}'), a.e(f's_mov_b32 s66, {1024*j}')))
            gaps[8].append(lambda: a.e(f'buffer_load_dwordx4 v7, s[{WS}:{WS+3}], s66 offen sc1 lds', 'halo'))
        busy = len(st) > 1 or (st and len(st[0]) > 4)
        fills = ([12] if layer == 1 else [4, 6, 8, 9, 10, 11, 11]) if busy else ([12, 13, 13, 14] if layer == 1 else [4, 6, 8, 9, 10, 11, 11, 12, 12, 13, 13, 14])
        for n, ins in enumerate(mf):
            if n == 0: a.wait_lg([f'r{ks}_{t}' for t in range(4)] if ks > 0 else ['r0'])
            if n == 8 and ks > 0: a.wait_lg([f'r{ks}_{t}' for t in range(4, 8)])
            a.e(ins)
            for f_ in gaps[n]: f_()
            F.pop(fills.count(n))
    WO = Fill(a)
    def wo_dma(n):
        def f():
            if n % 4 == 0:
                a.e(f's_mov_b32 s55, {1024*n}'); a.e('s_add_u32 m0, s55, s63'); a.e('s_nop 0') if False else None
            a.e(f'buffer_load_dwordx4 v9, s[{WS}:{WS+3}], s55 offen offset:{1024*(n%4)} sc1 lds', 'wo')
        return f
    for n in range(25): WO.add(wo_dma(n))
    F.flush()
    rec_publish()
    a.wait_lg('hr')
    for ks in range(20):
        for f in range(2):
            d = ACC + 36 * f
            c = '0' if ks == 0 else f'v[{d}:{d+3}]'
            a.e(f'v_mfma_f32_16x16x32_bf16 v[{d}:{d+3}], a[{8*ks+4*f}:{8*ks+4*f+3}], v[{HX+4*ks}:{HX+4*ks+3}], {c}')
        if ks == 0:
            a.e('s_waitcnt lgkmcnt(0)'); a.e('s_barrier')
            a.e(f'v_lshlrev_b32 v11, 3, v{vI}'); a.e(f'v_add_u32 v11, {SR_OFF}, v11')
            a.e(f's_mul_i32 s63, s{sW}, 25600'); a.e(f's_mul_i32 s54, s{sC}, 102400'); a.e('s_add_u32 s54, s54, s63'); a.e(f's_add_u32 s54, s54, {hex(WF2_OFF)}')
            a.e(f'v_add_u32 v9, s54, v{vL16}')
        if 1 <= ks <= 9:
            t = ks - 1
            a.e(f'ds_read_b64 v[{ST+4*t}:{ST+4*t+1}], v11 offset:{128*t}', 'srr')
        if ks in (10, 14, 18): WO.pop(1)
    M.stamp(P + 'd_mainend')
    M.stamp(P + 'd_mainend_cyc')
    a.wait_lg('srr')
    M.stamp(P + 'e_statsok')
    PK = 144
    order = [1, 2, 3, 4, 5, 6, 7, 8, 0]
    for n_, t in enumerate(order):
        m = ST + 4 * t
        for f in range(2):
            d = ACC + 36 * f + 4 * t; cs = vCS + 4 * f; p = PK + 2 * ((2 * n_ + f) % 8)
            for h in range(2):
                a.e(f'v_pk_fma_f32 v[{d+2*h}:{d+2*h+1}], v[{cs+2*h}:{cs+2*h+1}], v[{m}:{m+1}], v[{d+2*h}:{d+2*h+1}] op_sel:[0,0,0] op_sel_hi:[1,0,1]')
            for h in range(2):
                a.e(f'v_pk_mul_f32 v[{d+2*h}:{d+2*h+1}], v[{d+2*h}:{d+2*h+1}], v[{m}:{m+1}] op_sel:[0,1] op_sel_hi:[1,1]')
            a.e(f'v_cvt_pk_bf16_f32 v{p}, v{d}, v{d+1}'); a.e(f'v_cvt_pk_bf16_f32 v{p+1}, v{d+2}, v{d+3}')
            a.e(f'ds_write_b64 v242, v[{p}:{p+1}] offset:{16*ROW*t + 32*f}')
            if (2 * n_ + f) % 2 == 0: WO.pop(1)
    M.stamp(P + 'e2_fixdone')
    a.e('s_waitcnt lgkmcnt(0)')
    a.e('s_barrier')
    M.stamp(P + 'f_qkvbar')
    KT = {(k, h): 164 + 8 * k + 4 * h for k in range(3) for h in range(2)}
    QT = {(t, h): 188 + 8 * t + 4 * h for t in range(2) for h in range(2)}
    VV = [204, 210, 216]
    R16 = 16 * ROW
    for k in range(3):
        for h in range(2):
            d = KT[(k, h)]
            a.e(f'ds_read_b64 v[{d}:{d+1}], v237 offset:{k*R16 + 64 + 32*h}', 'op'); a.e(f'ds_read_b64 v[{d+2}:{d+3}], v236 offset:{k*R16 + 144 + 8*h}', 'op')
    for t in range(2):
        for h in range(2):
            d = QT[(t, h)]
            a.e(f'ds_read_b64 v[{d}:{d+1}], v237 offset:{(t+1)*R16 + 32*h}', 'op'); a.e(f'ds_read_b64 v[{d+2}:{d+3}], v238 offset:{(t+1)*R16 + 8*h}', 'op')
    for k in range(3):
        for y, off in enumerate((160, 192, 224)):
            a.e(f'ds_read_b64_tr_b16 v[{VV[y]+2*k}:{VV[y]+2*k+1}], v239 offset:{k*R16 + off}', 'opv')
    a.wait_lg('op')
    M.stamp(P + 'f1_opsread')
    tasks = [(0, 0), (0, 1), (1, 0), (1, 1)]
    for ti, (t, h) in enumerate(tasks):
        S = 16 + 8 * ti; q = QT[(t, h)]; bp = BA if t == 0 else BP
        a.e(f'v_mfma_f32_16x16x32_bf16 v[{S}:{S+3}], v[{KT[(t,h)]}:{KT[(t,h)]+3}], v[{q}:{q+3}], v[{bp}:{bp+3}]')
        a.e(f'v_mfma_f32_16x16x32_bf16 v[{S+4}:{S+7}], v[{KT[(t+1,h)]}:{KT[(t+1,h)]+3}], v[{q}:{q+3}], v[{BC}:{BC+3}]')
    Mx = 48
    for ti in range(4):
        S = 16 + 8 * ti; m = Mx + 4 * ti
        a.e(f'v_max3_f32 v{m}, v{S}, v{S+1}, v{S+2}'); a.e(f'v_max3_f32 v{m}, v{m}, v{S+3}, v{S+4}')
        a.e(f'v_max3_f32 v{m}, v{m}, v{S+5}, v{S+6}'); a.e(f'v_max_f32 v{m}, v{m}, v{S+7}')
        WO.pop(1)
    for sw in ('v_permlane16_swap_b32', 'v_permlane32_swap_b32'):
        for ti in range(4): a.e(f'v_mov_b32 v{Mx+4*ti+1}, v{Mx+4*ti}')
        for ti in range(4): a.e(f'{sw} v{Mx+4*ti}, v{Mx+4*ti+1}')
        for ti in range(4): a.e(f'v_max_f32 v{Mx+4*ti}, v{Mx+4*ti}, v{Mx+4*ti+1}')
    M.stamp(P + 'f2_max')
    QS = (20 ** -0.5) * math.log2(math.e)
    a.e(f's_mov_b32 s50, {hex(f32(QS))}'); a.e(f'v_mov_b32 v64, s50')
    for ti in range(4): a.e(f'v_mul_f32 v{Mx+4*ti}, s50, v{Mx+4*ti}')
    for ti in range(4):
        S = 16 + 8 * ti; m = Mx + 4 * ti
        for j in range(4):
            a.e(f'v_pk_fma_f32 v[{S+2*j}:{S+2*j+1}], v[{S+2*j}:{S+2*j+1}], v[64:65], v[{m}:{m+1}] op_sel_hi:[1,0,0] neg_lo:[0,0,1] neg_hi:[0,0,1]')
    for ti in range(4):
        S = 16 + 8 * ti
        for j in range(8): a.e(f'v_exp_f32 v{S+j}, v{S+j}')
        WO.pop(1)
    PP = 68
    for ti in range(4):
        S = 16 + 8 * ti; m = Mx + 4 * ti
        for j in range(4): a.e(f'v_cvt_pk_bf16_f32 v{PP+4*ti+j}, v{S+2*j}, v{S+2*j+1}')
        a.e(f'v_pk_add_f32 v[{S}:{S+1}], v[{S}:{S+1}], v[{S+2}:{S+3}]'); a.e(f'v_pk_add_f32 v[{S+4}:{S+5}], v[{S+4}:{S+5}], v[{S+6}:{S+7}]')
        a.e(f'v_pk_add_f32 v[{S}:{S+1}], v[{S}:{S+1}], v[{S+4}:{S+5}]'); a.e(f'v_add_f32 v{m+2}, v{S}, v{S+1}')
        WO.pop(1)
    M.stamp(P + 'f3_exp')
    OO = 88
    a.wait_lg('opv')
    for ti, (t, h) in enumerate(tasks):
        a.e(f'v_mfma_f32_16x16x32_bf16 v[{OO+8*ti}:{OO+8*ti+3}], v[{VV[h]+2*t}:{VV[h]+2*t+3}], v[{PP+4*ti}:{PP+4*ti+3}], 0')
        a.e(f'v_mfma_f32_16x16x32_bf16 v[{OO+8*ti+4}:{OO+8*ti+7}], v[{VV[2]+2*t}:{VV[2]+2*t+3}], v[{PP+4*ti}:{PP+4*ti+3}], 0')
    for sw in ('v_permlane16_swap_b32', 'v_permlane32_swap_b32'):
        for ti in range(4): a.e(f'v_mov_b32 v{Mx+4*ti+3}, v{Mx+4*ti+2}')
        for ti in range(4): a.e(f'{sw} v{Mx+4*ti+2}, v{Mx+4*ti+3}')
        for ti in range(4): a.e(f'v_add_f32 v{Mx+4*ti+2}, v{Mx+4*ti+2}, v{Mx+4*ti+3}')
    for ti in range(4): a.e(f'v_rcp_f32 v{Mx+4*ti+2}, v{Mx+4*ti+2}')
    for ti in range(4):
        o = OO + 8 * ti; s = Mx + 4 * ti + 2
        for j in range(4):
            a.e(f'v_pk_mul_f32 v[{o+2*j}:{o+2*j+1}], v[{o+2*j}:{o+2*j+1}], v[{s}:{s+1}] op_sel_hi:[1,0]')
    for t in range(2):
        o0 = OO + 8 * (2 * t); o1 = OO + 8 * (2 * t + 1); d = 16 + 12 * t
        a.e(f'v_cvt_pk_bf16_f32 v{d}, v{o0}, v{o0+1}'); a.e(f'v_cvt_pk_bf16_f32 v{d+1}, v{o0+2}, v{o0+3}')
        a.e(f'v_cvt_pk_bf16_f32 v{d+2}, v{o1}, v{o1+1}'); a.e(f'v_cvt_pk_bf16_f32 v{d+3}, v{o1+2}, v{o1+3}')
        a.e(f'v_cvt_pk_bf16_f32 v{d+4}, v{o0+4}, v{o0+5}'); a.e(f'v_cvt_pk_bf16_f32 v{d+5}, v{o0+6}, v{o0+7}')
        a.e(f'v_cvt_pk_bf16_f32 v{d+8}, v{o1+4}, v{o1+5}'); a.e(f'v_cvt_pk_bf16_f32 v{d+9}, v{o1+6}, v{o1+7}')
        a.e(f'v_permlane16_swap_b32 v{d+8}, v{d+6}'); a.e(f'v_permlane16_swap_b32 v{d+9}, v{d+7}')
    WO.flush()
    M.stamp(P + 'g_attn')
    a.e('s_movk_i32 s55, 20480')
    M.stores([f'buffer_store_dwordx4 v[16:19], v240, s[{WS}:{WS+3}], 0 offen', f'buffer_store_dwordx4 v[28:31], v240, s[{WS}:{WS+3}], s55 offen'])
    a.e('s_mov_b64 exec, 0xffff')
    M.stores([f'buffer_store_dwordx4 v[20:23], v241, s[{WS}:{WS+3}], 0 offen', f'buffer_store_dwordx4 v[32:35], v241, s[{WS}:{WS+3}], s55 offen'])
    a.e('s_mov_b64 exec, -1')
    a.e(f's_lshl_b32 s58, s{sRT}, 4'); a.e(f's_add_u32 s58, s58, s{sHP}')
    M.set_flag_dual(58, F3 if layer == 1 else F5, 8)
    M.stamp(P + 'h_flag')
```

```python
from mcommon import *
from m_p3 import vX3
OPRE = int(os.environ.get('OPRE', '20'))
OUTF = ' sc1' if 'outsc1' in EXPL else (' nt' if 'outnt' in EXPL else '')
LDF = '' if 'plainld' in EXPL else ' sc1'

def p4(M, layer):
    a = M.a
    a.reset_counts()
    OOFF = O1_OFF if layer == 1 else O2_OFF
    a.e(f's_lshl_b32 s58, s{sR64}, 2'); a.e(f's_add_u32 s58, s58, s{sW}')
    a.e('s_mul_i32 s59, s58, 20480')
    a.e(f's_add_u32 s49, s59, {hex(OOFF)}'); a.e(f'v_add_u32 v6, s49, v{vL16}')
    a.e(f's_mul_i32 s49, s{sC}, 2560'); a.e('s_add_u32 s49, s49, s59')
    a.e(f'v_lshlrev_b32 v8, 7, v{vG}'); a.e(f'v_lshl_add_u32 v8, v{vI}, 3, v8'); a.e('v_add_u32 v8, s49, v8')
    XR = 16; YR = 26
    a.e(f'v_mov_b32 v10, v{vL16}'); a.e(f'v_add_u32 v11, 61440, v{vL16}')
    WB = [144, 184]; ACC = 40
    def reads(st):
        b = WB[st & 1]; L = []
        for j in range(10):
            f = 10 * st + j
            base, off = ('v10', 1024 * f) if f < 60 else ('v11', 1024 * (f - 60))
            L.append(f'ds_read_b128 v[{b+4*j}:{b+4*j+3}], {base} offset:{off}')
        return L
    for ins in reads(0): a.e(ins)
    for j in range(5): a.e(f's_mov_b32 s{60+j}, {4096*j}')
    a.e(f's_lshr_b32 s54, s{sR64}, 1'); a.e('s_lshl_b32 s54, s54, 4')
    M.poll(54, F3 if layer == 1 else F5, 16, 240)
    P = f'p{2*layer+2}'
    M.stamp(P + 'a_polled')
    OA = 160
    def oload(ks):
        a.e(f'buffer_load_dwordx4 a[{OA+4*ks}:{OA+4*ks+3}], v6, s[{WS}:{WS+3}], s{60+(ks>>2)} offen offset:{1024*(ks&3)}' + LDF, f'o{ks}')
    for ks in range(OPRE): oload(ks)
    onext = [OPRE]
    def resload():
        a.e(f's_mov_b32 s55, {hex(X1_OFF)}'); a.e(f's_mov_b32 s56, {hex(Y_OFF)}')
        for ft in range(5): a.e(f'buffer_load_dwordx2 v[{XR+2*ft}:{XR+2*ft+1}], v8, s[{WS}:{WS+3}], s55 offen offset:{512*ft} sc1', 'res')
        for ft in range(5): a.e(f'buffer_load_dwordx2 v[{YR+2*ft}:{YR+2*ft+1}], v8, s[{WS}:{WS+3}], s56 offen offset:{512*ft} sc1', 'res')
    M.stamp(P + 'a_issued')
    for st in range(10):
        rd = reads(st + 1) if st < 9 else []
        a.e('s_waitcnt lgkmcnt(0)')
        a.wait_vm(f'o{2*st+1}')
        if st in (0, 1, 4, 8): M.stamp(P + f'a_o{st}')
        b = WB[st & 1]; j = 0
        for h in range(2):
            ks = 2 * st + h
            for ft in range(5):
                c = '0' if ks == 0 else f'v[{ACC+4*ft}:{ACC+4*ft+3}]'
                a.e(f'v_mfma_f32_16x16x32_bf16 v[{ACC+4*ft}:{ACC+4*ft+3}], v[{b+4*(5*h+ft)}:{b+4*(5*h+ft)+3}], a[{OA+4*ks}:{OA+4*ks+3}], {c}')
                if j < len(rd): a.e(rd[j]); j += 1
                if ft in (1, 3) and onext[0] < 20: oload(onext[0]); onext[0] += 1
                if layer == 1 and ks == 1 and ft == 4: resload()
    M.stamp(P + 'b_mainend')
    if layer == 1: a.wait_vm('res')
    a.e('s_mov_b32 s52, 0xffff0000')
    X = 64
    src = XR if layer == 1 else vX3
    for ft in range(5):
        for h in range(2):
            a.e(f'v_lshlrev_b32 v{X+4*ft+2*h}, 16, v{src+2*ft+h}'); a.e(f'v_and_b32 v{X+4*ft+2*h+1}, s52, v{src+2*ft+h}')
    for j in range(10):
        a.e(f'v_pk_add_f32 v[{X+2*j}:{X+2*j+1}], v[{X+2*j}:{X+2*j+1}], v[{ACC+2*j}:{ACC+2*j+1}]')
    if layer == 2:
        for j in range(10): a.e(f'v_cvt_pk_bf16_f32 v{XR+j}, v{X+2*j}, v{X+2*j+1}')
        M.srd(SA, pOUT, SZ)
        a.e('s_lshl_b32 s49, s58, 4'); a.e(f'v_add_u32 v9, s49, v{vI}'); a.e('v_mul_u32_u24 v9, 1280, v9')
        a.e(f's_mul_i32 s49, s{sC}, 160'); a.e(f'v_lshl_add_u32 v9, v{vG}, 3, v9'); a.e('v_add_u32 v9, s49, v9')
        for ft in range(5):
            a.e(f'buffer_store_dwordx2 v[{XR+2*ft}:{XR+2*ft+1}], v9, s[{SA}:{SA+3}], 0 offen offset:{32*ft}' + OUTF)
        return
    T = 84
    a.e(f'v_pk_add_f32 v[{T}:{T+1}], v[{X}:{X+1}], v[{X+2}:{X+3}]'); a.e(f'v_pk_mul_f32 v[{T+2}:{T+3}], v[{X}:{X+1}], v[{X}:{X+1}]')
    for j in range(1, 10):
        if j > 1: a.e(f'v_pk_add_f32 v[{T}:{T+1}], v[{T}:{T+1}], v[{X+2*j}:{X+2*j+1}]')
        a.e(f'v_pk_fma_f32 v[{T+2}:{T+3}], v[{X+2*j}:{X+2*j+1}], v[{X+2*j}:{X+2*j+1}], v[{T+2}:{T+3}]')
    a.e(f'v_add_f32 v{T}, v{T}, v{T+1}'); a.e(f'v_add_f32 v{T+1}, v{T+2}, v{T+3}')
    def redg(r0, cnt, tmp):
        for sw in ('v_permlane16_swap_b32', 'v_permlane32_swap_b32'):
            for j in range(cnt): a.e(f'v_mov_b32 v{tmp+j}, v{r0+j}')
            for j in range(cnt): a.e(f'{sw} v{r0+j}, v{tmp+j}')
            for j in range(cnt): a.e(f'v_add_f32 v{r0+j}, v{r0+j}, v{tmp+j}')
    redg(T, 2, 120)
    a.e(f'v_mov_b32 v{T+2}, s{sN}'); a.e(f'v_mov_b32 v{T+3}, 0')
    a.e('s_lshl_b32 s53, s58, 11'); a.e(f's_add_u32 s53, s53, {hex(EX_OFF)}')
    a.e(f's_lshl_b32 s49, s{sC}, 8'); a.e('s_add_u32 s49, s49, s53'); a.e(f'v_lshl_add_u32 v9, v{vI}, 4, s49')
    a.e('s_mov_b64 exec, 0xffff')
    M.stores([f'buffer_store_dwordx4 v[{T}:{T+3}], v9, s[{WS}:{WS+3}], 0 offen'])
    a.e('s_mov_b64 exec, -1')
    Yf = 88
    for ft in range(5):
        for h in range(2):
            a.e(f'v_lshlrev_b32 v{Yf+4*ft+2*h}, 16, v{YR+2*ft+h}'); a.e(f'v_and_b32 v{Yf+4*ft+2*h+1}, s52, v{YR+2*ft+h}')
    a.e(f'v_lshlrev_b32 v9, 9, v{vG}'); a.e(f'v_lshl_add_u32 v9, v{vI}, 4, v9'); a.e('v_add_u32 v9, s53, v9')
    M.stamp(P + 'c_expub')
    Lp = M.lab('EXPOLL'); Lg = M.lab('EXGOT')
    a.e('s_mov_b32 s54, 0x8000')
    a.label(Lp)
    a.e(f'buffer_load_dwordx3 v[108:110], v9, s[{WS}:{WS+3}], 0 offen sc1'); a.e(f'buffer_load_dwordx3 v[112:114], v9, s[{WS}:{WS+3}], 0 offen offset:256 sc1')
    a.e('s_waitcnt vmcnt(0)')
    a.e(f'v_cmp_ne_u32 vcc, s{sN}, v110'); a.e(f'v_cmp_ne_u32 s[56:57], s{sN}, v114'); a.e('s_or_b64 vcc, vcc, s[56:57]')
    a.e(f's_cbranch_vccz {Lg}')
    a.e('s_sub_u32 s54, s54, 1'); a.e('s_cmp_lg_u32 s54, 0'); a.e(f's_cbranch_scc1 {Lp}')
    a.label(Lg)
    a.reset_counts()
    M.stamp(P + 'd_exgot')
    a.e(f'v_add_f32 v{T}, v108, v112'); a.e(f'v_add_f32 v{T+1}, v109, v113')
    redg(T, 2, 120)
    a.e(f'v_mul_f32 v{T}, {hex(f32(-1.0/640))}, v{T}')
    a.e(f'v_mov_b32 v{T+2}, {hex(f32(1e-5))}'); a.e(f'v_fmac_f32 v{T+2}, {hex(f32(1.0/640))}, v{T+1}')
    a.e(f'v_fma_f32 v{T+2}, -v{T}, v{T}, v{T+2}'); a.e(f'v_rsq_f32 v{T+2}, v{T+2}')
    for j in range(10): a.e(f'v_pk_add_f32 v[{ACC+2*j}:{ACC+2*j+1}], v[{X+2*j}:{X+2*j+1}], v[{T}:{T+1}] op_sel_hi:[1,0]')
    for j in range(10): a.e(f'v_pk_mul_f32 v[{Yf+2*j}:{Yf+2*j+1}], v[{Yf+2*j}:{Yf+2*j+1}], v[{T+2}:{T+3}] op_sel_hi:[1,0]')
    for j in range(10): a.e(f'v_pk_fma_f32 v[{X+2*j}:{X+2*j+1}], v[{ACC+2*j}:{ACC+2*j+1}], v[{Yf+2*j}:{Yf+2*j+1}], v[{X+2*j}:{X+2*j+1}]')
    for j in range(10): a.e(f'v_cvt_pk_bf16_f32 v{vX3+j}, v{X+2*j}, v{X+2*j+1}')
    a.e(f's_mul_i32 s54, s{sC}, 5'); a.e('s_lshr_b32 s54, s54, 1'); a.e('s_lshl_b32 s54, s54, 10'); a.e('s_add_u32 s54, s54, s59')
    a.e(f'v_add_u32 v9, s54, v{vL16}')
    def x3_stores(voff, soff, emit):
        Lo = M.lab('X3ODD'); Le = M.lab('X3END')
        a.e(f's_bitcmp1_b32 s{sC}, 0'); a.e(f's_cbranch_scc1 {Lo}')
        emit([f'buffer_store_dwordx4 v[{vX3}:{vX3+3}], {voff}, s[{WS}:{WS+3}], {soff} offen',
              f'buffer_store_dwordx4 v[{vX3+4}:{vX3+7}], {voff}, s[{WS}:{WS+3}], {soff} offen offset:1024',
              f'buffer_store_dwordx2 v[{vX3+8}:{vX3+9}], {voff}, s[{WS}:{WS+3}], {soff} offen offset:2048'], False)
        a.e(f's_branch {Le}')
        a.label(Lo)
        emit([f'buffer_store_dwordx2 v[{vX3}:{vX3+1}], {voff}, s[{WS}:{WS+3}], {soff} offen offset:8',
              f'buffer_store_dwordx4 v[{vX3+2}:{vX3+5}], {voff}, s[{WS}:{WS+3}], {soff} offen offset:1024',
              f'buffer_store_dwordx4 v[{vX3+6}:{vX3+9}], {voff}, s[{WS}:{WS+3}], {soff} offen offset:2048'], True)
        a.label(Le)
    a.e(f's_mov_b32 s55, {hex(X3_OFF)}')
    def emit_dual(L, last):
        saved = list(a.vm); M.stores(L, bulk=("x3sc1" in EXPL))
        if not last: a.vm = saved
    x3_stores('v9', 's55', emit_dual)
    Lh = M.lab('NOHALO')
    a.e('s_mov_b32 s56, 0')
    a.e(f's_and_b32 s49, s58, 7'); a.e('s_cmp_lg_u32 s49, 7'); a.e(f's_cbranch_scc1 {Lh}')
    a.e('s_lshr_b32 s50, s58, 3'); a.e('s_add_u32 s50, s50, 1')
    a.e('s_mul_i32 s51, s50, 20480'); a.e(f's_add_u32 s51, s51, {hex(XH_OFF)}'); a.e('s_sub_u32 s51, s51, s59')
    def emit_sc1(L, last):
        for x in L: a.e(x + ' sc1', count=False)
    x3_stores('v9', 's51', emit_sc1)
    a.e('s_mov_b32 s56, 1')
    a.label(Lh)
    M.stamp(P + 'e_stores')
    a.e('s_cmp_eq_u32 s56, 1'); Lw = M.lab('W3'); Lw2 = M.lab('W0')
    a.e(f's_cbranch_scc1 {Lw}'); a.e('s_waitcnt vmcnt(0)'); a.e(f's_branch {Lw2}'); a.label(Lw); a.e('s_waitcnt vmcnt(3)', count=False); a.label(Lw2)
    a.e('s_barrier')
    a.e(f's_lshl_b32 s58, s{sR64}, 3'); a.e(f's_add_u32 s58, s58, s{sC}')
    L = M.lab('NOFLAG')
    a.e(f's_cmp_lg_u32 s{sW}, 0'); a.e(f's_cbranch_scc1 {L}')
    a.e('s_lshl_b32 s49, s58, 2'); a.e(f's_add_u32 s49, s49, {hex(FLG_OFF + 4*F4)}')
    a.e('v_mov_b32 v8, s49'); a.e(f'v_mov_b32 v9, s{sN}')
    a.e('s_mov_b64 exec, 1')
    M.stores([f'buffer_store_dword v9, v8, s[{WS}:{WS+3}], 0 offen'])
    a.e('s_mov_b64 exec, -1')
    a.label(L)
    Lx = M.lab('NOHFLAG')
    a.e('s_cmp_lg_u32 s56, 1'); a.e(f's_cbranch_scc1 {Lx}')
    a.e('s_waitcnt vmcnt(0)', count=False)
    a.e('s_lshl_b32 s50, s50, 3'); a.e(f's_add_u32 s50, s50, s{sC}'); a.e('s_lshl_b32 s50, s50, 2'); a.e(f's_add_u32 s50, s50, {hex(FLG_OFF + 4*F4H)}')
    a.e('v_mov_b32 v9, s50'); a.e(f'v_mov_b32 v10, s{sN}')
    a.e('s_mov_b64 exec, 1'); a.e(f'buffer_store_dword v10, v9, s[{WS}:{WS+3}], 0 offen sc1', count=False); a.e('s_mov_b64 exec, -1')
    a.label(Lx)
    a.vm = []
    M.stamp(P + 'f_flag')
```

```python
from mcommon import *
from m_p3 import W_addr, W_load, WPRE
from m_p1 import A_dma, A_addr, A_reads, A_compute, nonce, ASZ, B_dma, B_addr, B_finish

CNT_OFF = 163328
CPY = 4160; WSZ = 4 * CPY + 4608; RB = 4 * CPY

def conv_path(M):
    a = M.a
    a.reset_counts()
    a.e(f's_lshr_b32 s65, s{sID}, 4'); a.e('s_lshl_b32 s65, s65, 3'); a.e(f's_and_b32 s49, s{sID}, 7')
    a.e('s_add_u32 s65, s65, s49'); a.e('s_lshl_b32 s65, s65, 1'); a.e(f's_bfe_u32 s49, s{sID}, 0x10003'); a.e('s_add_u32 s65, s65, s49')
    a.e('s_lshl_b32 s66, s65, 2'); a.e(f's_add_u32 s66, s66, s{sW}')
    a.e(f's_mul_i32 s67, s{sW}, {WSZ}')
    a.e('s_lshr_b32 s49, s66, 1'); a.e('s_lshl_b32 s49, s49, 2'); a.e(f's_load_dword s64, s[{pSD}:{pSD+1}], s49')
    M.srd(SA, pK, SZ); M.srd(SB, pV, SZ); M.srd(SC, pSH, 640 * 8)
    A_dma(M, sID, 8, 100000 // 1024 * 1024 + 0, 'A1')
    A_addr(M, sID, 8, 24, 99328, 'A1')
    if 'Bearly' in EXPL: B_dma(M, 120832, vt=16)
    a.e('s_lshl_b32 s49, s66, 12'); a.e(f'v_add_u32 v5, s49, v{vL16}')
    M.stamp('c1_Aissued')
    a.e(f's_add_u32 s63, s67, {RB}')
    a.e('v_mov_b32 v6, 0'); a.e('v_mov_b32 v7, 0')
    a.e(f'v_lshl_add_u32 v14, v{vL}, 3, s63')
    a.e('ds_write_b64 v14, v[6:7] offset:4096', 'z')
    a.e(f'v_add_u32 v14, 1, v{vI}'); a.e('v_and_b32 v15, 3, v14')
    a.e(f'v_mul_u32_u24 v204, {CPY}, v15'); a.e('v_sub_u32 v14, v14, v15')
    a.e('v_lshl_add_u32 v204, v14, 1, v204'); a.e(f'v_lshl_add_u32 v204, v{vG}, 4, v204'); a.e('v_add_u32 v204, s67, v204')
    a.e(f'v_lshlrev_b32 v205, 5, v{vI}'); a.e(f'v_lshlrev_b32 v14, 4, v{vG}'); a.e('v_sub_u32 v205, v14, v205')
    a.e('s_add_u32 s49, s63, 480'); a.e('v_add_u32 v205, s49, v205')
    a.e(f'v_add_u32 v170, s67, v{vL16}')
    a.e('s_waitcnt lgkmcnt(0)')
    a.lg = []
    nonce(M)
    W_addr(M)
    a.e('s_and_b32 s49, s66, 1'); a.e('s_lshl_b32 s49, s49, 4'); a.e('s_lshr_b32 s64, s64, s49'); a.e('s_and_b32 s64, s64, 0xffff')
    a.e(f'v_sub_u32 v176, 15, v{vI}'); a.e('v_lshrrev_b32 v177, 3, v176'); a.e('v_and_b32 v176, 7, v176')
    a.e('v_and_b32 v178, 1, v176'); a.e('v_lshlrev_b32 v178, 4, v178'); a.e('v_lshlrev_b32 v178, v178, s64')
    a.e('v_lshrrev_b32 v176, 1, v176'); a.e('v_mov_b32 v179, 64')
    a.e(f'v_cmp_eq_u32 vcc, v177, v{vG}'); a.e('v_cndmask_b32 v176, v179, v176, vcc')
    for q in range(4):
        a.e(f'v_cmp_eq_u32 vcc, {q}, v176'); a.e(f'v_cndmask_b32 v{200+q}, 0, v178, vcc')
    a.e(f'v_lshrrev_b32 v14, 1, v{vL}'); a.e(f'v_mul_u32_u24 v14, {CPY}, v14')
    a.e(f'v_and_b32 v15, 1, v{vL}'); a.e('v_lshl_add_u32 v14, v15, 4, v14'); a.e('v_add_u32 v207, s67, v14')
    a.e('v_lshrrev_b32 v14, 3, v0'); a.e('v_and_b32 v15, 7, v0')
    a.e(f'v_lshlrev_b32 v206, 4, v0'); a.e(f'v_add_u32 v206, {hex(ST0_OFF)}, v206')
    a.e('v_mul_u32_u24 v199, 20480, v14'); a.e('v_lshl_add_u32 v199, v15, 4, v199')
    a.e('s_lshl_b32 s49, s65, 7'); a.e('v_add_u32 v199, s49, v199')
    a.wait_vm('A1')
    a.e('s_barrier')
    M.stamp('c2_Alanded')
    if 'Bearly' not in EXPL and 'Blate' not in EXPL: B_dma(M, 120832, vt=16)
    a.e('v_add_u32 v9, 65536, v9'); a.e('v_add_u32 v10, 65536, v10')
    A_reads(M, 8, 24, 99328 - 65536, 'Ar'); a.wait_lg('Ar')
    A_compute(M, 8, 24, 56)
    M.srd(SC, pSK, SZ)
    KRAW = 141312
    a.e(f's_mul_i32 s62, s{sW}, 4224'); a.e(f's_add_u32 s62, s62, {KRAW}'); a.e('s_mov_b32 m0, s62'); a.e('s_nop 0')
    for p in range(4):
        a.e(f'buffer_load_dwordx4 v5, s[{SC}:{SC+3}], 0 offen offset:{1024*p} lds', 'k')
    M.set_flag(sID, F1, 14, 'Ast')
    M.stamp('c3_F1set')
    if 'Blate' in EXPL: B_dma(M, 120832, vt=16)
    B_addr(M, 120832)
    a.e(f'v_add_u32 v17, s62, v{vL16}')
    if 'Blate' in EXPL:
        a.wait_vm('B'); a.e('s_barrier')
    B_finish(M, 120832)
    DE = 128; F = 152
    a.wait_vm('k')
    for p in range(4):
        a.e(f'ds_read_b128 v[{DE+6*p}:{DE+6*p+3}], v17 offset:{1024*p}', f'k{p}')
        a.e(f'ds_read_b64 v[{DE+6*p+4}:{DE+6*p+5}], v17 offset:{1024*p+16}', f'k{p}')
    O1 = 180
    for p in range(4):
        a.wait_lg(f'k{p}')
        d = DE + 6 * p; f = F + 4 * p
        if p == 0:
            a.e(f'v_readfirstlane_b32 s50, v{d}'); a.e(f'v_readfirstlane_b32 s51, v{d+1}')
        o1 = O1 + 8 * (p & 1); o3 = o1 + 4
        a.e(f'ds_write_b128 v170, v[{d}:{d+3}] offset:{32+1024*p}', 'cp')
        for j in range(4): a.e(f'v_mov_b32 v{f+j}, v{d+1+j}')
        for j in range(4): a.e(f'v_alignbit_b32 v{o1+j}, v{d+1+j}, v{d+j}, 16')
        for j in range(4): a.e(f'v_alignbit_b32 v{o3+j}, v{d+2+j}, v{d+1+j}, 16')
        a.e(f'ds_write_b128 v170, v[{f}:{f+3}] offset:{2*CPY+32+1024*p}', 'cp')
        a.e(f'ds_write_b128 v170, v[{o1}:{o1+3}] offset:{CPY+32+1024*p}', 'cp')
        a.e(f'ds_write_b128 v170, v[{o3}:{o3+3}] offset:{3*CPY+32+1024*p}', 'cp')
    a.e('s_lshl_b32 s52, s50, 16'); a.e('s_lshr_b32 s53, s50, 16'); a.e('s_lshl_b32 s54, s51, 16'); a.e('s_or_b32 s53, s53, s54')
    a.e('v_mov_b32 v13, v199')
    for j in range(4): a.e(f'v_mov_b32 v{196+j}, 0')
    a.e('v_writelane_b32 v198, s52, 7')
    a.e('v_writelane_b32 v199, s52, 3'); a.e('v_writelane_b32 v199, s50, 5'); a.e('v_writelane_b32 v199, s53, 7')
    a.e('s_mov_b64 exec, 0xff'); a.e('ds_write_b128 v207, v[196:199]', 'cp'); a.e('s_mov_b64 exec, -1')
    a.e('s_lshr_b32 s58, s65, 4'); a.e('s_lshl_b32 s58, s58, 5')
    a.wait_vm('Bst')
    a.e('s_barrier')
    Lnb = M.lab('NOFB')
    a.e(f's_cmp_ge_u32 s{sID}, {NB}'); a.e(f's_cbranch_scc1 {Lnb}')
    M.write_flag(sID, FB, 14)
    a.label(Lnb)
    M.stamp('c3b_copies')
    M.poll(58, F1, 32, 16)
    M.stamp('c4_F1polled')
    a.e('s_mov_b32 m0, s63'); a.e(f's_mov_b32 s49, {hex(R_OFF)}')
    for p in range(4):
        a.e(f'buffer_load_dwordx4 v5, s[{WS}:{WS+3}], s49 offen offset:{1024*p} sc1 lds', 'R')
    a.wait_vm('R')
    a.e('s_waitcnt lgkmcnt(0)')
    M.stamp('c5_Rlanded')
    ACC = 16; BUF = [64, 128]
    def loads(rho):
        b = BUF[rho & 1]; L = []
        L.append([f'ds_read_b64 v[{b}:{b+1}], v204 offset:{64*rho}', f'ds_read_b64 v[{b+2}:{b+3}], v204 offset:{64*rho+8}'])
        for z in range(8): L.append([f'ds_read_b128 v[{b+32+4*z}:{b+35+4*z}], v205 offset:{64*rho+512*(7-z)}'])
        for q in range(1, 8):
            L.append([f'ds_read_b64 v[{b+4*q}:{b+4*q+1}], v204 offset:{64*rho+512*q}', f'ds_read_b64 v[{b+4*q+2}:{b+4*q+3}], v204 offset:{64*rho+512*q+8}'])
        return [x for l in L for x in l]
    def fix(s): return s
    for ins in loads(0): a.e(fix(ins))
    a.e('s_waitcnt lgkmcnt(0)')
    b = BUF[0]
    for i in range(8):
        a.e(f'v_mfma_f32_16x16x32_bf16 v[{ACC+4*i}:{ACC+4*i+3}], v[200:203], v[{b+32+4*i}:{b+35+4*i}], 0')
    XQ = 208
    for rho in range(8):
        b = BUF[rho & 1]
        nxt = [fix(x) for x in loads(rho + 1)] if rho < 7 else []
        mf = [(q, i) for q in range(8) for i in range(q, 8)]
        li = 0
        if rho == 2:
            nlB = M.poll_addr(None, FB, NB, 8)
            M.poll_issue(nlB, 8, tag='fb')
        if rho == 4:
            Lok = M.lab('FBOK')
            a.wait_vm('fb')
            M.poll_check(nlB, 8, Lok)
            M.poll_loop(nlB, 8, Lok, sleep=2)
            a.label(Lok)
            for j in range(4):
                a.e(f's_mov_b32 s49, {hex(XQ0_OFF + 20480*32*j)}'); a.e(f's_mov_b32 s50, {4096*j}')
                a.e(f'buffer_load_dwordx4 v[{XQ+8*j}:{XQ+8*j+3}], v13, s[{WS}:{WS+3}], s49 offen sc1', 'xq')
                a.e(f'buffer_load_dwordx4 v[{XQ+8*j+4}:{XQ+8*j+7}], v206, s[{WS}:{WS+3}], s50 offen sc1', 'xq')
        if rho == (4 if 'convW' in EXPL else 7):
            nlC = M.poll_addr(None, FC, NC, 240)
            M.poll_issue(nlC, 240, tag='fc')
        wl = []
        if rho == 5 and 'convW' in EXPL:
            a.wait_vm('fc')
            a.e(f'v_cmp_ne_u32 vcc, s{sN}, v242'); a.e(f'v_cmp_ne_u32 s[52:53], s{sN}, v243'); a.e('s_or_b64 vcc, vcc, s[52:53]')
            a.e('s_cmp_eq_u64 vcc, 0'); a.e('s_cselect_b32 s62, 1, 0'); a.e(f's_cselect_b32 s49, 0, {hex(OOB)}')
            a.e('v_or_b32 v252, s49, v250'); a.e('v_or_b32 v253, s49, v251')
            WQ = [(ks, f) for ks in range(WPRE) for f in range(2)]
        if rho >= 5 and 'convW' in EXPL:
            cnt = {5: 10, 6: 9, 7: 9}[rho]
            wl = [WQ.pop(0) for _ in range(min(cnt, len(WQ)))]
        for n, (q, i) in enumerate(mf):
            z = i - q
            a.e(f'v_mfma_f32_16x16x32_bf16 v[{ACC+4*i}:{ACC+4*i+3}], v[{b+4*q}:{b+4*q+3}], v[{b+32+4*z}:{b+35+4*z}], v[{ACC+4*i}:{ACC+4*i+3}]')
            if li < len(nxt) and n < 30:
                a.e(nxt[li]); li += 1
            if wl and n % 4 == 3 or (wl and n == 34):
                ks_, f_ = wl.pop(0)
                if f_ == 0: a.e(f's_mov_b32 s59, {122880*ks_}')
                a.e(f'buffer_load_dwordx4 a[{8*ks_+4*f_}:{8*ks_+4*f_+3}], v{252+f_}, s[{WS}:{WS+3}], s59 offen sc1', 'wpre')
        assert not wl, wl
        if rho < 7: a.e('s_waitcnt lgkmcnt(0)')
    M.stamp('c6_mainend')
    P = 64
    for i in range(8):
        a.e(f'v_cvt_pk_bf16_f32 v{P+2*i}, v{ACC+4*i}, v{ACC+4*i+1}'); a.e(f'v_cvt_pk_bf16_f32 v{P+2*i+1}, v{ACC+4*i+2}, v{ACC+4*i+3}')
    a.e(f'v_mul_u32_u24 v8, 144, v{vG}'); a.e(f'v_lshl_add_u32 v8, v{vI}, 3, v8'); a.e('v_add_u32 v8, s67, v8')
    for i in range(8): a.e(f'ds_write_b64 v8, v[{P+2*i}:{P+2*i+1}] offset:{576*i}', 'yw')
    a.e('v_lshrrev_b32 v9, 7, v0'); a.e('v_mul_u32_u24 v9, 576, v9')
    a.e('v_bfe_u32 v10, v0, 1, 2'); a.e('v_mul_u32_u24 v10, 144, v10'); a.e('v_add_u32 v9, v9, v10')
    a.e('v_bfe_u32 v10, v0, 3, 4'); a.e('v_lshl_add_u32 v9, v10, 3, v9')
    a.e('v_and_b32 v10, 1, v0'); a.e('v_lshl_add_u32 v9, v10, 2, v9')
    a.e(f'v_add_u32 v10, {2*WSZ}, v9')
    a.e('s_waitcnt lgkmcnt(0)')
    a.e('s_barrier')
    YR = 96
    for j in range(4):
        for c in range(4):
            a.e(f'ds_read_b32 v{YR+4*j+c}, v{9 + (c>>1)} offset:{(c&1)*WSZ + 1152*j}', f'yr{j}')
    a.e('s_mov_b32 s52, 0xffff0000'); a.e('s_mov_b32 s53, 0x05040100'); a.e('s_mov_b32 s54, 0x07060302')
    a.wait_vm('xq')
    M.stamp('c7_epi_rd')
    for j in range(4):
        a.wait_lg(f'yr{j}')
        x = XQ + 8 * j; y = YR + 4 * j; t = 128 + 32 * (j & 1)
        for c in range(4):
            a.e(f'v_lshlrev_b32 v{t+c}, 16, v{y+c}'); a.e(f'v_and_b32 v{t+4+c}, s52, v{y+c}')
        a.e(f'v_perm_b32 v{t+24}, v{y+1}, v{y}, s53'); a.e(f'v_perm_b32 v{t+25}, v{y+3}, v{y+2}, s53')
        a.e(f'v_perm_b32 v{t+26}, v{y+1}, v{y}, s54'); a.e(f'v_perm_b32 v{t+27}, v{y+3}, v{y+2}, s54')
        for k in range(2):
            xx = t + 8; nn = t + 12; st = x + 4 + 2 * k
            for h in range(2):
                a.e(f'v_lshlrev_b32 v{xx+2*h}, 16, v{x+2*k+h}'); a.e(f'v_and_b32 v{xx+2*h+1}, s52, v{x+2*k+h}')
            for h in range(2):
                a.e(f'v_pk_add_f32 v[{nn+2*h}:{nn+2*h+1}], v[{xx+2*h}:{xx+2*h+1}], v[{st}:{st+1}] op_sel_hi:[1,0]')
                a.e(f'v_pk_mul_f32 v[{t+4*k+2*h}:{t+4*k+2*h+1}], v[{t+4*k+2*h}:{t+4*k+2*h+1}], v[{st}:{st+1}] op_sel:[0,1] op_sel_hi:[1,1]')
            for h in range(2):
                a.e(f'v_pk_fma_f32 v[{xx+2*h}:{xx+2*h+1}], v[{nn+2*h}:{nn+2*h+1}], v[{t+4*k+2*h}:{t+4*k+2*h+1}], v[{xx+2*h}:{xx+2*h+1}]')
            a.e(f'v_cvt_pk_bf16_f32 v{t+16+2*k}, v{xx}, v{xx+1}'); a.e(f'v_cvt_pk_bf16_f32 v{t+17+2*k}, v{xx+2}, v{xx+3}')
        a.e(f's_mov_b32 s49, {hex(X1_OFF + 20480*32*j)}'); a.e(f's_mov_b32 s50, {hex(Y_OFF + 20480*32*j)}')
        a.e(f'buffer_store_dwordx4 v[{t+16}:{t+19}], v13, s[{WS}:{WS+3}], s49 offen sc1')
        a.e(f'buffer_store_dwordx4 v[{t+24}:{t+27}], v13, s[{WS}:{WS+3}], s50 offen sc1')
    M.stamp('c8_stores')
    M.set_flag(sID, F2, 8)
    M.stamp('c9_F2set')
    Lok = M.lab('FCOK'); Lskip = M.lab('WDONE')
    if 'convW' in EXPL:
        a.e('s_cmp_eq_u32 s62, 1'); a.e(f's_cbranch_scc1 {Lskip}')
    else:
        M.poll_check(nlC, 240, Lok)
    M.poll_loop(nlC, 240, Lok, sleep=8)
    a.label(Lok)
    for ks in range(WPRE): W_load(M, ks, None)
    a.label(Lskip)
    a.reset_counts()
```

```python
from mcommon import *
CSC = '' if 'plainC' in EXPL else ' sc1'

AK = 0; AV = 12288; ASZ = 20480
def A_dma(M, s_tile, vb, lds, tag, void_sgpr=None):
    a = M.a
    a.e(f's_and_b32 s49, s{s_tile}, 31'); a.e('s_lshl_b32 s49, s49, 6')
    a.e(f's_lshr_b32 s50, s{s_tile}, 5'); a.e('s_lshl_b32 s51, s50, 7')
    a.e(f'v_lshrrev_b32 v{vb+1}, 3, v{vL}'); a.e(f'v_and_b32 v{vb+2}, 7, v{vL}')
    for m in range(3):
        a.e(f's_add_u32 s52, s{sW}, {4*m}'); a.e('s_and_b32 s53, s52, 7'); a.e('s_lshl_b32 s54, s52, 3')
        a.e(f'v_xor_b32 v{vb+3}, s53, v{vb+2}'); a.e(f'v_lshl_add_u32 v{vb+3}, v{vb+3}, 4, s51')
        a.e(f'v_add_u32 v{vb+4}, s54, v{vb+1}')
        a.e(f's_sub_u32 s55, s49, 3'); a.e(f'v_add_u32 v{vb+5}, s55, v{vb+4}')
        a.e(f'v_mad_i32_i24 v{vb+6+m}, v{vb+5}, v{vb+9}, v{vb+3}') if False else None
        a.e(f'v_mul_i32_i24 v{vb+6+m}, 1280, v{vb+5}'); a.e(f'v_add_u32 v{vb+6+m}, v{vb+6+m}, v{vb+3}')
        a.e(f'v_cmp_gt_u32 vcc, 67, v{vb+4}'); a.e(f'v_cmp_le_i32 s[56:57], 0, v{vb+5}'); a.e('s_and_b64 vcc, vcc, s[56:57]')
        if void_sgpr is not None: a.e(f's_and_b64 vcc, vcc, s[{void_sgpr}:{void_sgpr+1}]')
        a.e(f'v_mov_b32 v{vb+9}, {hex(OOB)}'); a.e(f'v_cndmask_b32 v{vb+6+m}, v{vb+9}, v{vb+6+m}, vcc')
        a.e('s_lshl_b32 s52, s52, 10'); a.e(f's_add_u32 m0, s52, {lds + AK}')
        a.e('s_nop 0')
        a.e(f'buffer_load_dwordx4 v{vb+6+m}, s[{SA}:{SA+3}], 0 offen lds', tag)
    for m in range(2):
        a.e(f's_add_u32 s52, s{sW}, {4*m}'); a.e('s_lshl_b32 s54, s52, 3')
        a.e(f'v_xor_b32 v{vb+3}, s52, v{vb+2}'); a.e(f'v_lshl_add_u32 v{vb+3}, v{vb+3}, 4, s51')
        a.e('s_add_u32 s54, s54, s49'); a.e(f'v_add_u32 v{vb+5}, s54, v{vb+1}')
        a.e(f'v_mul_u32_u24 v{vb+6+m}, 1280, v{vb+5}'); a.e(f'v_add_u32 v{vb+6+m}, v{vb+6+m}, v{vb+3}')
        if void_sgpr is not None: a.e(f'v_cndmask_b32 v{vb+6+m}, v{vb+9}, v{vb+6+m}, s[{void_sgpr}:{void_sgpr+1}]')
        a.e('s_lshl_b32 s52, s52, 10'); a.e(f's_add_u32 m0, s52, {lds + AV}')
        a.e('s_nop 0')
        a.e(f'buffer_load_dwordx4 v{vb+6+m}, s[{SB}:{SB+3}], 0 offen lds', tag)

def A_addr(M, s_tile, vb, d, lds, tag, void_sgpr=None):
    a = M.a
    a.e(f's_and_b32 s49, s{s_tile}, 31'); a.e('s_lshl_b32 s49, s49, 6'); a.e(f's_lshr_b32 s50, s{s_tile}, 5')
    a.e(f'v_and_b32 v{vb+3}, 7, v0'); a.e(f'v_lshrrev_b32 v{vb+4}, 3, v0')
    a.e('s_lshl_b32 s51, s50, 5'); a.e(f'v_add_u32 v{vb+5}, s51, v{vb+4}')
    a.e(f'v_lshlrev_b32 v{vb+6}, 4, v{vb+5}')
    if void_sgpr is not None:
        a.e(f'v_mov_b32 v{vb+7}, {hex(OOB)}'); a.e(f'v_cndmask_b32 v{vb+6}, v{vb+7}, v{vb+6}, s[{void_sgpr}:{void_sgpr+1}]')
    a.e(f'buffer_load_dwordx4 v[{d}:{d+3}], v{vb+6}, s[{SC}:{SC+3}], 0 offen', tag)
    a.e(f'v_lshl_add_u32 v{vb}, v{vb+3}, 3, s49'); a.e(f'v_lshlrev_b32 v{vb}, 1, v{vb}'); a.e(f'v_sub_u32 v{vb}, {4080 + R_OFF}, v{vb}')
    a.e(f'v_lshl_add_u32 v{vb}, v{vb+5}, 13, v{vb}')
    if void_sgpr is not None: a.e(f'v_cndmask_b32 v{vb}, v{vb+7}, v{vb}, s[{void_sgpr}:{void_sgpr+1}]')
    a.e(f'v_lshrrev_b32 v{vb+6}, 2, v{vb+4}'); a.e(f'v_and_b32 v{vb+4}, 3, v{vb+4}'); a.e(f'v_lshlrev_b32 v{vb+4}, 2, v{vb+4}')
    a.e(f'v_xor_b32 v{vb+1}, v{vb+6}, v{vb+3}'); a.e(f'v_lshl_add_u32 v{vb+1}, v{vb+1}, 4, v{vb+4}'); a.e(f'v_lshl_add_u32 v{vb+1}, v{vb+3}, 10, v{vb+1}')
    a.e(f'v_add_u32 v{vb+3}, 1, v{vb+3}'); a.e(f'v_and_b32 v{vb+5}, 7, v{vb+3}')
    a.e(f'v_xor_b32 v{vb+2}, v{vb+6}, v{vb+5}'); a.e(f'v_lshl_add_u32 v{vb+2}, v{vb+2}, 4, v{vb+4}'); a.e(f'v_lshl_add_u32 v{vb+2}, v{vb+3}, 10, v{vb+2}')

def A_reads(M, vb, d, lds, tag):
    a = M.a
    for j in range(11):
        if j < 8: a.e(f'ds_read_b32 v{d+4+j}, v{vb+1} offset:{lds + AK + 128*j}', tag)
        else: a.e(f'ds_read_b32 v{d+4+j}, v{vb+2} offset:{lds + AK + 128*(j-8)}', tag)
    for j in range(8): a.e(f'ds_read_b32 v{d+15+j}, v{vb+1} offset:{lds + AV + 128*j}', tag)

def A_compute(M, vb, d, t):
    a = M.a
    a.e('s_mov_b32 s49, 0xffff0000')
    SP = t; KP = t + 8; U = t + 30; O = t + 46
    a.e(f'v_lshlrev_b32 v{SP+0}, 16, v{d+0}'); a.e(f'v_lshlrev_b32 v{SP+1}, 16, v{d+2}')
    a.e(f'v_and_b32 v{SP+2}, s49, v{d+0}');    a.e(f'v_and_b32 v{SP+3}, s49, v{d+2}')
    a.e(f'v_lshlrev_b32 v{SP+4}, 16, v{d+1}'); a.e(f'v_lshlrev_b32 v{SP+5}, 16, v{d+3}')
    a.e(f'v_and_b32 v{SP+6}, s49, v{d+1}');    a.e(f'v_and_b32 v{SP+7}, s49, v{d+3}')
    for j in range(11):
        a.e(f'v_lshlrev_b32 v{KP+2*j}, 16, v{d+4+j}'); a.e(f'v_and_b32 v{KP+2*j+1}, s49, v{d+4+j}')
    for i in range(8):
        a.e(f'v_pk_mul_f32 v[{U+2*i}:{U+2*i+1}], v[{KP+2*(i+3)}:{KP+2*(i+3)+1}], v[{SP}:{SP+1}]')
    for m in range(1, 4):
        for i in range(8):
            a.e(f'v_pk_fma_f32 v[{U+2*i}:{U+2*i+1}], v[{KP+2*(i+3-m)}:{KP+2*(i+3-m)+1}], v[{SP+2*m}:{SP+2*m+1}], v[{U+2*i}:{U+2*i+1}]')
    for i in range(8):
        a.e(f'v_lshlrev_b32 v{KP+2*i}, 16, v{d+15+i}'); a.e(f'v_and_b32 v{KP+2*i+1}, s49, v{d+15+i}')
    for i in range(8):
        a.e(f'v_pk_mul_f32 v[{U+2*i}:{U+2*i+1}], v[{U+2*i}:{U+2*i+1}], v[{KP+2*i}:{KP+2*i+1}]')
    for c in range(2):
        for q in range(4):
            a.e(f'v_cvt_pk_bf16_f32 v{O+4*c+q}, v{U+2*(7-2*q)+c}, v{U+2*(6-2*q)+c}')
    a.e(f'v_add_u32 v{vb+3}, 4096, v{vb}')
    a.e(f'buffer_store_dwordx4 v[{O}:{O+3}], v{vb}, s[{WS}:{WS+3}], 0 offen sc1', 'Ast')
    a.e(f'buffer_store_dwordx4 v[{O+4}:{O+7}], v{vb+3}, s[{WS}:{WS+3}], 0 offen sc1', 'Ast')

def B_dma(M, RAW, vt=9):
    a = M.a
    M.srd(SA, pQ, SZ)
    a.e(f's_lshl_b32 s59, s{sW}, 10')
    a.e(f's_mul_i32 s61, s{sID}, 20480'); a.e(f's_cmp_ge_u32 s{sID}, 128'); a.e(f's_cselect_b32 s61, {hex(OOB)}, s61')
    a.e('s_add_u32 s61, s61, s59'); a.e(f'v_add_u32 v{vt}, s61, v{vL16}')
    for m in range(5):
        a.e(f's_add_u32 m0, s59, {RAW + 4096*m}'); a.e(f's_mov_b32 s49, {4096*m}')
        a.e(f'buffer_load_dwordx4 v{vt}, s[{SA}:{SA+3}], s49 offen lds', 'B')

def B_addr(M, RAW):
    a = M.a
    a.e('v_lshrrev_b32 v12, 4, v0'); a.e('v_mul_u32_u24 v10, 1280, v12'); a.e(f'v_lshl_add_u32 v10, v{vI}, 4, v10'); a.e(f'v_add_u32 v10, {RAW}, v10')
    a.e('v_and_b32 v11, 7, v0'); a.e('v_mul_u32_u24 v11, 2560, v11'); a.e('v_lshrrev_b32 v8, 3, v0'); a.e('v_lshl_add_u32 v11, v8, 3, v11'); a.e(f'v_add_u32 v11, {RAW}, v11')
    a.e(f's_mul_i32 s61, s{sID}, 20480'); a.e(f's_add_u32 s61, s61, {hex(XQ0_OFF)}'); a.e(f's_cmp_ge_u32 s{sID}, 128'); a.e(f's_cselect_b32 s61, {hex(OOB)}, s61')
    a.e('v_lshl_add_u32 v8, v0, 4, s61')
    a.e(f's_lshl_b32 s61, s{sID}, 7'); a.e(f's_add_u32 s61, s61, {hex(ST0_OFF)}'); a.e(f's_cmp_ge_u32 s{sID}, 128'); a.e(f's_cselect_b32 s61, {hex(OOB)}, s61')
    a.e('v_lshl_add_u32 v12, v12, 3, s61'); a.e(f'v_mov_b32 v19, {hex(OOB)}'); a.e(f'v_cmp_eq_u32 vcc, 0, v{vI}'); a.e('v_cndmask_b32 v12, v19, v12, vcc')

def B_finish(M, RAW, D=24, E=44):
    a = M.a
    a.e('s_mov_b32 s60, 0x3f803f80')
    for j in range(5): a.e(f'ds_read_b128 v[{D+4*j}:{D+4*j+3}], v10 offset:{256*j}', 'bs')
    for j in range(5):
        a.e(f'ds_read_b64 v[{E+4*j}:{E+4*j+1}], v11 offset:{256*j}', 'br'); a.e(f'ds_read_b64 v[{E+4*j+2}:{E+4*j+3}], v11 offset:{256*j+1280}', 'br')
    for j in range(4): a.e(f'v_mov_b32 v{20+j}, 0')
    a.wait_lg('bs')
    for j in range(10):
        a.e(f'v_dot2_f32_bf16 v20, v{D+2*j}, s60, v20'); a.e(f'v_dot2_f32_bf16 v21, v{D+2*j}, v{D+2*j}, v21')
        a.e(f'v_dot2_f32_bf16 v22, v{D+2*j+1}, s60, v22'); a.e(f'v_dot2_f32_bf16 v23, v{D+2*j+1}, v{D+2*j+1}, v23')
    a.wait_lg('br')
    for j in range(5):
        a.e(f's_mov_b32 s49, {4096*j}')
        a.e(f'buffer_store_dwordx4 v[{E+4*j}:{E+4*j+3}], v8, s[{WS}:{WS+3}], s49 offen sc1', 'Bst')
    a.e('v_add_f32 v20, v20, v22'); a.e('v_add_f32 v21, v21, v23')
    for n in (8, 4, 2, 1):
        a.e(f'v_add_f32_dpp v20, v20, v20 row_ror:{n} row_mask:0xf bank_mask:0xf'); a.e(f'v_add_f32_dpp v21, v21, v21 row_ror:{n} row_mask:0xf bank_mask:0xf')
    a.e(f'v_mul_f32 v20, {hex(f32(-1.0/640))}, v20')
    a.e(f'v_mov_b32 v22, {hex(f32(1e-5))}'); a.e(f'v_fmac_f32 v22, {hex(f32(1.0/640))}, v21'); a.e('v_fma_f32 v22, -v20, v20, v22'); a.e('v_rsq_f32 v21, v22')
    a.e(f'buffer_store_dwordx2 v[20:21], v12, s[{WS}:{WS+3}], 0 offen sc1', 'Bst')

def divc(a, dst, src, d):
    m = {5: (205, 10), 160: (52429, 23)}[d]
    a.e(f'v_mul_u32_u24 v{dst}, {m[0]}, v{src}'); a.e(f'v_lshrrev_b32 v{dst}, {m[1]}, v{dst}')

def C_role(M, count=True):
    a = M.a
    RAW = 40960
    Lwo = M.lab('CWO'); Lend = M.lab('CEND')
    t0, t1, t2, t3, t4 = 140, 141, 142, 143, 144
    a.e(f's_sub_u32 s49, s{sID}, 160'); a.e('s_lshl_b32 s49, s49, 2'); a.e(f's_add_u32 s49, s49, s{sW}')
    a.e('s_mul_i32 s51, s49, 9363'); a.e('s_lshr_b32 s51, s51, 16')
    a.e('s_mul_i32 s50, s51, 7'); a.e('s_sub_u32 s50, s49, s50'); a.e('s_mul_i32 s50, s50, 3')
    a.e('s_cmp_eq_u32 s50, 18'); a.e(f's_cselect_b32 s64, {hex(OOB)}, 0')
    a.e('s_cmp_ge_u32 s51, 30'); a.e(f's_cbranch_scc1 {Lwo}')
    M.srd(SC, pWQ, 640 * 3840)
    a.e(f'v_lshrrev_b32 v{t0}, 3, v{vL}'); a.e(f'v_and_b32 v{t1}, 3, v{t0}'); a.e(f'v_lshrrev_b32 v{t0}, 2, v{t0}'); a.e(f'v_lshl_add_u32 v{t1}, v{t0}, 4, v{t1}')
    a.e('s_lshl_b32 s52, s50, 5'); a.e(f'v_add_u32 v{t1}, s52, v{t1}'); a.e(f'v_mul_u32_u24 v{t1}, 3840, v{t1}')
    a.e(f'v_and_b32 v{t0}, 7, v{vL}'); a.e(f'v_lshl_add_u32 v{t1}, v{t0}, 4, v{t1}'); a.e('s_lshl_b32 s52, s51, 7'); a.e(f'v_add_u32 v145, s52, v{t1}')
    for g in range(4): a.e(f'v_add_u32 v{146+g}, {4*3840*g}, v145')
    a.e('s_lshl_b32 s52, s51, 4'); a.e(f'v_add_u32 v{t0}, s52, v{vI}')
    a.e('s_mul_i32 s52, s50, 7680'); a.e(f's_add_u32 s52, s52, {hex(CSP_OFF)}'); a.e(f'v_lshl_add_u32 v139, v{t0}, 4, s52')
    a.e('s_mul_i32 s52, s50, 122880'); a.e('s_lshl_b32 s53, s51, 12'); a.e('s_add_u32 s52, s52, s53'); a.e(f's_add_u32 s52, s52, {hex(WF1_OFF)}')
    a.e(f'v_add_u32 v138, s52, v{vL16}')
    a.e('s_mov_b32 s56, 122880'); a.e('s_mov_b32 s57, 7680')
    for p in range(3):
        for g in range(4):
            a.e(f'v_add_u32 v{152+4*p+g}, {32*3840*p}, v{146+g}')
    a.e(f's_branch {Lend}')
    a.label(Lwo)
    a.e('s_sub_u32 s51, s51, 30')
    M.srd(SC, pWO, 640 * 1280)
    a.e('s_mul_i32 s52, s50, 40960'); a.e('s_lshl_b32 s53, s51, 12'); a.e('s_add_u32 s52, s52, s53'); a.e(f's_add_u32 s52, s52, {hex(WF2_OFF)}')
    a.e(f'v_add_u32 v138, s52, v{vL16}')
    a.e(f'v_mov_b32 v139, {hex(OOB)}')
    a.e('s_mov_b32 s56, 40960'); a.e('s_mov_b32 s57, 0')
    a.e(f'v_lshrrev_b32 v145, 3, v{vL}'); a.e(f'v_and_b32 v{t0}, 3, v145'); a.e('v_lshrrev_b32 v145, 2, v145')
    a.e('v_mul_u32_u24 v145, 20, v145'); a.e(f'v_add_u32 v145, v145, v{t0}'); a.e('v_mul_u32_u24 v145, 1280, v145')
    a.e(f'v_and_b32 v{t0}, 7, v{vL}'); a.e(f'v_lshl_add_u32 v145, v{t0}, 4, v145'); a.e('s_lshl_b32 s52, s51, 7'); a.e('v_add_u32 v145, s52, v145')
    for p in range(3):
        for g in range(4):
            a.e(f's_add_u32 s52, s50, {p}'); a.e('s_lshl_b32 s52, s52, 2'); a.e(f's_add_u32 s52, s52, {g}')
            a.e('s_mul_i32 s54, s52, 205'); a.e('s_lshr_b32 s54, s54, 10'); a.e('s_mul_i32 s55, s54, 20'); a.e('s_lshl_b32 s52, s52, 2'); a.e('s_add_u32 s52, s52, s55')
            a.e('s_mul_i32 s52, s52, 1280')
            a.e(f'v_add_u32 v{152+4*p+g}, s52, v145')
    a.label(Lend)
    for g in range(4): a.e(f'v_or_b32 v{160+g}, s64, v{160+g}')
    a.e(f's_cmp_ge_u32 s{sID}, {160 + NC}'); a.e(f's_cselect_b32 s52, {hex(OOB)}, 0')
    for j in range(12): a.e(f'v_or_b32 v{152+j}, s52, v{152+j}')
    a.e(f's_lshl_b32 s52, s{sW}, 14'); a.e(f's_add_u32 s52, s52, {RAW}')
    for p in range(3):
        for g in range(4):
            a.e(f's_add_u32 m0, s52, {4096*p + 1024*g}'); a.e('s_nop 0')
            a.e(f'buffer_load_dwordx4 v{152+4*p+g}, s[{SC}:{SC+3}], 0 offen lds', f'C{p}', count=count)
    a.e(f'v_mov_b32 v{t4}, {hex(OOB)}'); a.e(f'v_cmp_eq_u32 vcc, 0, v{vG}'); a.e(f'v_cndmask_b32 v139, v{t4}, v139, vcc')
    return RAW

def C_finish(M, RAW):
    a = M.a
    STG = 106496
    a.e('s_mov_b32 s54, 0x05040100'); a.e('s_mov_b32 s55, 0x07060302'); a.e('s_mov_b32 s60, 0x3f803f80')
    a.e(f's_mul_i32 s49, s{sW}, 5120'); a.e(f's_add_u32 s49, s49, {STG}')
    a.e(f'v_mul_u32_u24 v6, 80, v{vL}'); a.e('v_add_u32 v6, s49, v6')
    a.e(f'v_bfe_u32 v7, v{vL}, 2, 2'); a.e(f'v_lshl_add_u32 v7, v7, 4, v{vG}'); a.e('v_mul_u32_u24 v7, 80, v7')
    a.e(f'v_and_b32 v10, 3, v{vL}'); a.e('v_lshl_add_u32 v7, v10, 4, v7'); a.e('v_add_u32 v7, s49, v7')
    a.e(f's_lshl_b32 s49, s{sW}, 14'); a.e(f's_add_u32 s49, s49, {RAW}')
    a.e(f'v_lshlrev_b32 v11, 10, v{vG}'); a.e(f'v_lshl_add_u32 v11, v{vI}, 3, v11'); a.e('v_add_u32 v11, s49, v11')
    L = 48; O = 64; CS = O + 16; T = O + 20
    a.e('s_mov_b32 s62, 0'); a.e('s_mov_b32 s59, 0')
    for p in range(3):
        if p == 2:
            a.e('s_or_b32 s62, s62, s64'); a.e('s_or_b32 s59, s59, s64')
        a.wait_vm(f'C{p}')
        M.stamp(f'h6_Cp{p}')
        for e in range(8): a.e(f'ds_read_b64 v[{L+2*e}:{L+2*e+1}], v11 offset:{4096*p + 128*e}', 'Cq')
        a.wait_lg('Cq')
        for cc in range(4):
            for jj in range(4):
                a.e(f'v_perm_b32 v{O+4*cc+jj}, v{L+2*(2*jj+1)+(cc>>1)}, v{L+2*(2*jj)+(cc>>1)}, s{54+(cc&1)}')
        for cc in range(4): a.e(f'ds_write_b128 v6, v[{O+4*cc}:{O+4*cc+3}] offset:{16*cc}', 'Cw')
        for cc in range(4): a.e(f'v_mov_b32 v{CS+cc}, 0')
        for jj in range(4):
            for cc in range(4): a.e(f'v_dot2_f32_bf16 v{CS+cc}, v{O+4*cc+jj}, s60, v{CS+cc}')
        a.e('s_waitcnt lgkmcnt(0)')
        R_ = 96
        for j in range(4): a.e(f'ds_read_b128 v[{R_+4*j}:{R_+4*j+3}], v7 offset:{320*j}', 'Cr')
        for sw in ('v_permlane16_swap_b32', 'v_permlane32_swap_b32'):
            for j in range(4): a.e(f'v_mov_b32 v{T+j}, v{CS+j}')
            for j in range(4): a.e(f'{sw} v{CS+j}, v{T+j}')
            for j in range(4): a.e(f'v_add_f32 v{CS+j}, v{CS+j}, v{T+j}')
        a.e(f'buffer_store_dwordx4 v[{CS}:{CS+3}], v139, s[{WS}:{WS+3}], s59 offen' + CSC, 'Cst')
        a.wait_lg('Cr')
        for j in range(4): a.e(f'buffer_store_dwordx4 v[{R_+4*j}:{R_+4*j+3}], v138, s[{WS}:{WS+3}], s62 offen offset:{1024*j}' + CSC, 'Cst')
        a.e('s_add_u32 s62, s62, s56'); a.e('s_add_u32 s59, s59, s57')
    a.e(f's_sub_u32 s58, s{sID}, 160')
    M.set_flag(58, FC, 130)

def nonce(M):
    a = M.a
    a.e(f's_mul_i32 s{sN}, s{sN}, 0x9E3779B1'); a.e(f's_add_u32 s{sN}, s{sN}, 0x7F4A7C15')
    L = M.lab('NOXID')
    a.e(f's_cmp_lg_u32 s{sW}, 0'); a.e(f's_cbranch_scc1 {L}')
    a.e('s_getreg_b32 s49, hwreg(HW_REG_XCC_ID, 0, 4)')
    a.e(f's_and_b32 s50, s{sID}, 7'); a.e('s_lshl_b32 s50, s50, 5'); a.e(f's_lshr_b32 s51, s{sID}, 3'); a.e('s_add_u32 s50, s50, s51')
    a.e('s_lshl_b32 s50, s50, 3'); a.e(f's_add_u32 s50, s50, {hex(XID_OFF)}')
    a.e('v_mov_b32 v250, s50'); a.e(f'v_mov_b32 v252, s{sN}'); a.e('v_mov_b32 v253, s49')
    a.e('s_mov_b64 exec, 1'); a.e(f'buffer_store_dwordx2 v[252:253], v250, s[{WS}:{WS+3}], 0 offen sc1', count=False); a.e('s_mov_b64 exec, -1')
    a.label(L)

def helper_path(M):
    a = M.a
    a.reset_counts()
    M.srd(SA, pK, SZ); M.srd(SB, pV, SZ); M.srd(SC, pSH, 640 * 8)
    A_dma(M, sID, 8, 0, 'A')
    a.e(f's_add_u32 s65, s{sID}, 96')
    a.e('s_cmp_lt_u32 s65, 320'); a.e('s_cselect_b64 s[66:67], -1, 0')
    A_dma(M, 65, 8, ASZ, 'A', void_sgpr=66)
    A_addr(M, sID, 8, 24, 0, 'A')
    A_addr(M, 65, 16, 48, ASZ, 'A', void_sgpr=66)
    M.stamp('h1_Aissued')
    a.e('s_waitcnt lgkmcnt(0)')
    nonce(M)
    a.wait_vm('A')
    a.e('s_barrier')
    A_reads(M, 8, 24, 0, 'Ar1'); a.wait_lg('Ar1')
    A_reads(M, 16, 48, ASZ, 'Ar2')
    A_compute(M, 8, 24, 72)
    a.wait_lg('Ar2')
    A_compute(M, 16, 48, 72)
    M.stamp('h2_Acomputed')
    M.set_flag(sID, F1, 130, 'Ast')
    Ln = M.lab('NOA2')
    a.e('s_cmp_ge_u32 s65, 320'); a.e(f's_cbranch_scc1 {Ln}')
    M.write_flag(65, F1, 130)
    a.label(Ln)
    M.stamp('h3_F1set')
    Le = M.lab('HELPEND')
    a.e(f's_cmp_ge_u32 s{sID}, {160 + NC}'); a.e(f's_cbranch_scc1 {Le}')
    a.reset_counts()
    raw = C_role(M)
    M.stamp('h4_Cissued')
    C_finish(M, raw)
    M.stamp('h9_FCset')
    a.label(Le)
    M.poll(None, FC, NC, 200, sleep=8)
    from m_p3 import W_addr, W_load, WPRE
    if 'pf' in EXPL.split(','):
        a.e(f's_lshr_b32 s49, s{sID}, 3'); a.e('s_sub_u32 s49, s49, 20'); a.e('s_lshl_b32 s49, s49, 2'); a.e(f's_add_u32 s49, s49, s{sW}')
        a.e(f's_mul_i32 s50, s49, {7*8192}'); a.e(f's_add_u32 s50, s50, {hex(WF1_OFF)}'); a.e(f'v_lshl_add_u32 v8, v{vL}, 7, s50')
        for j in range(7):
            a.e(f's_mov_b32 s51, {8192*j}'); a.e(f'buffer_load_dword v254, v8, s[{WS}:{WS+3}], s51 offen sc1')
        a.e(f's_mul_i32 s50, s49, {3*8192}'); a.e(f's_add_u32 s50, s50, {hex(WF2_OFF)}'); a.e(f'v_lshl_add_u32 v8, v{vL}, 7, s50')
        for j in range(3):
            a.e(f's_mov_b32 s51, {8192*j}'); a.e(f'buffer_load_dword v254, v8, s[{WS}:{WS+3}], s51 offen sc1')
    W_addr(M)
    for ks in range(WPRE): W_load(M, ks, None)
    a.reset_counts()
```

```python
from mcommon import *
import math

SLOT = 8192; NS = 16; DEPTHS = (int(os.environ.get('DEPTH1', '10')), int(os.environ.get('DEPTH2', '10')))
HALO = NS * SLOT
SCR = HALO + 20480
QKV = 102400
ROW = 272
SP_OFF = SCR
CS_OFF = SCR + 1024
vCS = 124
vX3 = 132
ACC = 16
ST = 88
XB = [160, 192]
HX = 144
WPRE = int(os.environ.get('WPRE', '14'))

def W_addr(M):
    a = M.a
    a.e(f'v_lshrrev_b32 v184, 2, v{vI}')
    a.e(f's_mul_i32 s49, s{sW}, 160'); a.e(f's_cmp_eq_u32 s{sW}, 3'); a.e('s_cselect_b32 s49, 325, s49'); a.e('v_add_u32 v185, s49, v184')
    a.e('v_and_b32 v186, 1, v184'); a.e('v_mul_u32_u24 v186, 5, v186'); a.e('v_lshrrev_b32 v187, 1, v184'); a.e('v_mul_u32_u24 v187, 160, v187'); a.e('v_add3_u32 v186, v186, v187, 4')
    a.e(f's_cmp_eq_u32 s{sW}, 2'); a.e('s_cselect_b64 s[52:53], -1, 0'); a.e('v_cndmask_b32 v250, v185, v186, s[52:53]')
    a.e(f's_mul_i32 s49, s{sW}, 160'); a.e('s_add_u32 s50, s49, 5'); a.e(f's_cmp_eq_u32 s{sW}, 2'); a.e('s_cselect_b32 s49, s49, s50'); a.e('v_add_u32 v185, s49, v184')
    a.e('v_mul_u32_u24 v186, 5, v184'); a.e('v_add_u32 v186, 324, v186')
    a.e(f's_cmp_eq_u32 s{sW}, 3'); a.e('s_cselect_b64 s[52:53], -1, 0'); a.e('v_cndmask_b32 v251, v185, v186, s[52:53]')
    a.e(f's_mul_i32 s49, s{sHP}, 10')
    a.e(f'v_lshlrev_b32 v184, 6, v{vG}'); a.e(f'v_and_b32 v185, 3, v{vI}'); a.e('v_lshl_add_u32 v184, v185, 4, v184'); a.e(f'v_add_u32 v184, {hex(WF1_OFF)}, v184')
    for r in (250, 251):
        a.e(f'v_add_u32 v{r}, s49, v{r}'); a.e(f'v_lshl_add_u32 v{r}, v{r}, 8, v184')
    a.e(f'v_cmp_le_u32 vcc, 8, v{vI}'); a.e('s_and_b64 vcc, vcc, s[52:53]')
    a.e(f'v_mov_b32 v187, {hex(OOB)}'); a.e('v_cndmask_b32 v251, v251, v187, vcc')

def W_load(M, ks, tag, r0=250, r1=251, so=49):
    a = M.a
    a.e(f's_mov_b32 s{so}, {122880*ks}')
    a.e(f'buffer_load_dwordx4 a[{8*ks}:{8*ks+3}], v{r0}, s[{WS}:{WS+3}], s{so} offen sc1', tag)
    a.e(f'buffer_load_dwordx4 a[{8*ks+4}:{8*ks+7}], v{r1}, s[{WS}:{WS+3}], s{so} offen sc1', tag)

def p3_pre(M):
    a = M.a
    a.e('v_and_b32 v8, 127, v0'); a.e('v_lshrrev_b32 v9, 7, v0')
    a.e('v_lshrrev_b32 v10, 4, v8'); a.e('v_and_b32 v11, 15, v8')
    a.e('v_and_b32 v12, 1, v10'); a.e('v_cmp_le_u32 vcc, 5, v10'); a.e('v_xor_b32 v13, 1, v12'); a.e('v_cndmask_b32 v12, v12, v13, vcc')
    a.e('v_mov_b32 v13, 0'); a.e('v_cmp_le_u32 vcc, 2, v10'); a.e('v_mov_b32 v14, 640'); a.e('v_cndmask_b32 v13, v13, v14, vcc')
    a.e('v_cmp_le_u32 vcc, 5, v10'); a.e('v_mov_b32 v14, 1280'); a.e('v_cndmask_b32 v13, v13, v14, vcc')
    a.e('v_mul_u32_u24 v12, 20, v12'); a.e('v_add3_u32 v12, v12, v13, v11')
    a.e('v_lshrrev_b32 v13, 3, v11'); a.e('v_mul_u32_u24 v13, 640, v13'); a.e('v_bfe_u32 v14, v11, 2, 1'); a.e('v_mul_u32_u24 v14, 20, v14')
    a.e('v_and_b32 v15, 3, v11'); a.e('v_add3_u32 v13, v13, v14, v15'); a.e('v_add_u32 v13, 16, v13')
    a.e('v_cmp_eq_u32 vcc, 4, v10'); a.e('v_cndmask_b32 v12, v12, v13, vcc')
    a.e('v_lshrrev_b32 v13, 2, v11'); a.e('v_mul_u32_u24 v13, 20, v13'); a.e('v_add_u32 v13, v13, v15'); a.e('v_add_u32 v13, 1296, v13')
    a.e('v_cmp_eq_u32 vcc, 7, v10'); a.e('v_cndmask_b32 v12, v12, v13, vcc')
    a.e(f's_mul_i32 s49, s{sHP}, 40'); a.e('v_add_u32 v12, s49, v12')
    a.e('v_mul_u32_u24 v13, 76800, v9'); a.e('v_lshl_add_u32 v12, v12, 2, v13'); a.e(f'v_add_u32 v12, {hex(CSP_OFF)}, v12')
    a.e('v_cmp_le_u32 vcc, 120, v8'); a.e(f'v_mov_b32 v13, {hex(OOB)}'); a.e('v_cndmask_b32 v12, v12, v13, vcc')
    for j in range(10):
        a.e(f's_mov_b32 s49, {7680*j}')
        a.e(f'buffer_load_dword v{88+j}, v12, s[{WS}:{WS+3}], s49 offen sc1', 'csp')

class Fill:
    def __init__(self, a): self.a = a; self.q = []
    def add(self, *items): self.q.extend(items)
    def pop(self, n=1):
        for _ in range(n):
            if not self.q: return
            x = self.q.pop(0)
            if callable(x): x()
            elif isinstance(x, tuple): self.a.e(x[0], x[1])
            else: self.a.e(x)
    def flush(self):
        while self.q: self.pop()

def p3(M, layer):
    a = M.a
    XOFF = X1_OFF if layer == 1 else X3_OFF
    OOFF = O1_OFF if layer == 1 else O2_OFF
    SOFF = STAT_OFF[layer - 1]
    P = f'p{2*layer+1}'
    DEPTH = DEPTHS[layer - 1]
    if layer == 2: a.reset_counts()
    a.e(f's_lshl_b32 s58, s{sRT}, 3')
    a.e(f's_lshl_b32 s49, s{sW}, 1'); a.e('s_add_u32 s49, s49, s58'); a.e('s_mul_i32 s59, s49, 20480')
    a.e(f's_add_u32 s49, s59, {hex(XOFF)}'); a.e(f'v_add_u32 v5, s49, v{vL16}')
    a.e(f'v_add_u32 v6, {20480 - 1024}, v5')
    a.e(f's_mul_i32 s50, s{sW}, 5120')
    if layer == 1:
        a.e('s_sub_u32 s49, s58, 1'); a.e('s_mul_i32 s49, s49, 20480'); a.e(f's_add_u32 s49, s49, {hex(XOFF)}')
    else:
        a.e(f's_mul_i32 s49, s{sRT}, 20480'); a.e(f's_add_u32 s49, s49, {hex(XH_OFF)}')
    a.e('s_add_u32 s49, s49, s50'); a.e(f's_cmp_eq_u32 s{sRT}, 0'); a.e(f's_cselect_b32 s49, {hex(OOB)}, s49'); a.e(f'v_add_u32 v7, s49, v{vL16}')
    a.e(f's_add_u32 s62, s50, {HALO}')
    a.e(f's_and_b32 s49, s{sHP}, 7'); a.e('s_add_u32 s60, s49, s58'); a.e('s_mul_i32 s49, s60, 20480')
    a.e('s_add_u32 s49, s49, s50'); a.e(f's_add_u32 s49, s49, {hex(XOFF)}'); a.e(f'v_add_u32 v8, s49, v{vL16}'); a.e('v_add_u32 v9, 4096, v8')
    a.e(f's_lshl_b32 s61, s{sW}, 11')
    if layer == 1:
        a.e(f'v_lshlrev_b32 v12, 7, v{vG}'); a.e(f'v_lshl_add_u32 v12, v{vI}, 3, v12')
    else:
        a.e(f'v_mov_b32 v12, v{vL16}')
    a.e(f'v_add_u32 v13, {8*SLOT}, v12')
    a.e(f'v_add_u32 v10, {HALO}, v12')
    BC, BP, BA = 224, 228, 232
    a.e(f'v_lshlrev_b32 v180, 2, v{vG}'); a.e(f'v_sub_u32 v180, v{vI}, v180')
    a.e('v_mov_b32 v181, 0'); a.e(f'v_mov_b32 v182, {hex(f32(-1e30))}')
    for r in range(4):
        for (dst, add) in ((BC + r, -r), (BP + r, 16 - r)):
            a.e(f'v_add_u32 v183, {add}, v180'); a.e('v_and_b32 v183, 0xfffffff1, v183')
            a.e('v_cmp_eq_u32 vcc, 0, v183'); a.e(f'v_cndmask_b32 v{dst}, v182, v181, vcc')
    a.e(f's_or_b32 s49, s{sRT}, s{sW}'); a.e('s_cmp_eq_u32 s49, 0'); a.e('s_cselect_b64 s[52:53], -1, 0')
    for r in range(4): a.e(f'v_cndmask_b32 v{BA+r}, v{BP+r}, v182, s[52:53]')
    a.e(f'v_mul_u32_u24 v180, {ROW}, v{vI}'); a.e(f's_lshl_b32 s49, s{sW}, 6'); a.e(f's_add_u32 s49, s49, {QKV}')
    a.e(f'v_lshl_add_u32 v242, v{vG}, 3, s49'); a.e('v_add_u32 v242, v242, v180')
    a.e(f's_mul_i32 s49, s{sW}, {32*ROW}'); a.e(f's_add_u32 s49, s49, {QKV}')
    a.e('v_add_u32 v236, s49, v180'); a.e(f'v_lshl_add_u32 v237, v{vG}, 3, v236')
    a.e(f'v_cmp_eq_u32 s[56:57], 0, v{vG}'); a.e('v_mov_b32 v238, 240'); a.e('v_mov_b32 v181, 128'); a.e('v_cndmask_b32 v238, v238, v181, s[56:57]'); a.e('v_add_u32 v238, v238, v236')
    a.e(f'v_lshrrev_b32 v239, 2, v{vI}'); a.e(f'v_lshl_add_u32 v239, v{vG}, 2, v239'); a.e(f'v_mul_u32_u24 v239, {ROW}, v239')
    a.e(f'v_and_b32 v181, 3, v{vL}'); a.e('v_lshl_add_u32 v239, v181, 3, v239'); a.e('v_add_u32 v239, s49, v239')
    a.e(f's_mul_i32 s49, s{sHP}, 1280'); a.e('s_add_u32 s49, s49, s59'); a.e(f's_add_u32 s49, s49, {hex(OOFF)}')
    a.e(f'v_lshlrev_b32 v181, 4, v{vI}'); a.e(f'v_lshl_add_u32 v240, v{vG}, 8, v181'); a.e('v_add_u32 v240, s49, v240')
    a.e('s_add_u32 s49, s49, 1024'); a.e('v_add_u32 v241, s49, v181')
    if layer == 1:
        M.poll(None, F2, 160, 200)
    else:
        a.e(f's_lshl_b32 s54, s{sRT}, 4')
        M.poll(54, F4, 16, 200)
    M.stamp(P + 'a_polled')
    SX = 144
    for j in range(4): a.e(f'buffer_load_dwordx4 v[{SX+4*j}:{SX+4*j+3}], v8, s[{WS}:{WS+3}], 0 offen offset:{1024*j} sc1', 'sx')
    a.e(f'buffer_load_dwordx4 v[{SX+16}:{SX+19}], v9, s[{WS}:{WS+3}], 0 offen sc1', 'sx')
    def issue_parts(ks):
        tag = f's{ks}'
        sl = (ks % NS) * SLOT
        xf = '' if ('plainld' in EXPL and layer == 2) else ' sc1'
        P_ = [[(f's_add_u32 m0, s61, {sl}', None)], [(f's_mov_b32 s64, {1024*ks}', None)],
              [(f'buffer_load_dwordx4 v5, s[{WS}:{WS+3}], s64 offen{xf} lds', tag)],
              [(f'buffer_load_dwordx4 v6, s[{WS}:{WS+3}], s64 offen offset:1024{xf} lds', tag)]]
        if layer == 1 and ks >= WPRE:
            P_ += [[(f's_mov_b32 s65, {122880*ks}', None)],
                   [(f'buffer_load_dwordx4 a[{8*ks}:{8*ks+3}], v250, s[{WS}:{WS+3}], s65 offen sc1', tag)],
                   [(f'buffer_load_dwordx4 a[{8*ks+4}:{8*ks+7}], v251, s[{WS}:{WS+3}], s65 offen sc1', tag)]]
        return P_
    def issue(ks):
        for part in issue_parts(ks):
            for ins, tag in part: a.e(ins, tag)
    UP = int(os.environ.get('UP', '7'))
    for ks in range(UP): issue(ks)
    def reads(ks):
        b = XB[ks & 1]; sl = ks % NS; off = (sl % 8) * SLOT
        L = []
        for t in range(8):
            if layer == 1:
                base = 'v12' if sl < 8 else 'v13'
                L.append(f'ds_read_b64 a[{b+4*t}:{b+4*t+1}], {base} offset:{off+1024*t}')
                L.append(f'ds_read_b64 a[{b+4*t+2}:{b+4*t+3}], {base} offset:{off+1024*t+512}')
            else:
                base = 'v12' if sl < 8 else 'v13'
                L.append(f'ds_read_b128 a[{b+4*t}:{b+4*t+3}], {base} offset:{off+1024*t}')
        return L
    RPT = 2 if layer == 1 else 1
    def mfmas(ks):
        b = XB[ks & 1]; L = []
        for t in range(8):
            for f in range(2):
                d = ACC + 36 * f + 4 * (t + 1)
                c = '0' if ks == 0 else f'v[{d}:{d+3}]'
                L.append(f'v_mfma_f32_16x16x32_bf16 v[{d}:{d+3}], a[{8*ks+4*f}:{8*ks+4*f+3}], a[{b+4*t}:{b+4*t+3}], {c}')
        return L
    T = 164; REC = 168
    a.wait_vm('sx'); a.e('s_mov_b32 s55, 0x3f803f80')
    if layer == 1:
        for j in range(4): a.e(f'v_mov_b32 v{T+j}, 0')
        for j in range(5):
            d = SX + 4 * j
            for h in range(2):
                a.e(f'v_dot2_f32_bf16 v{T}, v{d+h}, s55, v{T}'); a.e(f'v_dot2_f32_bf16 v{T+1}, v{d+h}, v{d+h}, v{T+1}')
                a.e(f'v_dot2_f32_bf16 v{T+2}, v{d+2+h}, s55, v{T+2}'); a.e(f'v_dot2_f32_bf16 v{T+3}, v{d+2+h}, v{d+2+h}, v{T+3}')
        for j in range(4): a.e(f'v_add_f32_dpp v{T+j}, v{T+j}, v{T+j} row_ror:8 row_mask:0xf bank_mask:0xf')
        nred = 4
    else:
        for j in range(4): a.e(f'v_mov_b32 v{T+j}, 0')
        for j in range(5):
            d = SX + 4 * j
            for h in range(2):
                a.e(f'v_dot2_f32_bf16 v{T}, v{d+2*h}, s55, v{T}'); a.e(f'v_dot2_f32_bf16 v{T+1}, v{d+2*h}, v{d+2*h}, v{T+1}')
                a.e(f'v_dot2_f32_bf16 v{T+2}, v{d+2*h+1}, s55, v{T+2}'); a.e(f'v_dot2_f32_bf16 v{T+3}, v{d+2*h+1}, v{d+2*h+1}, v{T+3}')
        a.e(f'v_add_f32 v{T}, v{T}, v{T+2}'); a.e(f'v_add_f32 v{T+1}, v{T+1}, v{T+3}')
        nred = 2
    for sw in ('v_permlane16_swap_b32', 'v_permlane32_swap_b32'):
        for j in range(nred): a.e(f'v_mov_b32 v{T+4+j}, v{T+j}')
        for j in range(nred): a.e(f'{sw} v{T+j}, v{T+4+j}')
        for j in range(nred): a.e(f'v_add_f32 v{T+j}, v{T+j}, v{T+4+j}')
    if layer == 1:
        a.e(f's_lshl_b32 s55, s{sW}, 7'); a.e(f's_add_u32 s55, s55, {SP_OFF}'); a.e(f'v_and_b32 v14, 7, v{vL}'); a.e('v_lshl_add_u32 v15, v14, 4, s55')
        a.e('s_mov_b64 exec, 0xff'); a.e(f'ds_write_b128 v15, v[{T}:{T+3}]', 'spw'); a.e('s_mov_b64 exec, -1')
        a.wait_vm('csp')
        for j in range(1, 10): a.e(f'v_add_f32 v88, v88, v{88+j}')
        a.e('v_lshlrev_b32 v15, 2, v0'); a.e(f'v_add_u32 v15, {CS_OFF}, v15'); a.e('ds_write_b32 v15, v88', 'spw')
    else:
        a.e(f's_lshl_b32 s55, s{sW}, 7'); a.e(f's_add_u32 s55, s55, {SP_OFF}'); a.e(f'v_lshl_add_u32 v15, v{vI}, 3, s55')
        a.e('s_mov_b64 exec, 0xffff'); a.e(f'ds_write_b64 v15, v[{T}:{T+1}]', 'spw'); a.e('s_mov_b64 exec, -1')
    a.e('s_waitcnt lgkmcnt(0)')
    a.wait_vm('s0'); a.e('s_barrier')
    M.stamp(P + 'b_firstbar')
    if layer == 1:
        a.e(f'v_lshlrev_b32 v15, 4, v14'); a.e(f'v_add_u32 v15, {SP_OFF}, v15')
        for w in range(4): a.e(f'ds_read_b128 v[{SX+4*w}:{SX+4*w+3}], v15 offset:{128*w}', 'spr')
        a.e(f's_lshl_b32 s55, s{sW}, 7'); a.e(f's_add_u32 s55, s55, {CS_OFF}'); a.e(f'v_lshl_add_u32 v11, v{vG}, 4, s55')
        a.e('ds_read_b128 v[88:91], v11', 'spr'); a.e('ds_read_b128 v[92:95], v11 offset:64', 'spr')
        a.e('ds_read_b128 v[96:99], v11 offset:512', 'spr'); a.e('ds_read_b128 v[100:103], v11 offset:576', 'spr')
    else:
        a.e(f'v_lshlrev_b32 v15, 3, v{vI}'); a.e(f'v_add_u32 v15, {SP_OFF}, v15')
        for w in range(4): a.e(f'ds_read_b64 v[{SX+2*w}:{SX+2*w+1}], v15 offset:{128*w}', 'spr')
    for ins in reads(0): a.e(ins, 'r0')
    a.wait_lg('spr')
    a.e(f'v_mov_b32 v176, {hex(f32(1e-5))}'); a.e(f's_mov_b32 s55, {hex(f32(1.0/640))}'); a.e(f's_mov_b32 s56, {hex(f32(-1.0/640))}')
    if layer == 1:
        for j in range(8): a.e(f'v_add_f32 v{vCS+j}, v{88+j}, v{96+j}')
        for j in range(4): a.e(f'v_add_f32 v{SX+j}, v{SX+j}, v{SX+4+j}'); a.e(f'v_add_f32 v{SX+8+j}, v{SX+8+j}, v{SX+12+j}')
        for j in range(4): a.e(f'v_add_f32 v{SX+j}, v{SX+j}, v{SX+8+j}')
        recs = [(REC, SX, SX + 1), (REC + 4, SX + 2, SX + 3)]
    else:
        for j in range(2): a.e(f'v_add_f32 v{SX+j}, v{SX+j}, v{SX+2+j}'); a.e(f'v_add_f32 v{SX+4+j}, v{SX+4+j}, v{SX+6+j}')
        for j in range(2): a.e(f'v_add_f32 v{SX+j}, v{SX+j}, v{SX+4+j}')
        recs = [(REC, SX, SX + 1)]
    for r, su, sq in recs:
        a.e(f'v_mul_f32 v{r}, s56, v{su}'); a.e(f'v_fma_f32 v{r+1}, v{sq}, s55, v176'); a.e(f'v_fma_f32 v{r+1}, -v{r}, v{r}, v{r+1}')
        a.e(f'v_rsq_f32 v{r+1}, v{r+1}'); a.e(f'v_mov_b32 v{r+2}, s{sN}'); a.e(f'v_mov_b32 v{r+3}, 0')
    a.e('s_lshl_b32 s55, s60, 8'); a.e(f's_add_u32 s55, s55, {hex(SOFF)}')
    if layer == 1:
        a.e('v_lshl_add_u32 v15, v14, 5, s55'); a.e(f's_cmp_eq_u32 s{sW}, 0'); a.e('s_cselect_b64 s[56:57], 0xff, 0')
    else:
        a.e(f'v_lshl_add_u32 v15, v{vI}, 4, s55'); a.e(f's_cmp_eq_u32 s{sW}, 0'); a.e('s_cselect_b64 s[56:57], 0xffff, 0')
    a.e(f'v_mov_b32 v14, {hex(OOB)}'); a.e('v_cndmask_b32 v15, v14, v15, s[56:57]')
    a.e(f'buffer_store_dwordx4 v[{REC}:{REC+3}], v15, s[{WS}:{WS+3}], 0 offen sc1', 'stw')
    if layer == 1: a.e(f'buffer_store_dwordx4 v[{REC+4}:{REC+7}], v15, s[{WS}:{WS+3}], 0 offen offset:16 sc1', 'stw')
    F = Fill(a)
    def halo_dma():
        for j in range(5):
            F.add(lambda j=j: (a.e(f's_add_u32 m0, s62, {1024*j}'), a.e(f's_mov_b32 s55, {1024*j}'),
                               a.e(f'buffer_load_dwordx4 v7, s[{WS}:{WS+3}], s55 offen sc1 lds', 'halo')))
    SR_OFF = SCR + 2048
    def stat_addr():
        def seq(*L): return lambda: [a.e(x) for x in L]
        F.add(seq('s_sub_u32 s55, s58, 1', f's_add_u32 s55, s55, s{sW}'), seq('s_lshl_b32 s55, s55, 8', f's_add_u32 s55, s55, {hex(SOFF)}'),
              f'v_lshl_add_u32 v11, v{vI}, 4, s55', seq(f's_or_b32 s55, s{sRT}, s{sW}', 's_cmp_eq_u32 s55, 0', 's_cselect_b32 s55, 256, 0'), 'v_add_u32 v15, s55, v11',
              seq('s_movk_i32 s55, 1024', f's_cmp_eq_u32 s{sW}, 0', f's_cselect_b32 s55, 2048, s55'), 'v_add_u32 v14, s55, v11')
        F.add(lambda: rec_loads('st', True))
    def rec_loads(tag, count):
        a.e(f'buffer_load_dwordx3 v[{ST}:{ST+2}], v15, s[{WS}:{WS+3}], 0 offen sc1', tag, count=count)
        a.e(f'buffer_load_dwordx3 v[{ST+4}:{ST+6}], v11, s[{WS}:{WS+3}], 0 offen offset:1024 sc1', tag, count=count)
        a.e(f'buffer_load_dwordx3 v[{ST+8}:{ST+10}], v14, s[{WS}:{WS+3}], 0 offen sc1', tag, count=count)
    def rec_publish():
        Lc = M.lab('STCHK'); Lok = M.lab('STOK')
        a.wait_vm('st')
        a.e('s_mov_b32 s54, 0x4000')
        a.label(Lc)
        a.e(f'v_cmp_ne_u32 vcc, s{sN}, v{ST+2}')
        for t in (1, 2):
            a.e(f'v_cmp_ne_u32 s[52:53], s{sN}, v{ST+4*t+2}'); a.e('s_or_b64 vcc, vcc, s[52:53]')
        a.e(f's_cbranch_vccz {Lok}')
        rec_loads(None, False)
        a.e('s_waitcnt vmcnt(0)', count=False)
        a.e('s_sub_u32 s54, s54, 1'); a.e('s_cmp_lg_u32 s54, 0'); a.e(f's_cbranch_scc1 {Lc}')
        a.label(Lok)
        a.e(f's_lshl_b32 s55, s{sW}, 7'); a.e(f's_add_u32 s55, s55, {SR_OFF}'); a.e(f'v_lshl_add_u32 v11, v{vI}, 3, s55')
        a.e('s_movk_i32 s55, 512'); a.e(f's_cmp_eq_u32 s{sW}, 0'); a.e(f's_cselect_b32 s55, 1024, s55'); a.e('v_add_u32 v14, s55, v11')
        a.e('s_mov_b64 exec, 0xffff')
        a.e(f'ds_write_b64 v11, v[{ST}:{ST+1}]', 'srw'); a.e(f'ds_write_b64 v11, v[{ST+4}:{ST+5}] offset:512', 'srw'); a.e(f'ds_write_b64 v14, v[{ST+8}:{ST+9}]', 'srw')
        a.e('s_mov_b64 exec, -1')
    def halo_reads():
        for ks in range(20):
            if layer == 1:
                F.add((f'ds_read_b64 v[{HX+4*ks}:{HX+4*ks+1}], v10 offset:{1024*ks}', 'hr'), (f'ds_read_b64 v[{HX+4*ks+2}:{HX+4*ks+3}], v10 offset:{1024*ks+512}', 'hr'))
            else:
                F.add((f'ds_read_b128 v[{HX+4*ks}:{HX+4*ks+3}], v10 offset:{1024*ks}', 'hr'))
    def xid_load():
        a_ = f'v{PXA}'
        F.add(f's_and_b32 s55, s{sID}, 7', 's_lshl_b32 s55, s55, 8', f's_add_u32 s55, s55, {hex(XID_OFF)}', f'v_and_b32 v{PXA}, 31, v{vL}',
              f'v_lshl_add_u32 v{PXA}, v{PXA}, 3, s55', (f'buffer_load_dwordx2 v[{PXA+2}:{PXA+3}], v{PXA}, s[{WS}:{WS+3}], 0 offen sc1', 'xid'))
    def xid_eval():
        F.add(lambda: a.wait_vm('xid'), 's_getreg_b32 s55, hwreg(HW_REG_XCC_ID, 0, 4)',
              lambda: [a.e(x) for x in (f'v_cmp_ne_u32 vcc, s{sN}, v{PXA+2}', f'v_cmp_ne_u32 s[56:57], s55, v{PXA+3}',
                                        's_or_b64 vcc, vcc, s[56:57]', 's_cmp_eq_u64 vcc, 0', f's_cselect_b32 s{sLOC}, 1, 0')])
    PXA = 244
    hpoll = {}
    def hflag_issue():
        F.add(f's_lshl_b32 s54, s{sRT}, 3')
        def f():
            hpoll['nl'] = M.poll_addr(54, F4H, 8, 248); M.poll_issue(1, 248, tag='hf')
        F.add(f)
    def hflag_check():
        def f():
            Lok = M.lab('HFOK')
            a.wait_vm('hf')
            a.e(f's_cmp_eq_u32 s{sRT}, 0'); a.e(f's_cbranch_scc1 {Lok}')
            M.poll_check(1, 248, Lok)
            M.poll_loop(1, 248, Lok, sleep=4)
            a.label(Lok)
        F.add(f)
    M.stamp(P + 'c_mainstart')
    M.stamp(P + 'c_mainstart_cyc')
    nxt = [UP]
    for ks in range(20):
        mf = mfmas(ks)
        rd = reads(ks + 1) if (ks < 19 and 'noread' not in EXPL) else []
        if ks == 0:
            if layer == 2: hflag_issue()
            else: xid_load()
        if ks == 3:
            if layer == 2: hflag_check()
        if ks == 6 and layer == 1: xid_eval()
        if ks == 8: stat_addr()
        if ks == (10 if layer == 1 else 13): halo_reads()
        gaps = [[] for _ in range(16)]
        if ks < 19:
            gaps[0].append(lambda ks=ks: (a.wait_vm([f's{ks+1}'] + (['halo'] if ks == 9 else [])), None if 'nobar' in EXPL else a.e('s_barrier')))
        st = []
        while nxt[0] < 20 and nxt[0] <= ks + DEPTH and len(st) < (2 if ks < 6 else 1):
            st.append(issue_parts(nxt[0]) if 'nodma' not in EXPL else []); nxt[0] += 1
        def emit_part(part):
            return lambda: [a.e(i_, t_) for i_, t_ in part]
        rdl = [(lambda x=x, tg=f'r{ks+1}_{j//RPT}': a.e(x, tg)) for j, x in enumerate(rd)]
        if layer == 1:
            rslots = [1, 2, 4, 4, 6, 6, 7, 8, 8, 9, 9, 10, 10, 11, 11, 12]
        else:
            rslots = [1, 2, 4, 6, 7, 8, 9, 10]
        for j, f_ in enumerate(rdl): gaps[rslots[j]].append(f_)
        if st and st[0]:
            p_ = st[0]
            gaps[1].append(emit_part(p_[0])); gaps[2].append(emit_part(p_[1])); gaps[3].append(emit_part(p_[2])); gaps[5].append(emit_part(p_[3]))
            if len(p_) > 4: gaps[12].append(emit_part(p_[4])); gaps[13].append(emit_part(p_[5])); gaps[14].append(emit_part(p_[6]))
        if len(st) > 1 and st[1]:
            p_ = st[1]
            assert len(p_) == 4
            gaps[11].append(emit_part(p_[0])); gaps[12].append(emit_part(p_[1])); gaps[13].append(emit_part(p_[2])); gaps[14].append(emit_part(p_[3]))
        if 4 <= ks <= 8:
            j = ks - 4
            gaps[7].append(lambda j=j: (a.e(f's_add_u32 m0, s62, {1024*j}'), a.e(f's_mov_b32 s66, {1024*j}')))
            gaps[8].append(lambda: a.e(f'buffer_load_dwordx4 v7, s[{WS}:{WS+3}], s66 offen sc1 lds', 'halo'))
        busy = len(st) > 1 or (st and len(st[0]) > 4)
        fills = ([12] if layer == 1 else [4, 6, 8, 9, 10, 11, 11]) if busy else ([12, 13, 13, 14] if layer == 1 else [4, 6, 8, 9, 10, 11, 11, 12, 12, 13, 13, 14])
        for n, ins in enumerate(mf):
            if n == 0: a.wait_lg([f'r{ks}_{t}' for t in range(4)] if ks > 0 else ['r0'])
            if n == 8 and ks > 0: a.wait_lg([f'r{ks}_{t}' for t in range(4, 8)])
            a.e(ins)
            for f_ in gaps[n]: f_()
            F.pop(fills.count(n))
    WO = Fill(a)
    def wo_dma(n):
        kk, ft = divmod(n, 5)
        def f():
            if ft in (0, 4):
                a.e(f's_mov_b32 s55, {40960*kk + 1024*ft}'); a.e(f's_add_u32 m0, s63, {1024*n}')
            a.e(f'buffer_load_dwordx4 v9, s[{WS}:{WS+3}], s55 offen offset:{1024*(ft%4)} sc1 lds', 'wo')
        return f
    for n in range(25): WO.add(wo_dma(n))
    F.flush()
    rec_publish()
    a.wait_lg('hr')
    for ks in range(20):
        for f in range(2):
            d = ACC + 36 * f
            c = '0' if ks == 0 else f'v[{d}:{d+3}]'
            a.e(f'v_mfma_f32_16x16x32_bf16 v[{d}:{d+3}], a[{8*ks+4*f}:{8*ks+4*f+3}], v[{HX+4*ks}:{HX+4*ks+3}], {c}')
        if ks == 0:
            a.e('s_waitcnt lgkmcnt(0)'); a.e('s_barrier')
            a.e(f'v_lshlrev_b32 v11, 3, v{vI}'); a.e(f'v_add_u32 v11, {SR_OFF}, v11')
            a.e(f's_mul_i32 s63, s{sW}, 25600'); a.e(f's_mul_i32 s54, s{sC}, 5120'); a.e(f's_mul_i32 s55, s{sW}, {5*40960}'); a.e('s_add_u32 s54, s54, s55'); a.e(f's_add_u32 s54, s54, {hex(WF2_OFF)}')
            a.e(f'v_lshrrev_b32 v9, 2, v{vI}'); a.e(f'v_lshlrev_b32 v9, 8, v9'); a.e(f'v_lshl_add_u32 v9, v{vG}, 6, v9')
            a.e(f'v_and_b32 v14, 3, v{vI}'); a.e('v_lshl_add_u32 v9, v14, 4, v9'); a.e('v_add_u32 v9, s54, v9')
        if 1 <= ks <= 9:
            t = ks - 1
            a.e(f'ds_read_b64 v[{ST+4*t}:{ST+4*t+1}], v11 offset:{128*t}', 'srr')
        if ks in (10, 14, 18): WO.pop(1)
    M.stamp(P + 'd_mainend')
    M.stamp(P + 'd_mainend_cyc')
    a.wait_lg('srr')
    M.stamp(P + 'e_statsok')
    PK = 144
    order = [1, 2, 3, 4, 5, 6, 7, 8, 0]
    for n_, t in enumerate(order):
        m = ST + 4 * t
        for f in range(2):
            d = ACC + 36 * f + 4 * t; cs = vCS + 4 * f; p = PK + 2 * ((2 * n_ + f) % 8)
            for h in range(2):
                a.e(f'v_pk_fma_f32 v[{d+2*h}:{d+2*h+1}], v[{cs+2*h}:{cs+2*h+1}], v[{m}:{m+1}], v[{d+2*h}:{d+2*h+1}] op_sel:[0,0,0] op_sel_hi:[1,0,1]')
            for h in range(2):
                a.e(f'v_pk_mul_f32 v[{d+2*h}:{d+2*h+1}], v[{d+2*h}:{d+2*h+1}], v[{m}:{m+1}] op_sel:[0,1] op_sel_hi:[1,1]')
            a.e(f'v_cvt_pk_bf16_f32 v{p}, v{d}, v{d+1}'); a.e(f'v_cvt_pk_bf16_f32 v{p+1}, v{d+2}, v{d+3}')
            a.e(f'ds_write_b64 v242, v[{p}:{p+1}] offset:{16*ROW*t + 32*f}')
            if (2 * n_ + f) % 2 == 0: WO.pop(1)
    M.stamp(P + 'e2_fixdone')
    a.e('s_waitcnt lgkmcnt(0)')
    a.e('s_barrier')
    M.stamp(P + 'f_qkvbar')
    KT = {(k, h): 164 + 8 * k + 4 * h for k in range(3) for h in range(2)}
    QT = {(t, h): 188 + 8 * t + 4 * h for t in range(2) for h in range(2)}
    VV = [204, 210, 216]
    R16 = 16 * ROW
    for k in range(3):
        for h in range(2):
            d = KT[(k, h)]
            a.e(f'ds_read_b64 v[{d}:{d+1}], v237 offset:{k*R16 + 64 + 32*h}', 'op'); a.e(f'ds_read_b64 v[{d+2}:{d+3}], v236 offset:{k*R16 + 144 + 8*h}', 'op')
    for t in range(2):
        for h in range(2):
            d = QT[(t, h)]
            a.e(f'ds_read_b64 v[{d}:{d+1}], v237 offset:{(t+1)*R16 + 32*h}', 'op'); a.e(f'ds_read_b64 v[{d+2}:{d+3}], v238 offset:{(t+1)*R16 + 8*h}', 'op')
    for k in range(3):
        for y, off in enumerate((160, 192, 224)):
            a.e(f'ds_read_b64_tr_b16 v[{VV[y]+2*k}:{VV[y]+2*k+1}], v239 offset:{k*R16 + off}', 'opv')
    a.wait_lg('op')
    M.stamp(P + 'f1_opsread')
    tasks = [(0, 0), (0, 1), (1, 0), (1, 1)]
    for ti, (t, h) in enumerate(tasks):
        S = 16 + 8 * ti; q = QT[(t, h)]; bp = BA if t == 0 else BP
        a.e(f'v_mfma_f32_16x16x32_bf16 v[{S}:{S+3}], v[{KT[(t,h)]}:{KT[(t,h)]+3}], v[{q}:{q+3}], v[{bp}:{bp+3}]')
        a.e(f'v_mfma_f32_16x16x32_bf16 v[{S+4}:{S+7}], v[{KT[(t+1,h)]}:{KT[(t+1,h)]+3}], v[{q}:{q+3}], v[{BC}:{BC+3}]')
    Mx = 48
    for ti in range(4):
        S = 16 + 8 * ti; m = Mx + 4 * ti
        a.e(f'v_max3_f32 v{m}, v{S}, v{S+1}, v{S+2}'); a.e(f'v_max3_f32 v{m}, v{m}, v{S+3}, v{S+4}')
        a.e(f'v_max3_f32 v{m}, v{m}, v{S+5}, v{S+6}'); a.e(f'v_max_f32 v{m}, v{m}, v{S+7}')
        WO.pop(1)
    for sw in ('v_permlane16_swap_b32', 'v_permlane32_swap_b32'):
        for ti in range(4): a.e(f'v_mov_b32 v{Mx+4*ti+1}, v{Mx+4*ti}')
        for ti in range(4): a.e(f'{sw} v{Mx+4*ti}, v{Mx+4*ti+1}')
        for ti in range(4): a.e(f'v_max_f32 v{Mx+4*ti}, v{Mx+4*ti}, v{Mx+4*ti+1}')
    M.stamp(P + 'f2_max')
    QS = (20 ** -0.5) * math.log2(math.e)
    a.e(f's_mov_b32 s50, {hex(f32(QS))}'); a.e(f'v_mov_b32 v64, s50')
    for ti in range(4): a.e(f'v_mul_f32 v{Mx+4*ti}, s50, v{Mx+4*ti}')
    for ti in range(4):
        S = 16 + 8 * ti; m = Mx + 4 * ti
        for j in range(4):
            a.e(f'v_pk_fma_f32 v[{S+2*j}:{S+2*j+1}], v[{S+2*j}:{S+2*j+1}], v[64:65], v[{m}:{m+1}] op_sel_hi:[1,0,0] neg_lo:[0,0,1] neg_hi:[0,0,1]')
    for ti in range(4):
        S = 16 + 8 * ti
        for j in range(8): a.e(f'v_exp_f32 v{S+j}, v{S+j}')
        WO.pop(1)
    PP = 68
    for ti in range(4):
        S = 16 + 8 * ti; m = Mx + 4 * ti
        for j in range(4): a.e(f'v_cvt_pk_bf16_f32 v{PP+4*ti+j}, v{S+2*j}, v{S+2*j+1}')
        a.e(f'v_pk_add_f32 v[{S}:{S+1}], v[{S}:{S+1}], v[{S+2}:{S+3}]'); a.e(f'v_pk_add_f32 v[{S+4}:{S+5}], v[{S+4}:{S+5}], v[{S+6}:{S+7}]')
        a.e(f'v_pk_add_f32 v[{S}:{S+1}], v[{S}:{S+1}], v[{S+4}:{S+5}]'); a.e(f'v_add_f32 v{m+2}, v{S}, v{S+1}')
        WO.pop(1)
    M.stamp(P + 'f3_exp')
    OO = 88
    a.wait_lg('opv')
    for ti, (t, h) in enumerate(tasks):
        a.e(f'v_mfma_f32_16x16x32_bf16 v[{OO+8*ti}:{OO+8*ti+3}], v[{VV[h]+2*t}:{VV[h]+2*t+3}], v[{PP+4*ti}:{PP+4*ti+3}], 0')
        a.e(f'v_mfma_f32_16x16x32_bf16 v[{OO+8*ti+4}:{OO+8*ti+7}], v[{VV[2]+2*t}:{VV[2]+2*t+3}], v[{PP+4*ti}:{PP+4*ti+3}], 0')
    for sw in ('v_permlane16_swap_b32', 'v_permlane32_swap_b32'):
        for ti in range(4): a.e(f'v_mov_b32 v{Mx+4*ti+3}, v{Mx+4*ti+2}')
        for ti in range(4): a.e(f'{sw} v{Mx+4*ti+2}, v{Mx+4*ti+3}')
        for ti in range(4): a.e(f'v_add_f32 v{Mx+4*ti+2}, v{Mx+4*ti+2}, v{Mx+4*ti+3}')
    for ti in range(4): a.e(f'v_rcp_f32 v{Mx+4*ti+2}, v{Mx+4*ti+2}')
    for ti in range(4):
        o = OO + 8 * ti; s = Mx + 4 * ti + 2
        for j in range(4):
            a.e(f'v_pk_mul_f32 v[{o+2*j}:{o+2*j+1}], v[{o+2*j}:{o+2*j+1}], v[{s}:{s+1}] op_sel_hi:[1,0]')
    for t in range(2):
        o0 = OO + 8 * (2 * t); o1 = OO + 8 * (2 * t + 1); d = 16 + 12 * t
        a.e(f'v_cvt_pk_bf16_f32 v{d}, v{o0}, v{o0+1}'); a.e(f'v_cvt_pk_bf16_f32 v{d+1}, v{o0+2}, v{o0+3}')
        a.e(f'v_cvt_pk_bf16_f32 v{d+2}, v{o1}, v{o1+1}'); a.e(f'v_cvt_pk_bf16_f32 v{d+3}, v{o1+2}, v{o1+3}')
        a.e(f'v_cvt_pk_bf16_f32 v{d+4}, v{o0+4}, v{o0+5}'); a.e(f'v_cvt_pk_bf16_f32 v{d+5}, v{o0+6}, v{o0+7}')
        a.e(f'v_cvt_pk_bf16_f32 v{d+8}, v{o1+4}, v{o1+5}'); a.e(f'v_cvt_pk_bf16_f32 v{d+9}, v{o1+6}, v{o1+7}')
        a.e(f'v_permlane16_swap_b32 v{d+8}, v{d+6}'); a.e(f'v_permlane16_swap_b32 v{d+9}, v{d+7}')
    WO.flush()
    M.stamp(P + 'g_attn')
    a.e('s_movk_i32 s55, 20480')
    M.stores([f'buffer_store_dwordx4 v[16:19], v240, s[{WS}:{WS+3}], 0 offen', f'buffer_store_dwordx4 v[28:31], v240, s[{WS}:{WS+3}], s55 offen'], bulk=True)
    a.e('s_mov_b64 exec, 0xffff')
    M.stores([f'buffer_store_dwordx4 v[20:23], v241, s[{WS}:{WS+3}], 0 offen', f'buffer_store_dwordx4 v[32:35], v241, s[{WS}:{WS+3}], s55 offen'], bulk=True)
    a.e('s_mov_b64 exec, -1')
    a.e(f's_lshl_b32 s58, s{sRT}, 4'); a.e(f's_add_u32 s58, s58, s{sHP}')
    M.set_flag_dual(58, F3 if layer == 1 else F5, 8)
    M.stamp(P + 'h_flag')
```

```python
from asmgen import Asm
import os, struct
NAME = 'interleave_layers__ssm_conv_h3__sliding_local_dilated__prompt'
R_OFF    = 0x0000000
XQ2_OFF  = 0x0280000
WF1_OFF  = 0x0780000
WF2_OFF  = 0x0A00000
CSP_OFF  = 0x0B00000
FLG_OFF  = 0x0B40000
NONCE_OFF = FLG_OFF + 0xC000
STAT_OFF = [0x0B50000, 0x0B60000]
ST0_OFF  = 0x0B70000
XQ0_OFF  = XQ2_OFF
EX_OFF   = 0x0B80000
Y_OFF    = 0x0C00000
X1_OFF   = 0x0E80000
O1_OFF   = 0x1100000
X3_OFF   = 0x1380000
O2_OFF   = 0x1600000
XH_OFF   = 0x1880000
XID_OFF  = 0x0B78000
WS_END   = 0x1900000
SZ = 2048 * 640 * 2
OOB = 0x7ff00000
F1 = 0; F3 = 512; F4 = 768; F5 = 1024; F4H = 1280
NB = 128; NC = 70
RSTR = 512
FB = 0x1000; FC = FB + 128; F2 = FB + 256
REPL = (FB, FC, F2)
DIAG = bool(int(os.environ.get('DIAG', '0')))
DIAG_OFF = 0x2000000
EXPL = os.environ.get('EXPL', '')
LS = '' if 'local' in EXPL else ' sc1'
def f32(x): return struct.unpack('<I', struct.pack('<f', x))[0]

sID = 2; sW = 3
pQ, pK, pV, pSH, pSK, pSD, pBX, pWQ, pWO, pOUT, pDBG, pWS = range(4, 28, 2)
WS = 28
SA, SB, SC = 32, 36, 40
sN = 44
sRT, sHP, sR64, sC = 45, 46, 47, 48
sLOC = 67
vL, vI, vG, vL16 = 1, 2, 3, 4

class MK:
    def __init__(self):
        self.a = Asm(); self.nlab = 0; self.names = {'c': [], 'h': [], 'p': []}
    def lab(self, p):
        self.nlab += 1; return f'{p}_{self.nlab}'
    def stamp(self, name):
        if not DIAG: return
        name = str(name)
        if name == 'start': i = 0
        else:
            sel = os.environ.get('STAMPS', '').split(',')
            if not any(name.startswith(p) for p in sel if p): return
            cls = name[0] if name[0] in 'ch' else 'p'
            lists = self.names
            if name not in lists[cls]: lists[cls].append(name)
            k = lists[cls].index(name)
            i = 1 + k + (0 if cls in 'ch' else max(len(lists['c']), len(lists['h'])))
            if i > 15: print('stamp dropped', name); lists[cls].remove(name); return
        self.a.e(f's_mem{"time" if name.endswith("_cyc") else "realtime"} s[{68+2*i}:{69+2*i}]')
    def srd(self, d, ptr, nbytes):
        a = self.a
        a.e(f's_mov_b32 s{d}, s{ptr}'); a.e(f's_mov_b32 s{d+1}, s{ptr+1}')
        a.e(f's_mov_b32 s{d+2}, {hex(nbytes)}'); a.e(f's_mov_b32 s{d+3}, 0x20000')
    def set_flag(self, idx_sgpr, base, vt, tag=None, local=False):
        a = self.a
        if tag is None: a.e('s_waitcnt vmcnt(0)')
        else: a.wait_vm(tag)
        a.e('s_barrier')
        self.write_flag(idx_sgpr, base, vt, local)
    def write_flag(self, idx_sgpr, base, vt, local=False):
        a = self.a
        L = self.lab('NOFLAG')
        a.e(f's_cmp_lg_u32 s{sW}, 0'); a.e(f's_cbranch_scc1 {L}')
        a.e(f's_lshl_b32 s49, s{idx_sgpr}, 2'); a.e(f's_add_u32 s49, s49, {hex(FLG_OFF + 4*base)}')
        if base in REPL:
            a.e(f'v_mul_u32_u24 v{vt}, {4*RSTR}, v{vL}'); a.e(f'v_add_u32 v{vt}, s49, v{vt}')
        else:
            a.e(f'v_mov_b32 v{vt}, s49')
        a.e(f'v_mov_b32 v{vt+1}, s{sN}')
        a.e(f's_mov_b64 exec, {0xff if base in REPL else 1}')
        a.e(f'buffer_store_dword v{vt+1}, v{vt}, s[{WS}:{WS+3}], 0 offen' + ('' if local else ' sc1'), count=False)
        a.e('s_mov_b64 exec, -1')
        a.label(L)
    def poll_addr(self, first_sgpr, base, n, vt, n_sgpr=None):
        a = self.a
        nl = (n + 63) // 64
        if first_sgpr is None: a.e(f's_mov_b32 s49, {hex(FLG_OFF + 4*base)}')
        else:
            a.e(f's_lshl_b32 s49, s{first_sgpr}, 2'); a.e(f's_add_u32 s49, s49, {hex(FLG_OFF + 4*base)}')
        if base in REPL:
            a.e(f's_and_b32 s50, s{sID}, 7'); a.e(f's_mul_i32 s50, s50, {4*RSTR}'); a.e('s_add_u32 s49, s49, s50')
        for j in range(nl):
            if n_sgpr is not None:
                a.e(f's_sub_u32 s50, s{n_sgpr}, 1'); a.e(f'v_min_u32 v{vt+j}, s50, v{vL}')
            elif 64 * (j + 1) <= n:
                a.e(f'v_add_u32 v{vt+j}, {64*j}, v{vL}')
            else:
                a.e(f'v_add_u32 v{vt+j}, {64*j}, v{vL}'); a.e(f'v_min_u32 v{vt+j}, {n-1}, v{vt+j}')
            a.e(f'v_lshl_add_u32 v{vt+j}, v{vt+j}, 2, s49')
        return nl
    def poll_issue(self, nl, vt, count=True, tag=None):
        for j in range(nl):
            self.a.e(f'buffer_load_dword v{vt+nl+j}, v{vt+j}, s[{WS}:{WS+3}], 0 offen sc1', tag, count=count)
    def poll_check(self, nl, vt, done):
        a = self.a
        for j in range(nl):
            a.e(f'v_cmp_ne_u32 {"vcc" if j == 0 else "s[52:53]"}, s{sN}, v{vt+nl+j}')
            if j: a.e('s_or_b64 vcc, vcc, s[52:53]')
        a.e(f's_cbranch_vccz {done}')
    def poll_loop(self, nl, vt, done, sleep=2):
        a = self.a
        Lp = self.lab('POLL')
        a.e('s_mov_b32 s51, 0x8000')
        a.label(Lp)
        self.poll_issue(nl, vt, count=False)
        a.e('s_waitcnt vmcnt(0)', count=False)
        self.poll_check(nl, vt, done)
        a.e(f's_sleep {sleep}')
        a.e('s_sub_u32 s51, s51, 1'); a.e('s_cmp_lg_u32 s51, 0')
        a.e(f's_cbranch_scc1 {Lp}')
    def poll(self, first_sgpr, base, n, vt, barrier=True, allwaves=False, n_sgpr=None, sleep=2):
        a = self.a
        Ld = self.lab('POLLDONE')
        if not allwaves:
            a.e(f's_cmp_lg_u32 s{sW}, 0'); a.e(f's_cbranch_scc1 {Ld}')
        nl = self.poll_addr(first_sgpr, base, n, vt, n_sgpr)
        if 'newpoll' not in EXPL:
            self.poll_loop(nl, vt, Ld, sleep)
        else:
            def issue(k):
                for j in range(nl):
                    a.e(f'buffer_load_dword v{vt+nl*(k+1)+j}, v{vt+j}, s[{WS}:{WS+3}], 0 offen sc1', count=False)
            def check(k):
                for j in range(nl):
                    a.e(f'v_cmp_ne_u32 {"vcc" if j == 0 else "s[52:53]"}, s{sN}, v{vt+nl*(k+1)+j}')
                    if j: a.e('s_or_b64 vcc, vcc, s[52:53]')
                a.e(f's_cbranch_vccz {Ld}')
            Lp = self.lab('POLL')
            a.e('s_mov_b32 s51, 0x4000')
            issue(0); a.e('s_sleep 3'); issue(1); a.e('s_sleep 3')
            a.label(Lp)
            for k in range(3):
                issue((k + 2) % 3)
                a.e(f's_waitcnt vmcnt({2*nl})', count=False)
                check(k)
                a.e('s_sleep 1')
            a.e('s_sub_u32 s51, s51, 1'); a.e('s_cmp_lg_u32 s51, 0')
            a.e(f's_cbranch_scc1 {Lp}')
        a.label(Ld)
        if barrier: a.e('s_barrier')
        if allwaves: a.vm = []
    def stores(self, ins, tag=None, bulk=False):
        a = self.a
        if 'nolocal' in EXPL or (bulk and 'bulklocal' not in EXPL):
            for x in ins: a.e(x + ' sc1', tag)
            return
        Lg = self.lab('STG'); Le = self.lab('STE')
        a.e(f's_cmp_eq_u32 s{sLOC}, 0'); a.e(f's_cbranch_scc1 {Lg}')
        for x in ins: a.e(x, tag, count=False)
        a.e(f's_branch {Le}')
        a.label(Lg)
        for x in ins: a.e(x + ' sc1', tag)
        a.label(Le)
    def set_flag_dual(self, idx_sgpr, base, vt):
        a = self.a
        a.e('s_waitcnt vmcnt(0)'); a.e('s_barrier')
        L = self.lab('NOFLAG')
        a.e(f's_cmp_lg_u32 s{sW}, 0'); a.e(f's_cbranch_scc1 {L}')
        a.e(f's_lshl_b32 s49, s{idx_sgpr}, 2'); a.e(f's_add_u32 s49, s49, {hex(FLG_OFF + 4*base)}')
        a.e(f'v_mov_b32 v{vt}, s49'); a.e(f'v_mov_b32 v{vt+1}, s{sN}')
        a.e('s_mov_b64 exec, 1')
        self.stores([f'buffer_store_dword v{vt+1}, v{vt}, s[{WS}:{WS+3}], 0 offen'])
        a.vm = []
        a.e('s_mov_b64 exec, -1')
        a.label(L)
    def dump(self, n):
        if not DIAG: return
        a = self.a
        a.e('s_waitcnt lgkmcnt(0) vmcnt(0)')
        a.e(f's_add_u32 s52, s{pWS}, {hex(DIAG_OFF)}'); a.e(f's_addc_u32 s53, s{pWS+1}, 0')
        a.e(f's_lshl_b32 s54, s{sID}, 6'); a.e('v_mov_b32 v8, s54')
        L = self.lab('NODUMP')
        a.e(f's_cmp_lg_u32 s{sW}, 0'); a.e(f's_cbranch_scc1 {L}')
        a.e('s_mov_b64 exec, 1')
        for i in range(n):
            a.e(f'v_mov_b32 v9, s{68+2*i}')
            a.e(f'global_store_dword v8, v9, s[52:53] offset:{4*i}')
        a.e('s_mov_b64 exec, -1')
        a.label(L)
```

```python
from mcommon import *
from m_p3 import W_addr, W_load, WPRE
from m_p1 import A_dma, A_addr, A_reads, A_compute, nonce, ASZ, B_src, B_dma, B_addr, B_finish

CNT_OFF = 163328
CPY = 4160; WSZ = 4 * CPY + 4608; RB = 4 * CPY

def conv_path(M):
    a = M.a
    a.reset_counts()
    a.e(f's_lshr_b32 s65, s{sID}, 4'); a.e('s_lshl_b32 s65, s65, 3'); a.e(f's_and_b32 s49, s{sID}, 7')
    a.e('s_add_u32 s65, s65, s49'); a.e('s_lshl_b32 s65, s65, 1'); a.e(f's_bfe_u32 s49, s{sID}, 0x10003'); a.e('s_add_u32 s65, s65, s49')
    a.e('s_lshl_b32 s66, s65, 2'); a.e(f's_add_u32 s66, s66, s{sW}')
    a.e(f's_mul_i32 s67, s{sW}, {WSZ}')
    a.e('s_lshr_b32 s49, s66, 1'); a.e('s_lshl_b32 s49, s49, 2'); a.e(f's_load_dword s64, s[{pSD}:{pSD+1}], s49')
    M.srd(SA, pK, SZ); M.srd(SB, pV, SZ); M.srd(SC, pSH, 640 * 8)
    A_dma(M, sID, 8, 100000 // 1024 * 1024 + 0, 'A1')
    A_addr(M, sID, 8, 24, 99328, 'A1')
    if 'Bearly' in EXPL: B_dma(M, 120832, vt=192)
    a.e('s_lshl_b32 s49, s66, 12'); a.e(f'v_add_u32 v5, s49, v{vL16}')
    M.stamp('c1_Aissued')
    a.e(f's_add_u32 s63, s67, {RB}')
    a.e('v_mov_b32 v6, 0'); a.e('v_mov_b32 v7, 0')
    a.e(f'v_lshl_add_u32 v14, v{vL}, 3, s63')
    a.e('ds_write_b64 v14, v[6:7] offset:4096', 'z')
    a.e(f'v_add_u32 v14, 1, v{vI}'); a.e('v_and_b32 v15, 3, v14')
    a.e(f'v_mul_u32_u24 v204, {CPY}, v15'); a.e('v_sub_u32 v14, v14, v15')
    a.e('v_lshl_add_u32 v204, v14, 1, v204'); a.e(f'v_lshl_add_u32 v204, v{vG}, 4, v204'); a.e('v_add_u32 v204, s67, v204')
    a.e(f'v_lshlrev_b32 v205, 5, v{vI}'); a.e(f'v_lshlrev_b32 v14, 4, v{vG}'); a.e('v_sub_u32 v205, v14, v205')
    a.e('s_add_u32 s49, s63, 480'); a.e('v_add_u32 v205, s49, v205')
    a.e(f'v_add_u32 v170, s67, v{vL16}')
    a.e('s_waitcnt lgkmcnt(0)')
    a.lg = []
    nonce(M)
    W_addr(M)
    if not BHELP: B_src(M, 192)
    a.e('s_and_b32 s49, s66, 1'); a.e('s_lshl_b32 s49, s49, 4'); a.e('s_lshr_b32 s64, s64, s49'); a.e('s_and_b32 s64, s64, 0xffff')
    a.e(f'v_sub_u32 v176, 15, v{vI}'); a.e('v_lshrrev_b32 v177, 3, v176'); a.e('v_and_b32 v176, 7, v176')
    a.e('v_and_b32 v178, 1, v176'); a.e('v_lshlrev_b32 v178, 4, v178'); a.e('v_lshlrev_b32 v178, v178, s64')
    a.e('v_lshrrev_b32 v176, 1, v176'); a.e('v_mov_b32 v179, 64')
    a.e(f'v_cmp_eq_u32 vcc, v177, v{vG}'); a.e('v_cndmask_b32 v176, v179, v176, vcc')
    for q in range(4):
        a.e(f'v_cmp_eq_u32 vcc, {q}, v176'); a.e(f'v_cndmask_b32 v{200+q}, 0, v178, vcc')
    a.e(f'v_lshrrev_b32 v14, 1, v{vL}'); a.e(f'v_mul_u32_u24 v14, {CPY}, v14')
    a.e(f'v_and_b32 v15, 1, v{vL}'); a.e('v_lshl_add_u32 v14, v15, 4, v14'); a.e('v_add_u32 v207, s67, v14')
    a.e('v_lshrrev_b32 v14, 3, v0'); a.e('v_and_b32 v15, 7, v0')
    a.e(f'v_lshlrev_b32 v206, 4, v0'); a.e(f'v_add_u32 v206, {hex(ST0_OFF)}, v206')
    a.e('v_mul_u32_u24 v199, 20480, v14'); a.e('v_lshl_add_u32 v199, v15, 4, v199')
    a.e('s_lshl_b32 s49, s65, 7'); a.e('v_add_u32 v199, s49, v199')
    a.wait_vm('A1')
    a.e('s_barrier')
    M.stamp('c2_Alanded')
    if not BHELP: B_dma(M, 120832, vt=192)
    a.e('v_add_u32 v9, 65536, v9'); a.e('v_add_u32 v10, 65536, v10')
    A_reads(M, 8, 24, 99328 - 65536, 'Ar'); a.wait_lg('Ar')
    A_compute(M, 8, 24, 56)
    M.srd(SC, pSK, SZ)
    KRAW = 141312
    a.e(f's_mul_i32 s62, s{sW}, 4224'); a.e(f's_add_u32 s62, s62, {KRAW}'); a.e('s_mov_b32 m0, s62'); a.e('s_nop 0')
    for p in range(4):
        a.e(f'buffer_load_dwordx4 v5, s[{SC}:{SC+3}], 0 offen offset:{1024*p} lds', 'k')
    M.set_flag(sID, F1, 14, 'Ast')
    M.stamp('c3_F1set')
    a.e(f'v_add_u32 v17, s62, v{vL16}')
    if not BHELP:
        B_addr(M, 120832)
        B_finish(M, 120832)
    DE = 128; F = 152
    a.wait_vm('k')
    for p in range(4):
        a.e(f'ds_read_b128 v[{DE+6*p}:{DE+6*p+3}], v17 offset:{1024*p}', f'k{p}')
        a.e(f'ds_read_b64 v[{DE+6*p+4}:{DE+6*p+5}], v17 offset:{1024*p+16}', f'k{p}')
    O1 = 180
    for p in range(4):
        a.wait_lg(f'k{p}')
        d = DE + 6 * p; f = F + 4 * p
        if p == 0:
            a.e(f'v_readfirstlane_b32 s50, v{d}'); a.e(f'v_readfirstlane_b32 s51, v{d+1}')
        o1 = O1 + 8 * (p & 1); o3 = o1 + 4
        a.e(f'ds_write_b128 v170, v[{d}:{d+3}] offset:{32+1024*p}', 'cp')
        for j in range(4): a.e(f'v_mov_b32 v{f+j}, v{d+1+j}')
        for j in range(4): a.e(f'v_alignbit_b32 v{o1+j}, v{d+1+j}, v{d+j}, 16')
        for j in range(4): a.e(f'v_alignbit_b32 v{o3+j}, v{d+2+j}, v{d+1+j}, 16')
        a.e(f'ds_write_b128 v170, v[{f}:{f+3}] offset:{2*CPY+32+1024*p}', 'cp')
        a.e(f'ds_write_b128 v170, v[{o1}:{o1+3}] offset:{CPY+32+1024*p}', 'cp')
        a.e(f'ds_write_b128 v170, v[{o3}:{o3+3}] offset:{3*CPY+32+1024*p}', 'cp')
    a.e('s_lshl_b32 s52, s50, 16'); a.e('s_lshr_b32 s53, s50, 16'); a.e('s_lshl_b32 s54, s51, 16'); a.e('s_or_b32 s53, s53, s54')
    a.e('v_mov_b32 v13, v199')
    for j in range(4): a.e(f'v_mov_b32 v{196+j}, 0')
    a.e('v_writelane_b32 v198, s52, 7')
    a.e('v_writelane_b32 v199, s52, 3'); a.e('v_writelane_b32 v199, s50, 5'); a.e('v_writelane_b32 v199, s53, 7')
    a.e('s_mov_b64 exec, 0xff'); a.e('ds_write_b128 v207, v[196:199]', 'cp'); a.e('s_mov_b64 exec, -1')
    a.e('s_lshr_b32 s58, s65, 4'); a.e('s_lshl_b32 s58, s58, 5')
    if not BHELP:
        a.wait_vm('Bst')
        a.e('s_barrier')
        Lnb = M.lab('NOFB')
        a.e(f's_cmp_ge_u32 s{sID}, {NB}'); a.e(f's_cbranch_scc1 {Lnb}')
        M.write_flag(sID, FB, 14)
        a.label(Lnb)
    M.stamp('c3b_copies')
    M.poll(58, F1, 32, 16)
    M.stamp('c4_F1polled')
    a.e('s_mov_b32 m0, s63'); a.e(f's_mov_b32 s49, {hex(R_OFF)}')
    for p in range(4):
        a.e(f'buffer_load_dwordx4 v5, s[{WS}:{WS+3}], s49 offen offset:{1024*p} sc1 lds', 'R')
    a.wait_vm('R')
    a.e('s_waitcnt lgkmcnt(0)')
    M.stamp('c5_Rlanded')
    ACC = 16; BUF = [64, 128]
    def loads(rho):
        b = BUF[rho & 1]; L = []
        L.append([f'ds_read_b64 v[{b}:{b+1}], v204 offset:{64*rho}', f'ds_read_b64 v[{b+2}:{b+3}], v204 offset:{64*rho+8}'])
        for z in range(8): L.append([f'ds_read_b128 v[{b+32+4*z}:{b+35+4*z}], v205 offset:{64*rho+512*(7-z)}'])
        for q in range(1, 8):
            L.append([f'ds_read_b64 v[{b+4*q}:{b+4*q+1}], v204 offset:{64*rho+512*q}', f'ds_read_b64 v[{b+4*q+2}:{b+4*q+3}], v204 offset:{64*rho+512*q+8}'])
        return [x for l in L for x in l]
    def fix(s): return s
    for ins in loads(0): a.e(fix(ins))
    a.e('s_waitcnt lgkmcnt(0)')
    b = BUF[0]
    for i in range(8):
        a.e(f'v_mfma_f32_16x16x32_bf16 v[{ACC+4*i}:{ACC+4*i+3}], v[200:203], v[{b+32+4*i}:{b+35+4*i}], 0')
    XQ = 208
    for rho in range(8):
        b = BUF[rho & 1]
        nxt = [fix(x) for x in loads(rho + 1)] if rho < 7 else []
        mf = [(q, i) for q in range(8) for i in range(q, 8)]
        li = 0
        if rho == (4 if BHELP else 2):
            nlB = M.poll_addr(None, FB, NB, 8)
            M.poll_issue(nlB, 8, tag='fb')
        if rho == (5 if BHELP else 4):
            Lok = M.lab('FBOK')
            a.wait_vm('fb')
            M.poll_check(nlB, 8, Lok)
            M.poll_loop(nlB, 8, Lok, sleep=2)
            a.label(Lok)
            for j in range(4):
                a.e(f's_mov_b32 s49, {hex(XQ0_OFF + 20480*32*j)}'); a.e(f's_mov_b32 s50, {4096*j}')
                a.e(f'buffer_load_dwordx4 v[{XQ+8*j}:{XQ+8*j+3}], v13, s[{WS}:{WS+3}], s49 offen sc1', 'xq')
                a.e(f'buffer_load_dwordx4 v[{XQ+8*j+4}:{XQ+8*j+7}], v206, s[{WS}:{WS+3}], s50 offen sc1', 'xq')
        if rho == (4 if 'convW' in EXPL else 7):
            nlC = M.poll_addr(None, FC, NC, 240)
            M.poll_issue(nlC, 240, tag='fc')
        wl = []
        if rho == 5 and 'convW' in EXPL:
            a.wait_vm('fc')
            a.e(f'v_cmp_ne_u32 vcc, s{sN}, v242'); a.e(f'v_cmp_ne_u32 s[52:53], s{sN}, v243'); a.e('s_or_b64 vcc, vcc, s[52:53]')
            a.e('s_cmp_eq_u64 vcc, 0'); a.e('s_cselect_b32 s62, 1, 0'); a.e(f's_cselect_b32 s49, 0, {hex(OOB)}')
            a.e('v_or_b32 v252, s49, v250'); a.e('v_or_b32 v253, s49, v251')
            WQ = [(ks, f) for ks in range(WPRE) for f in range(2)]
        if rho >= 5 and 'convW' in EXPL:
            cnt = {5: 10, 6: 9, 7: 9}[rho]
            wl = [WQ.pop(0) for _ in range(min(cnt, len(WQ)))]
        for n, (q, i) in enumerate(mf):
            z = i - q
            a.e(f'v_mfma_f32_16x16x32_bf16 v[{ACC+4*i}:{ACC+4*i+3}], v[{b+4*q}:{b+4*q+3}], v[{b+32+4*z}:{b+35+4*z}], v[{ACC+4*i}:{ACC+4*i+3}]')
            if li < len(nxt) and n < 30:
                a.e(nxt[li]); li += 1
            if wl and n % 4 == 3 or (wl and n == 34):
                ks_, f_ = wl.pop(0)
                if f_ == 0: a.e(f's_mov_b32 s59, {122880*ks_}')
                a.e(f'buffer_load_dwordx4 a[{8*ks_+4*f_}:{8*ks_+4*f_+3}], v{252+f_}, s[{WS}:{WS+3}], s59 offen sc1', 'wpre')
        assert not wl, wl
        if rho < 7: a.e('s_waitcnt lgkmcnt(0)')
    M.stamp('c6_mainend')
    P = 64
    for i in range(8):
        a.e(f'v_cvt_pk_bf16_f32 v{P+2*i}, v{ACC+4*i}, v{ACC+4*i+1}'); a.e(f'v_cvt_pk_bf16_f32 v{P+2*i+1}, v{ACC+4*i+2}, v{ACC+4*i+3}')
    a.e(f'v_mul_u32_u24 v8, 144, v{vG}'); a.e(f'v_lshl_add_u32 v8, v{vI}, 3, v8'); a.e('v_add_u32 v8, s67, v8')
    for i in range(8): a.e(f'ds_write_b64 v8, v[{P+2*i}:{P+2*i+1}] offset:{576*i}', 'yw')
    a.e('v_lshrrev_b32 v9, 7, v0'); a.e('v_mul_u32_u24 v9, 576, v9')
    a.e('v_bfe_u32 v10, v0, 1, 2'); a.e('v_mul_u32_u24 v10, 144, v10'); a.e('v_add_u32 v9, v9, v10')
    a.e('v_bfe_u32 v10, v0, 3, 4'); a.e('v_lshl_add_u32 v9, v10, 3, v9')
    a.e('v_and_b32 v10, 1, v0'); a.e('v_lshl_add_u32 v9, v10, 2, v9')
    a.e(f'v_add_u32 v10, {2*WSZ}, v9')
    a.e('s_waitcnt lgkmcnt(0)')
    a.e('s_barrier')
    YR = 96
    for j in range(4):
        for c in range(4):
            a.e(f'ds_read_b32 v{YR+4*j+c}, v{9 + (c>>1)} offset:{(c&1)*WSZ + 1152*j}', f'yr{j}')
    a.e('s_mov_b32 s52, 0xffff0000'); a.e('s_mov_b32 s53, 0x05040100'); a.e('s_mov_b32 s54, 0x07060302')
    a.wait_vm('xq')
    M.stamp('c7_epi_rd')
    for j in range(4):
        a.wait_lg(f'yr{j}')
        x = XQ + 8 * j; y = YR + 4 * j; t = 128 + 32 * (j & 1)
        for c in range(4):
            a.e(f'v_lshlrev_b32 v{t+c}, 16, v{y+c}'); a.e(f'v_and_b32 v{t+4+c}, s52, v{y+c}')
        a.e(f'v_perm_b32 v{t+24}, v{y+1}, v{y}, s53'); a.e(f'v_perm_b32 v{t+25}, v{y+3}, v{y+2}, s53')
        a.e(f'v_perm_b32 v{t+26}, v{y+1}, v{y}, s54'); a.e(f'v_perm_b32 v{t+27}, v{y+3}, v{y+2}, s54')
        for k in range(2):
            xx = t + 8; nn = t + 12; st = x + 4 + 2 * k
            for h in range(2):
                a.e(f'v_lshlrev_b32 v{xx+2*h}, 16, v{x+2*k+h}'); a.e(f'v_and_b32 v{xx+2*h+1}, s52, v{x+2*k+h}')
            for h in range(2):
                a.e(f'v_pk_add_f32 v[{nn+2*h}:{nn+2*h+1}], v[{xx+2*h}:{xx+2*h+1}], v[{st}:{st+1}] op_sel_hi:[1,0]')
                a.e(f'v_pk_mul_f32 v[{t+4*k+2*h}:{t+4*k+2*h+1}], v[{t+4*k+2*h}:{t+4*k+2*h+1}], v[{st}:{st+1}] op_sel:[0,1] op_sel_hi:[1,1]')
            for h in range(2):
                a.e(f'v_pk_fma_f32 v[{xx+2*h}:{xx+2*h+1}], v[{nn+2*h}:{nn+2*h+1}], v[{t+4*k+2*h}:{t+4*k+2*h+1}], v[{xx+2*h}:{xx+2*h+1}]')
            a.e(f'v_cvt_pk_bf16_f32 v{t+16+2*k}, v{xx}, v{xx+1}'); a.e(f'v_cvt_pk_bf16_f32 v{t+17+2*k}, v{xx+2}, v{xx+3}')
        a.e(f's_mov_b32 s49, {hex(X1_OFF + 20480*32*j)}'); a.e(f's_mov_b32 s50, {hex(Y_OFF + 20480*32*j)}')
        a.e(f'buffer_store_dwordx4 v[{t+16}:{t+19}], v13, s[{WS}:{WS+3}], s49 offen sc1')
        a.e(f'buffer_store_dwordx4 v[{t+24}:{t+27}], v13, s[{WS}:{WS+3}], s50 offen sc1')
    M.stamp('c8_stores')
    M.set_flag(sID, F2, 8)
    M.stamp('c9_F2set')
    Lok = M.lab('FCOK'); Lskip = M.lab('WDONE')
    if 'convW' in EXPL:
        a.e('s_cmp_eq_u32 s62, 1'); a.e(f's_cbranch_scc1 {Lskip}')
    else:
        M.poll_check(nlC, 240, Lok)
    M.poll_loop(nlC, 240, Lok, sleep=8)
    a.label(Lok)
    for ks in range(WPRE): W_load(M, ks, None)
    a.label(Lskip)
    a.reset_counts()
```

```python
from mcommon import *
CSC = '' if 'plainC' in EXPL else ' sc1'

AK = 0; AV = 12288; ASZ = 20480
def A_dma(M, s_tile, vb, lds, tag, void_sgpr=None):
    a = M.a
    a.e(f's_and_b32 s49, s{s_tile}, 31'); a.e('s_lshl_b32 s49, s49, 6')
    a.e(f's_lshr_b32 s50, s{s_tile}, 5'); a.e('s_lshl_b32 s51, s50, 7')
    a.e(f'v_lshrrev_b32 v{vb+1}, 3, v{vL}'); a.e(f'v_and_b32 v{vb+2}, 7, v{vL}')
    for m in range(3):
        a.e(f's_add_u32 s52, s{sW}, {4*m}'); a.e('s_and_b32 s53, s52, 7'); a.e('s_lshl_b32 s54, s52, 3')
        a.e(f'v_xor_b32 v{vb+3}, s53, v{vb+2}'); a.e(f'v_lshl_add_u32 v{vb+3}, v{vb+3}, 4, s51')
        a.e(f'v_add_u32 v{vb+4}, s54, v{vb+1}')
        a.e(f's_sub_u32 s55, s49, 3'); a.e(f'v_add_u32 v{vb+5}, s55, v{vb+4}')
        a.e(f'v_mad_i32_i24 v{vb+6+m}, v{vb+5}, v{vb+9}, v{vb+3}') if False else None
        a.e(f'v_mul_i32_i24 v{vb+6+m}, 1280, v{vb+5}'); a.e(f'v_add_u32 v{vb+6+m}, v{vb+6+m}, v{vb+3}')
        a.e(f'v_cmp_gt_u32 vcc, 67, v{vb+4}'); a.e(f'v_cmp_le_i32 s[56:57], 0, v{vb+5}'); a.e('s_and_b64 vcc, vcc, s[56:57]')
        if void_sgpr is not None: a.e(f's_and_b64 vcc, vcc, s[{void_sgpr}:{void_sgpr+1}]')
        a.e(f'v_mov_b32 v{vb+9}, {hex(OOB)}'); a.e(f'v_cndmask_b32 v{vb+6+m}, v{vb+9}, v{vb+6+m}, vcc')
        a.e('s_lshl_b32 s52, s52, 10'); a.e(f's_add_u32 m0, s52, {lds + AK}')
        a.e('s_nop 0')
        a.e(f'buffer_load_dwordx4 v{vb+6+m}, s[{SA}:{SA+3}], 0 offen lds', tag)
    for m in range(2):
        a.e(f's_add_u32 s52, s{sW}, {4*m}'); a.e('s_lshl_b32 s54, s52, 3')
        a.e(f'v_xor_b32 v{vb+3}, s52, v{vb+2}'); a.e(f'v_lshl_add_u32 v{vb+3}, v{vb+3}, 4, s51')
        a.e('s_add_u32 s54, s54, s49'); a.e(f'v_add_u32 v{vb+5}, s54, v{vb+1}')
        a.e(f'v_mul_u32_u24 v{vb+6+m}, 1280, v{vb+5}'); a.e(f'v_add_u32 v{vb+6+m}, v{vb+6+m}, v{vb+3}')
        if void_sgpr is not None: a.e(f'v_cndmask_b32 v{vb+6+m}, v{vb+9}, v{vb+6+m}, s[{void_sgpr}:{void_sgpr+1}]')
        a.e('s_lshl_b32 s52, s52, 10'); a.e(f's_add_u32 m0, s52, {lds + AV}')
        a.e('s_nop 0')
        a.e(f'buffer_load_dwordx4 v{vb+6+m}, s[{SB}:{SB+3}], 0 offen lds', tag)

def A_addr(M, s_tile, vb, d, lds, tag, void_sgpr=None):
    a = M.a
    a.e(f's_and_b32 s49, s{s_tile}, 31'); a.e('s_lshl_b32 s49, s49, 6'); a.e(f's_lshr_b32 s50, s{s_tile}, 5')
    a.e(f'v_and_b32 v{vb+3}, 7, v0'); a.e(f'v_lshrrev_b32 v{vb+4}, 3, v0')
    a.e('s_lshl_b32 s51, s50, 5'); a.e(f'v_add_u32 v{vb+5}, s51, v{vb+4}')
    a.e(f'v_lshlrev_b32 v{vb+6}, 4, v{vb+5}')
    if void_sgpr is not None:
        a.e(f'v_mov_b32 v{vb+7}, {hex(OOB)}'); a.e(f'v_cndmask_b32 v{vb+6}, v{vb+7}, v{vb+6}, s[{void_sgpr}:{void_sgpr+1}]')
    a.e(f'buffer_load_dwordx4 v[{d}:{d+3}], v{vb+6}, s[{SC}:{SC+3}], 0 offen', tag)
    a.e(f'v_lshl_add_u32 v{vb}, v{vb+3}, 3, s49'); a.e(f'v_lshlrev_b32 v{vb}, 1, v{vb}'); a.e(f'v_sub_u32 v{vb}, {4080 + R_OFF}, v{vb}')
    a.e(f'v_lshl_add_u32 v{vb}, v{vb+5}, 13, v{vb}')
    if void_sgpr is not None: a.e(f'v_cndmask_b32 v{vb}, v{vb+7}, v{vb}, s[{void_sgpr}:{void_sgpr+1}]')
    a.e(f'v_lshrrev_b32 v{vb+6}, 2, v{vb+4}'); a.e(f'v_and_b32 v{vb+4}, 3, v{vb+4}'); a.e(f'v_lshlrev_b32 v{vb+4}, 2, v{vb+4}')
    a.e(f'v_xor_b32 v{vb+1}, v{vb+6}, v{vb+3}'); a.e(f'v_lshl_add_u32 v{vb+1}, v{vb+1}, 4, v{vb+4}'); a.e(f'v_lshl_add_u32 v{vb+1}, v{vb+3}, 10, v{vb+1}')
    a.e(f'v_add_u32 v{vb+3}, 1, v{vb+3}'); a.e(f'v_and_b32 v{vb+5}, 7, v{vb+3}')
    a.e(f'v_xor_b32 v{vb+2}, v{vb+6}, v{vb+5}'); a.e(f'v_lshl_add_u32 v{vb+2}, v{vb+2}, 4, v{vb+4}'); a.e(f'v_lshl_add_u32 v{vb+2}, v{vb+3}, 10, v{vb+2}')

def A_reads(M, vb, d, lds, tag):
    a = M.a
    for j in range(11):
        if j < 8: a.e(f'ds_read_b32 v{d+4+j}, v{vb+1} offset:{lds + AK + 128*j}', tag)
        else: a.e(f'ds_read_b32 v{d+4+j}, v{vb+2} offset:{lds + AK + 128*(j-8)}', tag)
    for j in range(8): a.e(f'ds_read_b32 v{d+15+j}, v{vb+1} offset:{lds + AV + 128*j}', tag)

def A_compute(M, vb, d, t):
    a = M.a
    a.e('s_mov_b32 s49, 0xffff0000')
    SP = t; KP = t + 8; U = t + 30; O = t + 46
    a.e(f'v_lshlrev_b32 v{SP+0}, 16, v{d+0}'); a.e(f'v_lshlrev_b32 v{SP+1}, 16, v{d+2}')
    a.e(f'v_and_b32 v{SP+2}, s49, v{d+0}');    a.e(f'v_and_b32 v{SP+3}, s49, v{d+2}')
    a.e(f'v_lshlrev_b32 v{SP+4}, 16, v{d+1}'); a.e(f'v_lshlrev_b32 v{SP+5}, 16, v{d+3}')
    a.e(f'v_and_b32 v{SP+6}, s49, v{d+1}');    a.e(f'v_and_b32 v{SP+7}, s49, v{d+3}')
    for j in range(11):
        a.e(f'v_lshlrev_b32 v{KP+2*j}, 16, v{d+4+j}'); a.e(f'v_and_b32 v{KP+2*j+1}, s49, v{d+4+j}')
    for i in range(8):
        a.e(f'v_pk_mul_f32 v[{U+2*i}:{U+2*i+1}], v[{KP+2*(i+3)}:{KP+2*(i+3)+1}], v[{SP}:{SP+1}]')
    for m in range(1, 4):
        for i in range(8):
            a.e(f'v_pk_fma_f32 v[{U+2*i}:{U+2*i+1}], v[{KP+2*(i+3-m)}:{KP+2*(i+3-m)+1}], v[{SP+2*m}:{SP+2*m+1}], v[{U+2*i}:{U+2*i+1}]')
    for i in range(8):
        a.e(f'v_lshlrev_b32 v{KP+2*i}, 16, v{d+15+i}'); a.e(f'v_and_b32 v{KP+2*i+1}, s49, v{d+15+i}')
    for i in range(8):
        a.e(f'v_pk_mul_f32 v[{U+2*i}:{U+2*i+1}], v[{U+2*i}:{U+2*i+1}], v[{KP+2*i}:{KP+2*i+1}]')
    for c in range(2):
        for q in range(4):
            a.e(f'v_cvt_pk_bf16_f32 v{O+4*c+q}, v{U+2*(7-2*q)+c}, v{U+2*(6-2*q)+c}')
    a.e(f'v_add_u32 v{vb+3}, 4096, v{vb}')
    a.e(f'buffer_store_dwordx4 v[{O}:{O+3}], v{vb}, s[{WS}:{WS+3}], 0 offen sc1', 'Ast')
    a.e(f'buffer_store_dwordx4 v[{O+4}:{O+7}], v{vb+3}, s[{WS}:{WS+3}], 0 offen sc1', 'Ast')

def B_src(M, vt, own=True):
    a = M.a
    if own:
        a.e(f's_mul_i32 s61, s{sID}, 20480'); a.e(f's_cmp_ge_u32 s{sID}, 128'); a.e(f's_cselect_b32 s61, {hex(OOB)}, s61')
    else:
        a.e('s_mov_b32 s61, 0')
    a.e(f's_lshl_b32 s59, s{sW}, 6')
    for m in range(5):
        r = vt + m
        a.e(f's_add_u32 s49, s59, {256*m}'); a.e(f'v_add_u32 v{r}, s49, v{vL}')
        a.e(f'v_mul_u32_u24 v190, 52429, v{r}'); a.e('v_lshrrev_b32 v190, 22, v190')
        a.e('v_mul_u32_u24 v191, 80, v190'); a.e(f'v_sub_u32 v{r}, v{r}, v191')
        a.e('v_and_b32 v191, 14, v190'); a.e(f'v_xor_b32 v{r}, v{r}, v191')
        a.e('v_mul_u32_u24 v190, 1280, v190'); a.e(f'v_lshl_add_u32 v{r}, v{r}, 4, v190'); a.e(f'v_add_u32 v{r}, s61, v{r}')

def B_dma(M, RAW, vt=9):
    a = M.a
    M.srd(SA, pQ, SZ)
    a.e(f's_lshl_b32 s59, s{sW}, 10')
    for m in range(5):
        a.e(f's_add_u32 m0, s59, {RAW + 4096*m}'); a.e('s_nop 0')
        a.e(f'buffer_load_dwordx4 v{vt+m}, s[{SA}:{SA+3}], 0 offen lds', 'B')

def B_addr(M, RAW):
    a = M.a
    a.e('v_lshrrev_b32 v12, 4, v0'); a.e('v_mul_u32_u24 v10, 1280, v12'); a.e(f'v_lshl_add_u32 v10, v{vI}, 4, v10'); a.e(f'v_add_u32 v10, {RAW}, v10')
    a.e('v_and_b32 v9, 7, v0'); a.e('v_mul_u32_u24 v11, 2560, v9'); a.e('v_lshlrev_b32 v9, 1, v9'); a.e('v_lshrrev_b32 v8, 4, v0'); a.e('v_xor_b32 v8, v8, v9')
    a.e('v_lshl_add_u32 v11, v8, 4, v11'); a.e('v_bfe_u32 v8, v0, 3, 1'); a.e('v_lshl_add_u32 v11, v8, 3, v11'); a.e(f'v_add_u32 v11, {RAW}, v11')
    a.e(f's_mul_i32 s61, s{sID}, 20480'); a.e(f's_add_u32 s61, s61, {hex(XQ0_OFF)}'); a.e(f's_cmp_ge_u32 s{sID}, 128'); a.e(f's_cselect_b32 s61, {hex(OOB)}, s61')
    a.e('v_lshl_add_u32 v8, v0, 4, s61')
    a.e(f's_lshl_b32 s61, s{sID}, 7'); a.e(f's_add_u32 s61, s61, {hex(ST0_OFF)}'); a.e(f's_cmp_ge_u32 s{sID}, 128'); a.e(f's_cselect_b32 s61, {hex(OOB)}, s61')
    a.e('v_lshl_add_u32 v12, v12, 3, s61'); a.e(f'v_mov_b32 v19, {hex(OOB)}'); a.e(f'v_cmp_eq_u32 vcc, 0, v{vI}'); a.e('v_cndmask_b32 v12, v19, v12, vcc')

def B_finish(M, RAW, D=24, E=44):
    a = M.a
    a.e('s_mov_b32 s60, 0x3f803f80')
    for j in range(5): a.e(f'ds_read_b128 v[{D+4*j}:{D+4*j+3}], v10 offset:{256*j}', 'bs')
    for j in range(5):
        a.e(f'ds_read_b64 v[{E+4*j}:{E+4*j+1}], v11 offset:{256*j}', 'br'); a.e(f'ds_read_b64 v[{E+4*j+2}:{E+4*j+3}], v11 offset:{256*j+1280}', 'br')
    for j in range(4): a.e(f'v_mov_b32 v{20+j}, 0')
    a.wait_lg('bs')
    for j in range(10):
        a.e(f'v_dot2_f32_bf16 v20, v{D+2*j}, s60, v20'); a.e(f'v_dot2_f32_bf16 v21, v{D+2*j}, v{D+2*j}, v21')
        a.e(f'v_dot2_f32_bf16 v22, v{D+2*j+1}, s60, v22'); a.e(f'v_dot2_f32_bf16 v23, v{D+2*j+1}, v{D+2*j+1}, v23')
    a.wait_lg('br')
    for j in range(5):
        a.e(f's_mov_b32 s49, {4096*j}')
        a.e(f'buffer_store_dwordx4 v[{E+4*j}:{E+4*j+3}], v8, s[{WS}:{WS+3}], s49 offen sc1', 'Bst')
    a.e('v_add_f32 v20, v20, v22'); a.e('v_add_f32 v21, v21, v23')
    for n in (8, 4, 2, 1):
        a.e(f'v_add_f32_dpp v20, v20, v20 row_ror:{n} row_mask:0xf bank_mask:0xf'); a.e(f'v_add_f32_dpp v21, v21, v21 row_ror:{n} row_mask:0xf bank_mask:0xf')
    a.e(f'v_mul_f32 v20, {hex(f32(-1.0/640))}, v20')
    a.e(f'v_mov_b32 v22, {hex(f32(1e-5))}'); a.e(f'v_fmac_f32 v22, {hex(f32(1.0/640))}, v21'); a.e('v_fma_f32 v22, -v20, v20, v22'); a.e(f'v_max_f32 v22, {hex(f32(1e-5))}, v22'); a.e('v_rsq_f32 v21, v22')
    a.e(f'buffer_store_dwordx2 v[20:21], v12, s[{WS}:{WS+3}], 0 offen sc1', 'Bst')

def B_helper(M):
    a = M.a
    RAW = 40960
    vt = 192
    M.srd(SA, pQ, SZ)
    a.e(f's_sub_u32 s58, s{sID}, {160 + NC}')
    a.e(f's_lshl_b32 s59, s{sW}, 10')
    for p in range(3):
        a.e(f's_add_u32 s60, s58, {NB*p}'); a.e('s_mul_i32 s61, s60, 20480'); a.e('s_cmp_ge_u32 s60, 128'); a.e(f's_cselect_b32 s61, {hex(OOB)}, s61')
        for m in range(5):
            a.e(f's_add_u32 m0, s59, {RAW + 20480*p + 4096*m}'); a.e('s_nop 0')
            a.e(f'buffer_load_dwordx4 v{vt+m}, s[{SA}:{SA+3}], s61 offen lds', f'B{p}')
    a.e('v_lshrrev_b32 v12, 4, v0'); a.e('v_mul_u32_u24 v10, 1280, v12'); a.e(f'v_lshl_add_u32 v10, v{vI}, 4, v10'); a.e(f'v_add_u32 v10, {RAW}, v10')
    a.e('v_and_b32 v9, 7, v0'); a.e('v_mul_u32_u24 v11, 2560, v9'); a.e('v_lshlrev_b32 v9, 1, v9'); a.e('v_lshrrev_b32 v8, 4, v0'); a.e('v_xor_b32 v8, v8, v9')
    a.e('v_lshl_add_u32 v11, v8, 4, v11'); a.e('v_bfe_u32 v8, v0, 3, 1'); a.e('v_lshl_add_u32 v11, v8, 3, v11'); a.e(f'v_add_u32 v11, {RAW}, v11')
    a.e(f'v_lshlrev_b32 v8, 4, v0'); a.e(f'v_add_u32 v8, {hex(XQ0_OFF)}, v8')
    a.e(f'v_lshlrev_b32 v12, 3, v12'); a.e(f'v_add_u32 v12, {hex(ST0_OFF)}, v12'); a.e(f'v_mov_b32 v19, {hex(OOB)}'); a.e(f'v_cmp_eq_u32 vcc, 0, v{vI}'); a.e('v_cndmask_b32 v12, v19, v12, vcc')
    a.e('s_mov_b32 s57, 0x3f803f80')
    M.stamp('h5_Bissued')
    D = 24; E = 44
    for p in range(3):
        a.wait_vm(f'B{p}'); a.e('s_barrier')
        if p:
            a.e('v_add_u32 v10, 20480, v10'); a.e('v_add_u32 v11, 20480, v11')
        for j in range(5): a.e(f'ds_read_b128 v[{D+4*j}:{D+4*j+3}], v10 offset:{256*j}', 'bs')
        for j in range(5):
            a.e(f'ds_read_b64 v[{E+4*j}:{E+4*j+1}], v11 offset:{256*j}', 'br'); a.e(f'ds_read_b64 v[{E+4*j+2}:{E+4*j+3}], v11 offset:{256*j+1280}', 'br')
        a.e(f's_add_u32 s60, s58, {NB*p}'); a.e('s_mul_i32 s61, s60, 20480'); a.e('s_lshl_b32 s62, s60, 7')
        a.e('s_cmp_ge_u32 s60, 128'); a.e(f's_cselect_b32 s61, {hex(OOB)}, s61'); a.e(f's_cselect_b32 s62, {hex(OOB)}, s62')
        for j in range(4): a.e(f'v_mov_b32 v{20+j}, 0')
        a.wait_lg('bs')
        for j in range(10):
            a.e(f'v_dot2_f32_bf16 v20, v{D+2*j}, s57, v20'); a.e(f'v_dot2_f32_bf16 v21, v{D+2*j}, v{D+2*j}, v21')
            a.e(f'v_dot2_f32_bf16 v22, v{D+2*j+1}, s57, v22'); a.e(f'v_dot2_f32_bf16 v23, v{D+2*j+1}, v{D+2*j+1}, v23')
        a.wait_lg('br')
        for j in range(5):
            a.e(f's_add_u32 s49, s61, {4096*j}')
            a.e(f'buffer_store_dwordx4 v[{E+4*j}:{E+4*j+3}], v8, s[{WS}:{WS+3}], s49 offen sc1', 'Bst')
        a.e('v_add_f32 v20, v20, v22'); a.e('v_add_f32 v21, v21, v23')
        for n in (8, 4, 2, 1):
            a.e(f'v_add_f32_dpp v20, v20, v20 row_ror:{n} row_mask:0xf bank_mask:0xf'); a.e(f'v_add_f32_dpp v21, v21, v21 row_ror:{n} row_mask:0xf bank_mask:0xf')
        a.e(f'v_mul_f32 v20, {hex(f32(-1.0/640))}, v20')
        a.e(f'v_mov_b32 v22, {hex(f32(1e-5))}'); a.e(f'v_fmac_f32 v22, {hex(f32(1.0/640))}, v21'); a.e('v_fma_f32 v22, -v20, v20, v22'); a.e(f'v_max_f32 v22, {hex(f32(1e-5))}, v22'); a.e('v_rsq_f32 v21, v22')
        a.e(f'buffer_store_dwordx2 v[20:21], v12, s[{WS}:{WS+3}], s62 offen sc1', 'Bst')
    M.set_flag(58, FB, 130)
    M.stamp('h8_FBset')

def divc(a, dst, src, d):
    m = {5: (205, 10), 160: (52429, 23)}[d]
    a.e(f'v_mul_u32_u24 v{dst}, {m[0]}, v{src}'); a.e(f'v_lshrrev_b32 v{dst}, {m[1]}, v{dst}')

NPASS = 4 if BHELP else 3
def C_role(M, count=True):
    a = M.a
    RAW = 40960
    Lwo = M.lab('CWO'); Lend = M.lab('CEND')
    t0, t1, t2, t3, t4 = 140, 141, 142, 143, 144
    a.e(f's_sub_u32 s49, s{sID}, 160'); a.e('s_lshl_b32 s49, s49, 2'); a.e(f's_add_u32 s49, s49, s{sW}')
    if NPASS == 3:
        a.e('s_mul_i32 s51, s49, 9363'); a.e('s_lshr_b32 s51, s51, 16')
        a.e('s_mul_i32 s50, s51, 7'); a.e('s_sub_u32 s50, s49, s50'); a.e('s_mul_i32 s50, s50, 3')
        a.e('s_cmp_eq_u32 s50, 18'); a.e(f's_cselect_b32 s64, {hex(OOB)}, 0')
    else:
        a.e('s_mul_i32 s51, s49, 205'); a.e('s_lshr_b32 s51, s51, 10')
        a.e('s_mul_i32 s50, s51, 5'); a.e('s_sub_u32 s50, s49, s50'); a.e('s_lshl_b32 s50, s50, 2')
        a.e('s_mov_b32 s64, 0')
    a.e('s_cmp_ge_u32 s51, 30'); a.e(f's_cbranch_scc1 {Lwo}')
    M.srd(SC, pWQ, 640 * 3840)
    a.e(f'v_lshrrev_b32 v{t0}, 3, v{vL}'); a.e(f'v_and_b32 v{t1}, 3, v{t0}'); a.e(f'v_lshrrev_b32 v{t0}, 2, v{t0}'); a.e(f'v_lshl_add_u32 v{t1}, v{t0}, 4, v{t1}')
    a.e('s_lshl_b32 s52, s50, 5'); a.e(f'v_add_u32 v{t1}, s52, v{t1}'); a.e(f'v_mul_u32_u24 v{t1}, 3840, v{t1}')
    a.e(f'v_and_b32 v{t0}, 7, v{vL}'); a.e(f'v_lshl_add_u32 v{t1}, v{t0}, 4, v{t1}'); a.e('s_lshl_b32 s52, s51, 7'); a.e(f'v_add_u32 v145, s52, v{t1}')
    for g in range(4): a.e(f'v_add_u32 v{146+g}, {4*3840*g}, v145')
    a.e('s_lshl_b32 s52, s51, 4'); a.e(f'v_add_u32 v{t0}, s52, v{vI}')
    a.e('s_mul_i32 s52, s50, 7680'); a.e(f's_add_u32 s52, s52, {hex(CSP_OFF)}'); a.e(f'v_lshl_add_u32 v139, v{t0}, 4, s52')
    a.e('s_mul_i32 s52, s50, 122880'); a.e('s_lshl_b32 s53, s51, 12'); a.e('s_add_u32 s52, s52, s53'); a.e(f's_add_u32 s52, s52, {hex(WF1_OFF)}')
    a.e(f'v_add_u32 v138, s52, v{vL16}')
    a.e('s_mov_b32 s56, 122880'); a.e('s_mov_b32 s57, 7680')
    for p in range(NPASS):
        for g in range(4):
            a.e(f'v_add_u32 v{152+4*p+g}, {32*3840*p}, v{146+g}')
    a.e(f's_branch {Lend}')
    a.label(Lwo)
    a.e('s_sub_u32 s51, s51, 30')
    M.srd(SC, pWO, 640 * 1280)
    a.e('s_mul_i32 s52, s50, 40960'); a.e('s_lshl_b32 s53, s51, 12'); a.e('s_add_u32 s52, s52, s53'); a.e(f's_add_u32 s52, s52, {hex(WF2_OFF)}')
    a.e(f'v_add_u32 v138, s52, v{vL16}')
    a.e(f'v_mov_b32 v139, {hex(OOB)}')
    a.e('s_mov_b32 s56, 40960'); a.e('s_mov_b32 s57, 0')
    a.e(f'v_lshrrev_b32 v145, 3, v{vL}'); a.e(f'v_and_b32 v{t0}, 3, v145'); a.e('v_lshrrev_b32 v145, 2, v145')
    a.e('v_mul_u32_u24 v145, 20, v145'); a.e(f'v_add_u32 v145, v145, v{t0}'); a.e('v_mul_u32_u24 v145, 1280, v145')
    a.e(f'v_and_b32 v{t0}, 7, v{vL}'); a.e(f'v_lshl_add_u32 v145, v{t0}, 4, v145'); a.e('s_lshl_b32 s52, s51, 7'); a.e('v_add_u32 v145, s52, v145')
    for p in range(NPASS):
        for g in range(4):
            a.e(f's_add_u32 s52, s50, {p}'); a.e('s_lshl_b32 s52, s52, 2'); a.e(f's_add_u32 s52, s52, {g}')
            a.e('s_mul_i32 s54, s52, 205'); a.e('s_lshr_b32 s54, s54, 10'); a.e('s_mul_i32 s55, s54, 20'); a.e('s_lshl_b32 s52, s52, 2'); a.e('s_add_u32 s52, s52, s55')
            a.e('s_mul_i32 s52, s52, 1280')
            a.e(f'v_add_u32 v{152+4*p+g}, s52, v145')
    a.label(Lend)
    if NPASS == 3:
        for g in range(4): a.e(f'v_or_b32 v{160+g}, s64, v{160+g}')
    a.e(f's_cmp_ge_u32 s{sID}, {160 + NC}'); a.e(f's_cselect_b32 s52, {hex(OOB)}, 0')
    for j in range(4*NPASS): a.e(f'v_or_b32 v{152+j}, s52, v{152+j}')
    a.e(f's_lshl_b32 s52, s{sW}, 14'); a.e(f's_add_u32 s52, s52, {RAW}')
    for p in range(NPASS):
        for g in range(4):
            a.e(f's_add_u32 m0, s52, {4096*p + 1024*g}'); a.e('s_nop 0')
            a.e(f'buffer_load_dwordx4 v{152+4*p+g}, s[{SC}:{SC+3}], 0 offen lds', f'C{p}', count=count)
    a.e(f'v_mov_b32 v{t4}, {hex(OOB)}'); a.e(f'v_cmp_eq_u32 vcc, 0, v{vG}'); a.e(f'v_cndmask_b32 v139, v{t4}, v139, vcc')
    return RAW

def C_finish(M, RAW):
    a = M.a
    STG = 106496
    a.e('s_mov_b32 s54, 0x05040100'); a.e('s_mov_b32 s55, 0x07060302'); a.e('s_mov_b32 s60, 0x3f803f80')
    a.e(f's_mul_i32 s49, s{sW}, 5120'); a.e(f's_add_u32 s49, s49, {STG}')
    a.e(f'v_mul_u32_u24 v6, 80, v{vL}'); a.e('v_add_u32 v6, s49, v6')
    a.e(f'v_bfe_u32 v7, v{vL}, 2, 2'); a.e(f'v_lshl_add_u32 v7, v7, 4, v{vG}'); a.e('v_mul_u32_u24 v7, 80, v7')
    a.e(f'v_and_b32 v10, 3, v{vL}'); a.e('v_lshl_add_u32 v7, v10, 4, v7'); a.e('v_add_u32 v7, s49, v7')
    a.e(f's_lshl_b32 s49, s{sW}, 14'); a.e(f's_add_u32 s49, s49, {RAW}')
    a.e(f'v_lshlrev_b32 v11, 10, v{vG}'); a.e(f'v_lshl_add_u32 v11, v{vI}, 3, v11'); a.e('v_add_u32 v11, s49, v11')
    L = 48; O = 64; CS = O + 16; T = O + 20
    a.e('s_mov_b32 s62, 0'); a.e('s_mov_b32 s59, 0')
    for p in range(NPASS):
        if p == 2 and NPASS == 3:
            a.e('s_or_b32 s62, s62, s64'); a.e('s_or_b32 s59, s59, s64')
        a.wait_vm(f'C{p}')
        M.stamp(f'h6_Cp{p}')
        for e in range(8): a.e(f'ds_read_b64 v[{L+2*e}:{L+2*e+1}], v11 offset:{4096*p + 128*e}', 'Cq')
        a.wait_lg('Cq')
        for cc in range(4):
            for jj in range(4):
                a.e(f'v_perm_b32 v{O+4*cc+jj}, v{L+2*(2*jj+1)+(cc>>1)}, v{L+2*(2*jj)+(cc>>1)}, s{54+(cc&1)}')
        for cc in range(4): a.e(f'ds_write_b128 v6, v[{O+4*cc}:{O+4*cc+3}] offset:{16*cc}', 'Cw')
        for cc in range(4): a.e(f'v_mov_b32 v{CS+cc}, 0')
        for jj in range(4):
            for cc in range(4): a.e(f'v_dot2_f32_bf16 v{CS+cc}, v{O+4*cc+jj}, s60, v{CS+cc}')
        a.e('s_waitcnt lgkmcnt(0)')
        R_ = 96
        for j in range(4): a.e(f'ds_read_b128 v[{R_+4*j}:{R_+4*j+3}], v7 offset:{320*j}', 'Cr')
        for sw in ('v_permlane16_swap_b32', 'v_permlane32_swap_b32'):
            for j in range(4): a.e(f'v_mov_b32 v{T+j}, v{CS+j}')
            for j in range(4): a.e(f'{sw} v{CS+j}, v{T+j}')
            for j in range(4): a.e(f'v_add_f32 v{CS+j}, v{CS+j}, v{T+j}')
        a.e(f'buffer_store_dwordx4 v[{CS}:{CS+3}], v139, s[{WS}:{WS+3}], s59 offen' + CSC, 'Cst')
        a.wait_lg('Cr')
        for j in range(4): a.e(f'buffer_store_dwordx4 v[{R_+4*j}:{R_+4*j+3}], v138, s[{WS}:{WS+3}], s62 offen offset:{1024*j}' + CSC, 'Cst')
        a.e('s_add_u32 s62, s62, s56'); a.e('s_add_u32 s59, s59, s57')
    a.e(f's_sub_u32 s58, s{sID}, 160')
    M.set_flag(58, FC, 130)

def nonce(M):
    a = M.a
    a.e(f's_mul_i32 s{sN}, s{sN}, 0x9E3779B1'); a.e(f's_add_u32 s{sN}, s{sN}, 0x7F4A7C15')
    L = M.lab('NOXID')
    a.e(f's_cmp_lg_u32 s{sW}, 0'); a.e(f's_cbranch_scc1 {L}')
    a.e('s_getreg_b32 s49, hwreg(HW_REG_XCC_ID, 0, 4)')
    a.e(f's_and_b32 s50, s{sID}, 7'); a.e('s_lshl_b32 s50, s50, 5'); a.e(f's_lshr_b32 s51, s{sID}, 3'); a.e('s_add_u32 s50, s50, s51')
    a.e('s_lshl_b32 s50, s50, 3'); a.e(f's_add_u32 s50, s50, {hex(XID_OFF)}')
    a.e('v_mov_b32 v250, s50'); a.e(f'v_mov_b32 v252, s{sN}'); a.e('v_mov_b32 v253, s49')
    a.e('s_mov_b64 exec, 1'); a.e(f'buffer_store_dwordx2 v[252:253], v250, s[{WS}:{WS+3}], 0 offen sc1', count=False); a.e('s_mov_b64 exec, -1')
    a.label(L)

def helper_path(M):
    a = M.a
    a.reset_counts()
    M.srd(SA, pK, SZ); M.srd(SB, pV, SZ); M.srd(SC, pSH, 640 * 8)
    A_dma(M, sID, 8, 0, 'A')
    a.e(f's_add_u32 s65, s{sID}, 96')
    a.e('s_cmp_lt_u32 s65, 320'); a.e('s_cselect_b64 s[66:67], -1, 0')
    A_dma(M, 65, 8, ASZ, 'A', void_sgpr=66)
    A_addr(M, sID, 8, 24, 0, 'A')
    A_addr(M, 65, 16, 48, ASZ, 'A', void_sgpr=66)
    M.stamp('h1_Aissued')
    a.e('s_waitcnt lgkmcnt(0)')
    nonce(M)
    if BHELP: B_src(M, 192, own=False)
    a.wait_vm('A')
    a.e('s_barrier')
    A_reads(M, 8, 24, 0, 'Ar1'); a.wait_lg('Ar1')
    A_reads(M, 16, 48, ASZ, 'Ar2')
    A_compute(M, 8, 24, 72)
    a.wait_lg('Ar2')
    A_compute(M, 16, 48, 72)
    M.stamp('h2_Acomputed')
    M.set_flag(sID, F1, 130, 'Ast')
    Ln = M.lab('NOA2')
    a.e('s_cmp_ge_u32 s65, 320'); a.e(f's_cbranch_scc1 {Ln}')
    M.write_flag(65, F1, 130)
    a.label(Ln)
    M.stamp('h3_F1set')
    Le = M.lab('HELPEND'); Lb = M.lab('BROLE')
    a.e(f's_cmp_ge_u32 s{sID}, {160 + NC}'); a.e(f's_cbranch_scc1 {Lb if BHELP else Le}')
    a.reset_counts()
    raw = C_role(M)
    M.stamp('h4_Cissued')
    C_finish(M, raw)
    M.stamp('h9_FCset')
    if BHELP:
        a.e(f's_branch {Le}')
        a.label(Lb)
        a.reset_counts()
        B_helper(M)
    a.label(Le)
    M.poll(None, FC, NC, 200, sleep=8)
    from m_p3 import W_addr, W_load, WPRE
    if 'pf' in EXPL.split(','):
        a.e(f's_lshr_b32 s49, s{sID}, 3'); a.e('s_sub_u32 s49, s49, 20'); a.e('s_lshl_b32 s49, s49, 2'); a.e(f's_add_u32 s49, s49, s{sW}')
        a.e(f's_mul_i32 s50, s49, {7*8192}'); a.e(f's_add_u32 s50, s50, {hex(WF1_OFF)}'); a.e(f'v_lshl_add_u32 v8, v{vL}, 7, s50')
        for j in range(7):
            a.e(f's_mov_b32 s51, {8192*j}'); a.e(f'buffer_load_dword v254, v8, s[{WS}:{WS+3}], s51 offen sc1')
        a.e(f's_mul_i32 s50, s49, {3*8192}'); a.e(f's_add_u32 s50, s50, {hex(WF2_OFF)}'); a.e(f'v_lshl_add_u32 v8, v{vL}, 7, s50')
        for j in range(3):
            a.e(f's_mov_b32 s51, {8192*j}'); a.e(f'buffer_load_dword v254, v8, s[{WS}:{WS+3}], s51 offen sc1')
    W_addr(M)
    for ks in range(WPRE): W_load(M, ks, None)
    if 'oldmap' not in EXPL and 'nopf2' not in EXPL:
        a.e(f's_lshr_b32 s49, s{sID}, 3'); a.e('s_sub_u32 s49, s49, 20'); a.e('s_lshl_b32 s49, s49, 2'); a.e(f's_add_u32 s49, s49, s{sW}')
        a.e('s_mul_i32 s50, s49, 21846'); a.e('s_lshr_b32 s50, s50, 16'); a.e('s_mul_i32 s51, s50, 3'); a.e('s_sub_u32 s51, s49, s51')
        a.e('s_mul_i32 s50, s50, 122880'); a.e('s_mul_i32 s51, s51, 40960'); a.e('s_add_u32 s50, s50, s51'); a.e(f's_add_u32 s50, s50, {hex(WF1_OFF + 120*256)}')
        a.e(f's_cmp_ge_u32 s49, {3*WPRE}'); a.e(f's_cselect_b32 s50, {hex(OOB)}, s50')
        a.e(f'v_lshl_add_u32 v8, v{vL}, 7, s50')
        a.e(f'buffer_load_dword v254, v8, s[{WS}:{WS+3}], 0 offen sc1')
        a.e(f'v_and_b32 v9, 15, v{vL}'); a.e('s_add_u32 s50, s50, 8192'); a.e('v_lshl_add_u32 v9, v9, 7, s50')
        a.e(f'buffer_load_dword v254, v9, s[{WS}:{WS+3}], 0 offen sc1')
    a.reset_counts()
```

```python
from mcommon import *
import math

SLOT = 8192; NS = 16; DEPTHS = (int(os.environ.get('DEPTH1', '10')), int(os.environ.get('DEPTH2', '10')))
HALO = NS * SLOT
SCR = HALO + 20480
QKV = 102400
ROW = 272
SP_OFF = SCR
CS_OFF = SCR + 1024
vCS = 124
vX3 = 132
ACC = 16
ST = 88
XB = [160, 192]
HX = 144
RBF = '' if 'rbplain' in EXPL else ' sc1'
WPRE = int(os.environ.get('WPRE', '14'))

def W_addr(M):
    a = M.a
    a.e(f'v_lshrrev_b32 v184, 2, v{vI}')
    a.e(f's_mul_i32 s49, s{sW}, 160'); a.e(f's_cmp_eq_u32 s{sW}, 3'); a.e('s_cselect_b32 s49, 325, s49'); a.e('v_add_u32 v185, s49, v184')
    a.e('v_and_b32 v186, 1, v184'); a.e('v_mul_u32_u24 v186, 5, v186'); a.e('v_lshrrev_b32 v187, 1, v184'); a.e('v_mul_u32_u24 v187, 160, v187'); a.e('v_add3_u32 v186, v186, v187, 4')
    a.e(f's_cmp_eq_u32 s{sW}, 2'); a.e('s_cselect_b64 s[52:53], -1, 0'); a.e('v_cndmask_b32 v250, v185, v186, s[52:53]')
    a.e(f's_mul_i32 s49, s{sW}, 160'); a.e('s_add_u32 s50, s49, 5'); a.e(f's_cmp_eq_u32 s{sW}, 2'); a.e('s_cselect_b32 s49, s49, s50'); a.e('v_add_u32 v185, s49, v184')
    a.e('v_mul_u32_u24 v186, 5, v184'); a.e('v_add_u32 v186, 324, v186')
    a.e(f's_cmp_eq_u32 s{sW}, 3'); a.e('s_cselect_b64 s[52:53], -1, 0'); a.e('v_cndmask_b32 v251, v185, v186, s[52:53]')
    a.e(f's_mul_i32 s49, s{sHP}, 10')
    a.e(f'v_lshlrev_b32 v184, 6, v{vG}'); a.e(f'v_and_b32 v185, 3, v{vI}'); a.e('v_lshl_add_u32 v184, v185, 4, v184'); a.e(f'v_add_u32 v184, {hex(WF1_OFF)}, v184')
    for r in (250, 251):
        a.e(f'v_add_u32 v{r}, s49, v{r}'); a.e(f'v_lshl_add_u32 v{r}, v{r}, 8, v184')
    a.e(f'v_cmp_le_u32 vcc, 8, v{vI}'); a.e('s_and_b64 vcc, vcc, s[52:53]')
    a.e(f'v_mov_b32 v187, {hex(OOB)}'); a.e('v_cndmask_b32 v251, v251, v187, vcc')

def W_load(M, ks, tag, r0=250, r1=251, so=49):
    a = M.a
    a.e(f's_mov_b32 s{so}, {122880*ks}')
    a.e(f'buffer_load_dwordx4 a[{8*ks}:{8*ks+3}], v{r0}, s[{WS}:{WS+3}], s{so} offen sc1', tag)
    a.e(f'buffer_load_dwordx4 a[{8*ks+4}:{8*ks+7}], v{r1}, s[{WS}:{WS+3}], s{so} offen sc1', tag)

def p3_pre(M):
    a = M.a
    a.e('v_and_b32 v8, 127, v0'); a.e('v_lshrrev_b32 v9, 7, v0')
    a.e('v_lshrrev_b32 v10, 4, v8'); a.e('v_and_b32 v11, 15, v8')
    a.e('v_and_b32 v12, 1, v10'); a.e('v_cmp_le_u32 vcc, 5, v10'); a.e('v_xor_b32 v13, 1, v12'); a.e('v_cndmask_b32 v12, v12, v13, vcc')
    a.e('v_mov_b32 v13, 0'); a.e('v_cmp_le_u32 vcc, 2, v10'); a.e('v_mov_b32 v14, 640'); a.e('v_cndmask_b32 v13, v13, v14, vcc')
    a.e('v_cmp_le_u32 vcc, 5, v10'); a.e('v_mov_b32 v14, 1280'); a.e('v_cndmask_b32 v13, v13, v14, vcc')
    a.e('v_mul_u32_u24 v12, 20, v12'); a.e('v_add3_u32 v12, v12, v13, v11')
    a.e('v_lshrrev_b32 v13, 3, v11'); a.e('v_mul_u32_u24 v13, 640, v13'); a.e('v_bfe_u32 v14, v11, 2, 1'); a.e('v_mul_u32_u24 v14, 20, v14')
    a.e('v_and_b32 v15, 3, v11'); a.e('v_add3_u32 v13, v13, v14, v15'); a.e('v_add_u32 v13, 16, v13')
    a.e('v_cmp_eq_u32 vcc, 4, v10'); a.e('v_cndmask_b32 v12, v12, v13, vcc')
    a.e('v_lshrrev_b32 v13, 2, v11'); a.e('v_mul_u32_u24 v13, 20, v13'); a.e('v_add_u32 v13, v13, v15'); a.e('v_add_u32 v13, 1296, v13')
    a.e('v_cmp_eq_u32 vcc, 7, v10'); a.e('v_cndmask_b32 v12, v12, v13, vcc')
    a.e(f's_mul_i32 s49, s{sHP}, 40'); a.e('v_add_u32 v12, s49, v12')
    a.e('v_mul_u32_u24 v13, 76800, v9'); a.e('v_lshl_add_u32 v12, v12, 2, v13'); a.e(f'v_add_u32 v12, {hex(CSP_OFF)}, v12')
    a.e('v_cmp_le_u32 vcc, 120, v8'); a.e(f'v_mov_b32 v13, {hex(OOB)}'); a.e('v_cndmask_b32 v12, v12, v13, vcc')
    for j in range(10):
        a.e(f's_mov_b32 s49, {7680*j}')
        a.e(f'buffer_load_dword v{88+j}, v12, s[{WS}:{WS+3}], s49 offen sc1', 'csp')

class Fill:
    def __init__(self, a): self.a = a; self.q = []
    def add(self, *items): self.q.extend(items)
    def pop(self, n=1):
        for _ in range(n):
            if not self.q: return
            x = self.q.pop(0)
            if callable(x): x()
            elif isinstance(x, tuple): self.a.e(x[0], x[1])
            else: self.a.e(x)
    def flush(self):
        while self.q: self.pop()

def p3_tail(M, rec_publish, SR_OFF, BC, BP, BA, inline=True):
    main = M.a
    if inline: a = main
    else:
        a = type(main)(); M.a = a
        a.label('P3_TAIL')
    WO = Fill(a)
    def wo_dma(n):
        kk, ft = divmod(n, 5)
        def f():
            if ft in (0, 4):
                a.e(f's_mov_b32 s55, {40960*kk + 1024*ft}'); a.e(f's_add_u32 m0, s63, {1024*n}')
            a.e(f'buffer_load_dwordx4 v243, s[{WS}:{WS+3}], s55 offen offset:{1024*(ft%4)} sc1 lds', 'wo')
        return f
    for n in range(25): WO.add(wo_dma(n))
    if inline:
        a.wait_lg('hr'); a.wait_vm('st')
    else:
        a.e('s_waitcnt vmcnt(0) lgkmcnt(0)')
    rec_publish(a)
    a.e('s_waitcnt lgkmcnt(0)'); a.e('s_barrier')
    a.e(f'v_lshlrev_b32 v11, 3, v{vI}'); a.e(f'v_add_u32 v11, {SR_OFF}, v11')
    for t in (1, 2, 3, 4, 5, 6, 7, 8, 0):
        a.e(f'ds_read_b64 v[{ST+4*t}:{ST+4*t+1}], v11 offset:{128*t}', f'srr{t}')
    M.stamp(M.P + 'd_mainend')
    M.stamp(M.P + 'd_mainend_cyc')
    def fix(t, f, packed):
        m = ST + 4 * t; L = []
        if f == 0: L.append(lambda: a.wait_lg(f'srr{t}'))
        d = ACC + 36 * f + 4 * t; cs = vCS + 4 * f
        if packed:
            for h in range(2):
                L.append(f'v_pk_fma_f32 v[{d+2*h}:{d+2*h+1}], v[{cs+2*h}:{cs+2*h+1}], v[{m}:{m+1}], v[{d+2*h}:{d+2*h+1}] op_sel:[0,0,0] op_sel_hi:[1,0,1]')
            for h in range(2):
                L.append(f'v_pk_mul_f32 v[{d+2*h}:{d+2*h+1}], v[{d+2*h}:{d+2*h+1}], v[{m}:{m+1}] op_sel:[0,1] op_sel_hi:[1,1]')
        else:
            for r in range(4): L.append(f'v_fmac_f32 v{d+r}, v{cs+r}, v{m}')
            for r in range(4): L.append(f'v_mul_f32 v{d+r}, v{d+r}, v{m+1}')
        L.append(f'v_cvt_pk_bf16_f32 v{d}, v{d}, v{d+1}'); L.append(f'v_cvt_pk_bf16_f32 v{d+1}, v{d+2}, v{d+3}')
        L.append(f'ds_write_b64 v242, v[{d}:{d+1}] offset:{16*ROW*t + 32*f}')
        return L
    units = [(t, f) for t in range(1, 9) for f in range(2)]
    NSC = int(os.environ.get('NSC', '10'))
    FX = Fill(a)
    for (t, f) in units[:NSC]: FX.add(*fix(t, f, False))
    for ks in range(20):
        for f in range(2):
            d = ACC + 36 * f
            c = '0' if ks == 0 else f'v[{d}:{d+3}]'
            a.e(f'v_mfma_f32_16x16x32_bf16 v[{d}:{d+3}], a[{8*ks+4*f}:{8*ks+4*f+3}], v[{HX+4*ks}:{HX+4*ks+3}], {c}')
            FX.pop(2)
    FX.flush()
    for (t, f) in units[NSC:] + [(0, 0), (0, 1)]:
        FX.add(*fix(t, f, True)); FX.flush(); WO.pop(1)
    M.stamp(M.P + 'e2_fixdone')
    a.e('s_waitcnt lgkmcnt(0)')
    a.e('s_barrier')
    M.stamp(M.P + 'f_qkvbar')
    KT = {(k, h): 164 + 8 * k + 4 * h for k in range(3) for h in range(2)}
    QT = {(t, h): 188 + 8 * t + 4 * h for t in range(2) for h in range(2)}
    VV = [204, 210, 216]
    R16 = 16 * ROW
    for k in range(3):
        for h in range(2):
            d = KT[(k, h)]
            a.e(f'ds_read_b64 v[{d}:{d+1}], v237 offset:{k*R16 + 64 + 32*h}', 'op'); a.e(f'ds_read_b64 v[{d+2}:{d+3}], v236 offset:{k*R16 + 144 + 8*h}', 'op')
    for t in range(2):
        for h in range(2):
            d = QT[(t, h)]
            a.e(f'ds_read_b64 v[{d}:{d+1}], v237 offset:{(t+1)*R16 + 32*h}', 'op'); a.e(f'ds_read_b64 v[{d+2}:{d+3}], v238 offset:{(t+1)*R16 + 8*h}', 'op')
    for k in range(3):
        for y, off in enumerate((160, 192, 224)):
            a.e(f'ds_read_b64_tr_b16 v[{VV[y]+2*k}:{VV[y]+2*k+1}], v239 offset:{k*R16 + off}', 'opv')
    a.wait_lg('op')
    M.stamp(M.P + 'f1_opsread')
    tasks = [(0, 0), (0, 1), (1, 0), (1, 1)]
    for ti, (t, h) in enumerate(tasks):
        S = 16 + 8 * ti; q = QT[(t, h)]; bp = BA if t == 0 else BP
        a.e(f'v_mfma_f32_16x16x32_bf16 v[{S}:{S+3}], v[{KT[(t,h)]}:{KT[(t,h)]+3}], v[{q}:{q+3}], v[{bp}:{bp+3}]')
        a.e(f'v_mfma_f32_16x16x32_bf16 v[{S+4}:{S+7}], v[{KT[(t+1,h)]}:{KT[(t+1,h)]+3}], v[{q}:{q+3}], v[{BC}:{BC+3}]')
    Mx = 48
    for ti in range(4):
        S = 16 + 8 * ti; m = Mx + 4 * ti
        a.e(f'v_max3_f32 v{m}, v{S}, v{S+1}, v{S+2}'); a.e(f'v_max3_f32 v{m}, v{m}, v{S+3}, v{S+4}')
        a.e(f'v_max3_f32 v{m}, v{m}, v{S+5}, v{S+6}'); a.e(f'v_max_f32 v{m}, v{m}, v{S+7}')
        WO.pop(1)
    for sw in ('v_permlane16_swap_b32', 'v_permlane32_swap_b32'):
        for ti in range(4): a.e(f'v_mov_b32 v{Mx+4*ti+1}, v{Mx+4*ti}')
        for ti in range(4): a.e(f'{sw} v{Mx+4*ti}, v{Mx+4*ti+1}')
        for ti in range(4): a.e(f'v_max_f32 v{Mx+4*ti}, v{Mx+4*ti}, v{Mx+4*ti+1}')
    M.stamp(M.P + 'f2_max')
    QS = (20 ** -0.5) * math.log2(math.e)
    a.e(f's_mov_b32 s50, {hex(f32(QS))}'); a.e(f'v_mov_b32 v64, s50')
    for ti in range(4): a.e(f'v_mul_f32 v{Mx+4*ti}, s50, v{Mx+4*ti}')
    for ti in range(4):
        S = 16 + 8 * ti; m = Mx + 4 * ti
        for j in range(4):
            a.e(f'v_pk_fma_f32 v[{S+2*j}:{S+2*j+1}], v[{S+2*j}:{S+2*j+1}], v[64:65], v[{m}:{m+1}] op_sel_hi:[1,0,0] neg_lo:[0,0,1] neg_hi:[0,0,1]')
    for ti in range(4):
        S = 16 + 8 * ti
        for j in range(8): a.e(f'v_exp_f32 v{S+j}, v{S+j}')
        WO.pop(1)
    PP = 68
    for ti in range(4):
        S = 16 + 8 * ti; m = Mx + 4 * ti
        for j in range(4): a.e(f'v_cvt_pk_bf16_f32 v{PP+4*ti+j}, v{S+2*j}, v{S+2*j+1}')
        a.e(f'v_pk_add_f32 v[{S}:{S+1}], v[{S}:{S+1}], v[{S+2}:{S+3}]'); a.e(f'v_pk_add_f32 v[{S+4}:{S+5}], v[{S+4}:{S+5}], v[{S+6}:{S+7}]')
        a.e(f'v_pk_add_f32 v[{S}:{S+1}], v[{S}:{S+1}], v[{S+4}:{S+5}]'); a.e(f'v_add_f32 v{m+2}, v{S}, v{S+1}')
        WO.pop(1)
    M.stamp(M.P + 'f3_exp')
    OO = 88
    a.wait_lg('opv')
    for ti, (t, h) in enumerate(tasks):
        a.e(f'v_mfma_f32_16x16x32_bf16 v[{OO+8*ti}:{OO+8*ti+3}], v[{VV[h]+2*t}:{VV[h]+2*t+3}], v[{PP+4*ti}:{PP+4*ti+3}], 0')
        a.e(f'v_mfma_f32_16x16x32_bf16 v[{OO+8*ti+4}:{OO+8*ti+7}], v[{VV[2]+2*t}:{VV[2]+2*t+3}], v[{PP+4*ti}:{PP+4*ti+3}], 0')
    for sw in ('v_permlane16_swap_b32', 'v_permlane32_swap_b32'):
        for ti in range(4): a.e(f'v_mov_b32 v{Mx+4*ti+3}, v{Mx+4*ti+2}')
        for ti in range(4): a.e(f'{sw} v{Mx+4*ti+2}, v{Mx+4*ti+3}')
        for ti in range(4): a.e(f'v_add_f32 v{Mx+4*ti+2}, v{Mx+4*ti+2}, v{Mx+4*ti+3}')
    for ti in range(4): a.e(f'v_rcp_f32 v{Mx+4*ti+2}, v{Mx+4*ti+2}')
    for ti in range(4):
        o = OO + 8 * ti; s = Mx + 4 * ti + 2
        for j in range(4):
            a.e(f'v_pk_mul_f32 v[{o+2*j}:{o+2*j+1}], v[{o+2*j}:{o+2*j+1}], v[{s}:{s+1}] op_sel_hi:[1,0]')
    for t in range(2):
        o0 = OO + 8 * (2 * t); o1 = OO + 8 * (2 * t + 1); d = 16 + 12 * t
        a.e(f'v_cvt_pk_bf16_f32 v{d}, v{o0}, v{o0+1}'); a.e(f'v_cvt_pk_bf16_f32 v{d+1}, v{o0+2}, v{o0+3}')
        a.e(f'v_cvt_pk_bf16_f32 v{d+2}, v{o1}, v{o1+1}'); a.e(f'v_cvt_pk_bf16_f32 v{d+3}, v{o1+2}, v{o1+3}')
        a.e(f'v_cvt_pk_bf16_f32 v{d+4}, v{o0+4}, v{o0+5}'); a.e(f'v_cvt_pk_bf16_f32 v{d+5}, v{o0+6}, v{o0+7}')
        a.e(f'v_cvt_pk_bf16_f32 v{d+8}, v{o1+4}, v{o1+5}'); a.e(f'v_cvt_pk_bf16_f32 v{d+9}, v{o1+6}, v{o1+7}')
        a.e(f'v_permlane16_swap_b32 v{d+8}, v{d+6}'); a.e(f'v_permlane16_swap_b32 v{d+9}, v{d+7}')
    WO.flush()
    M.stamp(M.P + 'g_attn')
    a.e('s_movk_i32 s55, 20480')
    M.stores([f'buffer_store_dwordx4 v[16:19], v240, s[{WS}:{WS+3}], 0 offen', f'buffer_store_dwordx4 v[28:31], v240, s[{WS}:{WS+3}], s55 offen'], bulk=True)
    a.e('s_mov_b64 exec, 0xffff')
    M.stores([f'buffer_store_dwordx4 v[20:23], v241, s[{WS}:{WS+3}], 0 offen', f'buffer_store_dwordx4 v[32:35], v241, s[{WS}:{WS+3}], s55 offen'], bulk=True)
    a.e('s_mov_b64 exec, -1')
    if inline: return
    a.e('s_waitcnt lgkmcnt(0)')
    a.e('s_nop 7'); a.e('s_nop 7')
    a.e('s_setpc_b64 s[64:65]')
    M.a = main
    M.subs.append(a)

def p3(M, layer):
    a = M.a
    XOFF = X1_OFF if layer == 1 else X3_OFF
    OOFF = O1_OFF if layer == 1 else O2_OFF
    SOFF = STAT_OFF[layer - 1]
    P = f'p{2*layer+1}'; M.P = P
    DEPTH = DEPTHS[layer - 1]
    if layer == 2: a.reset_counts()
    a.e(f's_lshl_b32 s58, s{sRT}, 3')
    a.e(f's_lshl_b32 s49, s{sW}, 1'); a.e('s_add_u32 s49, s49, s58'); a.e('s_mul_i32 s59, s49, 20480')
    a.e(f's_add_u32 s49, s59, {hex(XOFF)}'); a.e(f'v_add_u32 v5, s49, v{vL16}')
    a.e(f'v_add_u32 v6, {20480 - 1024}, v5')
    a.e(f's_mul_i32 s50, s{sW}, 5120')
    if layer == 1:
        a.e('s_sub_u32 s49, s58, 1'); a.e('s_mul_i32 s49, s49, 20480'); a.e(f's_add_u32 s49, s49, {hex(XOFF)}')
    else:
        a.e(f's_mul_i32 s49, s{sRT}, 20480'); a.e(f's_add_u32 s49, s49, {hex(XH_OFF)}')
    a.e('s_add_u32 s49, s49, s50'); a.e(f's_cmp_eq_u32 s{sRT}, 0'); a.e(f's_cselect_b32 s49, {hex(OOB)}, s49'); a.e(f'v_add_u32 v7, s49, v{vL16}')
    a.e(f's_add_u32 s62, s50, {HALO}')
    a.e(f's_and_b32 s49, s{sHP}, 7'); a.e('s_add_u32 s60, s49, s58'); a.e('s_mul_i32 s49, s60, 20480')
    a.e('s_add_u32 s49, s49, s50'); a.e(f's_add_u32 s49, s49, {hex(XOFF)}'); a.e(f'v_add_u32 v8, s49, v{vL16}'); a.e('v_add_u32 v9, 4096, v8')
    a.e(f's_lshl_b32 s61, s{sW}, 11')
    if layer == 1:
        a.e(f'v_lshlrev_b32 v12, 7, v{vG}'); a.e(f'v_lshl_add_u32 v12, v{vI}, 3, v12')
    else:
        a.e(f'v_mov_b32 v12, v{vL16}')
    a.e(f'v_add_u32 v13, {8*SLOT}, v12')
    a.e(f'v_add_u32 v10, {HALO}, v12')
    BC, BP, BA = 224, 228, 232
    a.e(f'v_lshlrev_b32 v180, 2, v{vG}'); a.e(f'v_sub_u32 v180, v{vI}, v180')
    a.e('v_mov_b32 v181, 0'); a.e(f'v_mov_b32 v182, {hex(f32(-1e30))}')
    for r in range(4):
        for (dst, add) in ((BC + r, -r), (BP + r, 16 - r)):
            a.e(f'v_add_u32 v183, {add}, v180'); a.e('v_and_b32 v183, 0xfffffff1, v183')
            a.e('v_cmp_eq_u32 vcc, 0, v183'); a.e(f'v_cndmask_b32 v{dst}, v182, v181, vcc')
    a.e(f's_or_b32 s49, s{sRT}, s{sW}'); a.e('s_cmp_eq_u32 s49, 0'); a.e('s_cselect_b64 s[52:53], -1, 0')
    for r in range(4): a.e(f'v_cndmask_b32 v{BA+r}, v{BP+r}, v182, s[52:53]')
    a.e(f'v_mul_u32_u24 v180, {ROW}, v{vI}'); a.e(f's_lshl_b32 s49, s{sW}, 6'); a.e(f's_add_u32 s49, s49, {QKV}')
    a.e(f'v_lshl_add_u32 v242, v{vG}, 3, s49'); a.e('v_add_u32 v242, v242, v180')
    a.e(f's_mul_i32 s49, s{sW}, {32*ROW}'); a.e(f's_add_u32 s49, s49, {QKV}')
    a.e('v_add_u32 v236, s49, v180'); a.e(f'v_lshl_add_u32 v237, v{vG}, 3, v236')
    a.e(f'v_cmp_eq_u32 s[56:57], 0, v{vG}'); a.e('v_mov_b32 v238, 240'); a.e('v_mov_b32 v181, 128'); a.e('v_cndmask_b32 v238, v238, v181, s[56:57]'); a.e('v_add_u32 v238, v238, v236')
    a.e(f'v_lshrrev_b32 v239, 2, v{vI}'); a.e(f'v_lshl_add_u32 v239, v{vG}, 2, v239'); a.e(f'v_mul_u32_u24 v239, {ROW}, v239')
    a.e(f'v_and_b32 v181, 3, v{vL}'); a.e('v_lshl_add_u32 v239, v181, 3, v239'); a.e('v_add_u32 v239, s49, v239')
    a.e(f's_mul_i32 s49, s{sHP}, 1280'); a.e('s_add_u32 s49, s49, s59'); a.e(f's_add_u32 s49, s49, {hex(OOFF)}')
    a.e(f'v_lshlrev_b32 v181, 4, v{vI}'); a.e(f'v_lshl_add_u32 v240, v{vG}, 8, v181'); a.e('v_add_u32 v240, s49, v240')
    a.e('s_add_u32 s49, s49, 1024'); a.e('v_add_u32 v241, s49, v181')
    a.e(f's_mul_i32 s63, s{sW}, 25600'); a.e(f's_mul_i32 s54, s{sC}, 5120'); a.e(f's_mul_i32 s55, s{sW}, {5*40960}'); a.e('s_add_u32 s54, s54, s55'); a.e(f's_add_u32 s54, s54, {hex(WF2_OFF)}')
    a.e(f'v_lshrrev_b32 v243, 2, v{vI}'); a.e(f'v_lshlrev_b32 v243, 8, v243'); a.e(f'v_lshl_add_u32 v243, v{vG}, 6, v243')
    a.e(f'v_and_b32 v181, 3, v{vI}'); a.e('v_lshl_add_u32 v243, v181, 4, v243'); a.e('v_add_u32 v243, s54, v243')
    if layer == 1:
        M.poll(None, F2, 160, 200)
    else:
        a.e(f's_lshl_b32 s54, s{sRT}, 4')
        M.poll(54, F4, 16, 200)
    M.stamp(P + 'a_polled')
    SX = 144
    for j in range(4): a.e(f'buffer_load_dwordx4 v[{SX+4*j}:{SX+4*j+3}], v8, s[{WS}:{WS+3}], 0 offen offset:{1024*j} sc1', 'sx')
    a.e(f'buffer_load_dwordx4 v[{SX+16}:{SX+19}], v9, s[{WS}:{WS+3}], 0 offen sc1', 'sx')
    def issue_parts(ks):
        tag = f's{ks}'
        sl = (ks % NS) * SLOT
        xf = '' if ('plainld' in EXPL and layer == 2) else ' sc1'
        P_ = [[(f's_add_u32 m0, s61, {sl}', None)], [(f's_mov_b32 s64, {1024*ks}', None)],
              [(f'buffer_load_dwordx4 v5, s[{WS}:{WS+3}], s64 offen{xf} lds', tag)],
              [(f'buffer_load_dwordx4 v6, s[{WS}:{WS+3}], s64 offen offset:1024{xf} lds', tag)]]
        if layer == 1 and ks >= WPRE:
            P_ += [[(f's_mov_b32 s65, {122880*ks}', None)],
                   [(f'buffer_load_dwordx4 a[{8*ks}:{8*ks+3}], v250, s[{WS}:{WS+3}], s65 offen sc1', tag)],
                   [(f'buffer_load_dwordx4 a[{8*ks+4}:{8*ks+7}], v251, s[{WS}:{WS+3}], s65 offen sc1', tag)]]
        return P_
    def issue(ks):
        for part in issue_parts(ks):
            for ins, tag in part: a.e(ins, tag)
    UP = int(os.environ.get('UP', '7'))
    for ks in range(UP): issue(ks)
    def reads(ks):
        b = XB[ks & 1]; sl = ks % NS; off = (sl % 8) * SLOT
        L = []
        for t in range(8):
            if layer == 1:
                base = 'v12' if sl < 8 else 'v13'
                L.append(f'ds_read_b64 a[{b+4*t}:{b+4*t+1}], {base} offset:{off+1024*t}')
                L.append(f'ds_read_b64 a[{b+4*t+2}:{b+4*t+3}], {base} offset:{off+1024*t+512}')
            else:
                base = 'v12' if sl < 8 else 'v13'
                L.append(f'ds_read_b128 a[{b+4*t}:{b+4*t+3}], {base} offset:{off+1024*t}')
        return L
    RPT = 2 if layer == 1 else 1
    def mfmas(ks):
        b = XB[ks & 1]; L = []
        for t in range(8):
            for f in range(2):
                d = ACC + 36 * f + 4 * (t + 1)
                c = '0' if ks == 0 else f'v[{d}:{d+3}]'
                L.append(f'v_mfma_f32_16x16x32_bf16 v[{d}:{d+3}], a[{8*ks+4*f}:{8*ks+4*f+3}], a[{b+4*t}:{b+4*t+3}], {c}')
        return L
    T = 164; REC = 168
    a.wait_vm('sx'); a.e('s_mov_b32 s55, 0x3f803f80')
    if layer == 1:
        for j in range(4): a.e(f'v_mov_b32 v{T+j}, 0')
        for j in range(5):
            d = SX + 4 * j
            for h in range(2):
                a.e(f'v_dot2_f32_bf16 v{T}, v{d+h}, s55, v{T}'); a.e(f'v_dot2_f32_bf16 v{T+1}, v{d+h}, v{d+h}, v{T+1}')
                a.e(f'v_dot2_f32_bf16 v{T+2}, v{d+2+h}, s55, v{T+2}'); a.e(f'v_dot2_f32_bf16 v{T+3}, v{d+2+h}, v{d+2+h}, v{T+3}')
        for j in range(4): a.e(f'v_add_f32_dpp v{T+j}, v{T+j}, v{T+j} row_ror:8 row_mask:0xf bank_mask:0xf')
        nred = 4
    else:
        for j in range(4): a.e(f'v_mov_b32 v{T+j}, 0')
        for j in range(5):
            d = SX + 4 * j
            for h in range(2):
                a.e(f'v_dot2_f32_bf16 v{T}, v{d+2*h}, s55, v{T}'); a.e(f'v_dot2_f32_bf16 v{T+1}, v{d+2*h}, v{d+2*h}, v{T+1}')
                a.e(f'v_dot2_f32_bf16 v{T+2}, v{d+2*h+1}, s55, v{T+2}'); a.e(f'v_dot2_f32_bf16 v{T+3}, v{d+2*h+1}, v{d+2*h+1}, v{T+3}')
        a.e(f'v_add_f32 v{T}, v{T}, v{T+2}'); a.e(f'v_add_f32 v{T+1}, v{T+1}, v{T+3}')
        nred = 2
    for sw in ('v_permlane16_swap_b32', 'v_permlane32_swap_b32'):
        for j in range(nred): a.e(f'v_mov_b32 v{T+4+j}, v{T+j}')
        for j in range(nred): a.e(f'{sw} v{T+j}, v{T+4+j}')
        for j in range(nred): a.e(f'v_add_f32 v{T+j}, v{T+j}, v{T+4+j}')
    if layer == 1:
        a.e(f's_lshl_b32 s55, s{sW}, 7'); a.e(f's_add_u32 s55, s55, {SP_OFF}'); a.e(f'v_and_b32 v14, 7, v{vL}'); a.e('v_lshl_add_u32 v15, v14, 4, s55')
        a.e('s_mov_b64 exec, 0xff'); a.e(f'ds_write_b128 v15, v[{T}:{T+3}]', 'spw'); a.e('s_mov_b64 exec, -1')
        a.wait_vm('csp')
        for j in range(1, 10): a.e(f'v_add_f32 v88, v88, v{88+j}')
        a.e('v_lshlrev_b32 v15, 2, v0'); a.e(f'v_add_u32 v15, {CS_OFF}, v15'); a.e('ds_write_b32 v15, v88', 'spw')
    else:
        a.e(f's_lshl_b32 s55, s{sW}, 7'); a.e(f's_add_u32 s55, s55, {SP_OFF}'); a.e(f'v_lshl_add_u32 v15, v{vI}, 3, s55')
        a.e('s_mov_b64 exec, 0xffff'); a.e(f'ds_write_b64 v15, v[{T}:{T+1}]', 'spw'); a.e('s_mov_b64 exec, -1')
    a.e('s_waitcnt lgkmcnt(0)')
    a.wait_vm('s0'); a.e('s_barrier')
    M.stamp(P + 'b_firstbar')
    if layer == 1:
        a.e(f'v_lshlrev_b32 v15, 4, v14'); a.e(f'v_add_u32 v15, {SP_OFF}, v15')
        for w in range(4): a.e(f'ds_read_b128 v[{SX+4*w}:{SX+4*w+3}], v15 offset:{128*w}', 'spr')
        a.e(f's_lshl_b32 s55, s{sW}, 7'); a.e(f's_add_u32 s55, s55, {CS_OFF}'); a.e(f'v_lshl_add_u32 v11, v{vG}, 4, s55')
        a.e('ds_read_b128 v[88:91], v11', 'spr'); a.e('ds_read_b128 v[92:95], v11 offset:64', 'spr')
        a.e('ds_read_b128 v[96:99], v11 offset:512', 'spr'); a.e('ds_read_b128 v[100:103], v11 offset:576', 'spr')
    else:
        a.e(f'v_lshlrev_b32 v15, 3, v{vI}'); a.e(f'v_add_u32 v15, {SP_OFF}, v15')
        for w in range(4): a.e(f'ds_read_b64 v[{SX+2*w}:{SX+2*w+1}], v15 offset:{128*w}', 'spr')
    for ins in reads(0): a.e(ins, 'r0')
    a.wait_lg('spr')
    a.e(f'v_mov_b32 v176, {hex(f32(1e-5))}'); a.e(f's_mov_b32 s55, {hex(f32(1.0/640))}'); a.e(f's_mov_b32 s56, {hex(f32(-1.0/640))}')
    if layer == 1:
        for j in range(8): a.e(f'v_add_f32 v{vCS+j}, v{88+j}, v{96+j}')
        for j in range(4): a.e(f'v_add_f32 v{SX+j}, v{SX+j}, v{SX+4+j}'); a.e(f'v_add_f32 v{SX+8+j}, v{SX+8+j}, v{SX+12+j}')
        for j in range(4): a.e(f'v_add_f32 v{SX+j}, v{SX+j}, v{SX+8+j}')
        recs = [(REC, SX, SX + 1), (REC + 4, SX + 2, SX + 3)]
    else:
        for j in range(2): a.e(f'v_add_f32 v{SX+j}, v{SX+j}, v{SX+2+j}'); a.e(f'v_add_f32 v{SX+4+j}, v{SX+4+j}, v{SX+6+j}')
        for j in range(2): a.e(f'v_add_f32 v{SX+j}, v{SX+j}, v{SX+4+j}')
        recs = [(REC, SX, SX + 1)]
    for r, su, sq in recs:
        a.e(f'v_mul_f32 v{r}, s56, v{su}'); a.e(f'v_fma_f32 v{r+1}, v{sq}, s55, v176'); a.e(f'v_fma_f32 v{r+1}, -v{r}, v{r}, v{r+1}')
        a.e(f'v_max_f32 v{r+1}, v{r+1}, v176'); a.e(f'v_rsq_f32 v{r+1}, v{r+1}'); a.e(f'v_mov_b32 v{r+2}, s{sN}'); a.e(f'v_mov_b32 v{r+3}, 0')
    a.e('s_lshl_b32 s55, s60, 8'); a.e(f's_add_u32 s55, s55, {hex(SOFF)}')
    if layer == 1:
        a.e('v_lshl_add_u32 v15, v14, 5, s55'); a.e(f's_cmp_eq_u32 s{sW}, 0'); a.e('s_cselect_b64 s[56:57], 0xff, 0')
    else:
        a.e(f'v_lshl_add_u32 v15, v{vI}, 4, s55'); a.e(f's_cmp_eq_u32 s{sW}, 0'); a.e('s_cselect_b64 s[56:57], 0xffff, 0')
    a.e(f'v_mov_b32 v14, {hex(OOB)}'); a.e('v_cndmask_b32 v15, v14, v15, s[56:57]')
    a.e(f'buffer_store_dwordx4 v[{REC}:{REC+3}], v15, s[{WS}:{WS+3}], 0 offen sc1', 'stw')
    if layer == 1: a.e(f'buffer_store_dwordx4 v[{REC+4}:{REC+7}], v15, s[{WS}:{WS+3}], 0 offen offset:16 sc1', 'stw')
    F = Fill(a)
    def halo_dma():
        for j in range(5):
            F.add(lambda j=j: (a.e(f's_add_u32 m0, s62, {1024*j}'), a.e(f's_mov_b32 s55, {1024*j}'),
                               a.e(f'buffer_load_dwordx4 v7, s[{WS}:{WS+3}], s55 offen sc1 lds', 'halo')))
    SR_OFF = SCR + 2048
    def stat_addr():
        def seq(*L): return lambda: [a.e(x) for x in L]
        F.add(seq('s_sub_u32 s55, s58, 1', f's_add_u32 s55, s55, s{sW}'), seq('s_lshl_b32 s55, s55, 8', f's_add_u32 s55, s55, {hex(SOFF)}'),
              f'v_lshl_add_u32 v11, v{vI}, 4, s55', seq(f's_or_b32 s55, s{sRT}, s{sW}', 's_cmp_eq_u32 s55, 0', 's_cselect_b32 s55, 256, 0'), 'v_add_u32 v15, s55, v11',
              seq('s_movk_i32 s55, 1024', f's_cmp_eq_u32 s{sW}, 0', f's_cselect_b32 s55, 2048, s55'), 'v_add_u32 v14, s55, v11')
        F.add(lambda: rec_loads('st', True))
    def rec_loads(tag, count, a=a):
        a.e(f'buffer_load_dwordx3 v[{ST}:{ST+2}], v15, s[{WS}:{WS+3}], 0 offen sc1', tag, count=count)
        a.e(f'buffer_load_dwordx3 v[{ST+4}:{ST+6}], v11, s[{WS}:{WS+3}], 0 offen offset:1024 sc1', tag, count=count)
        a.e(f'buffer_load_dwordx3 v[{ST+8}:{ST+10}], v14, s[{WS}:{WS+3}], 0 offen sc1', tag, count=count)
    def rec_publish(a):
        Lc = M.lab('STCHK'); Lok = M.lab('STOK')
        a.e('s_mov_b32 s54, 0x4000')
        a.label(Lc)
        a.e(f'v_cmp_ne_u32 vcc, s{sN}, v{ST+2}')
        for t in (1, 2):
            a.e(f'v_cmp_ne_u32 s[52:53], s{sN}, v{ST+4*t+2}'); a.e('s_or_b64 vcc, vcc, s[52:53]')
        a.e(f's_cbranch_vccz {Lok}')
        rec_loads(None, False, a)
        a.e('s_waitcnt vmcnt(0)', count=False)
        a.e('s_sub_u32 s54, s54, 1'); a.e('s_cmp_lg_u32 s54, 0'); a.e(f's_cbranch_scc1 {Lc}')
        a.label(Lok)
        a.e(f's_lshl_b32 s55, s{sW}, 7'); a.e(f's_add_u32 s55, s55, {SR_OFF}'); a.e(f'v_lshl_add_u32 v11, v{vI}, 3, s55')
        a.e('s_movk_i32 s55, 512'); a.e(f's_cmp_eq_u32 s{sW}, 0'); a.e(f's_cselect_b32 s55, 1024, s55'); a.e('v_add_u32 v14, s55, v11')
        a.e('s_mov_b64 exec, 0xffff')
        a.e(f'ds_write_b64 v11, v[{ST}:{ST+1}]', 'srw'); a.e(f'ds_write_b64 v11, v[{ST+4}:{ST+5}] offset:512', 'srw'); a.e(f'ds_write_b64 v14, v[{ST+8}:{ST+9}]', 'srw')
        a.e('s_mov_b64 exec, -1')
    def halo_reads():
        for ks in range(20):
            if layer == 1:
                F.add((f'ds_read_b64 v[{HX+4*ks}:{HX+4*ks+1}], v10 offset:{1024*ks}', 'hr'), (f'ds_read_b64 v[{HX+4*ks+2}:{HX+4*ks+3}], v10 offset:{1024*ks+512}', 'hr'))
            else:
                F.add((f'ds_read_b128 v[{HX+4*ks}:{HX+4*ks+3}], v10 offset:{1024*ks}', 'hr'))
    def xid_load():
        a_ = f'v{PXA}'
        F.add(f's_and_b32 s55, s{sID}, 7', 's_lshl_b32 s55, s55, 8', f's_add_u32 s55, s55, {hex(XID_OFF)}', f'v_and_b32 v{PXA}, 31, v{vL}',
              f'v_lshl_add_u32 v{PXA}, v{PXA}, 3, s55', (f'buffer_load_dwordx2 v[{PXA+2}:{PXA+3}], v{PXA}, s[{WS}:{WS+3}], 0 offen sc1', 'xid'))
    def xid_eval():
        F.add(lambda: a.wait_vm('xid'), 's_getreg_b32 s55, hwreg(HW_REG_XCC_ID, 0, 4)',
              lambda: [a.e(x) for x in (f'v_cmp_ne_u32 vcc, s{sN}, v{PXA+2}', f'v_cmp_ne_u32 s[56:57], s55, v{PXA+3}',
                                        's_or_b64 vcc, vcc, s[56:57]', 's_cmp_eq_u64 vcc, 0', f's_cselect_b32 s{sLOC}, 1, 0')])
    PXA = 244
    hpoll = {}
    def hflag_issue():
        F.add(f's_lshl_b32 s54, s{sRT}, 3')
        def f():
            hpoll['nl'] = M.poll_addr(54, F4H, 8, 248); M.poll_issue(1, 248, tag='hf')
        F.add(f)
    def hflag_check():
        def f():
            Lok = M.lab('HFOK')
            a.wait_vm('hf')
            a.e(f's_cmp_eq_u32 s{sRT}, 0'); a.e(f's_cbranch_scc1 {Lok}')
            M.poll_check(1, 248, Lok)
            M.poll_loop(1, 248, Lok, sleep=4)
            a.label(Lok)
        F.add(f)
    M.stamp(P + 'c_mainstart')
    M.stamp(P + 'c_mainstart_cyc')
    nxt = [UP]
    for ks in range(20):
        mf = mfmas(ks)
        rd = reads(ks + 1) if (ks < 19 and 'noread' not in EXPL) else []
        if ks == 0:
            if layer == 2: hflag_issue()
            else: xid_load()
        if ks == 3:
            if layer == 2: hflag_check()
        if ks == 6 and layer == 1: xid_eval()
        if ks == 8: stat_addr()
        if ks == (11 if layer == 1 else 13): halo_reads()
        gaps = [[] for _ in range(16)]
        if 'bar1' in EXPL:
            if ks < 19:
                gaps[0].append(lambda ks=ks: (a.wait_vm([f's{ks+1}'] + (['halo'] if ks == 9 else [])), None if 'nobar' in EXPL else a.e('s_barrier')))
        elif ks < 19 and ks % 2 == 0:
            gaps[0].append(lambda ks=ks: (a.wait_vm([f's{ks+1}', f's{min(ks+2, 19)}'] + (['halo'] if ks == 10 else [])), a.e('s_barrier')))
        st = []
        while nxt[0] < 20 and nxt[0] <= ks + DEPTH and len(st) < (2 if ks < 6 else 1):
            st.append(issue_parts(nxt[0]) if 'nodma' not in EXPL else []); nxt[0] += 1
        def emit_part(part):
            return lambda: [a.e(i_, t_) for i_, t_ in part]
        rdl = [(lambda x=x, tg=f'r{ks+1}_{j//RPT}': a.e(x, tg)) for j, x in enumerate(rd)]
        if layer == 1:
            rslots = [1, 2, 4, 4, 6, 6, 7, 8, 8, 9, 9, 10, 10, 11, 11, 12]
        else:
            rslots = [1, 2, 4, 6, 7, 8, 9, 10]
        for j, f_ in enumerate(rdl): gaps[rslots[j]].append(f_)
        if st and st[0]:
            p_ = st[0]
            gaps[1].append(emit_part(p_[0])); gaps[2].append(emit_part(p_[1])); gaps[3].append(emit_part(p_[2])); gaps[5].append(emit_part(p_[3]))
            if len(p_) > 4: gaps[12].append(emit_part(p_[4])); gaps[13].append(emit_part(p_[5])); gaps[14].append(emit_part(p_[6]))
        if len(st) > 1 and st[1]:
            p_ = st[1]
            assert len(p_) == 4
            gaps[11].append(emit_part(p_[0])); gaps[12].append(emit_part(p_[1])); gaps[13].append(emit_part(p_[2])); gaps[14].append(emit_part(p_[3]))
        if 4 <= ks <= 8:
            j = ks - 4
            gaps[7].append(lambda j=j: (a.e(f's_add_u32 m0, s62, {1024*j}'), a.e(f's_mov_b32 s66, {1024*j}')))
            gaps[8].append(lambda: a.e(f'buffer_load_dwordx4 v7, s[{WS}:{WS+3}], s66 offen sc1 lds', 'halo'))
        busy = len(st) > 1 or (st and len(st[0]) > 4)
        fills = ([12] if layer == 1 else [4, 6, 8, 9, 10, 11, 11]) if busy else ([12, 13, 13, 14] if layer == 1 else [4, 6, 8, 9, 10, 11, 11, 12, 12, 13, 13, 14])
        for n, ins in enumerate(mf):
            if n == 0: a.wait_lg([f'r{ks}_{t}' for t in range(4)] if ks > 0 else ['r0'])
            if n == 8 and ks > 0: a.wait_lg([f'r{ks}_{t}' for t in range(4, 8)])
            a.e(ins)
            for f_ in gaps[n]: f_()
            F.pop(fills.count(n))
    F.flush()
    if 'share' not in EXPL:
        p3_tail(M, rec_publish, SR_OFF, BC, BP, BA, inline=True)
    else:
        if layer == 1: p3_tail(M, rec_publish, SR_OFF, BC, BP, BA, inline=False)
        a.e('s_call_b64 s[64:65], P3_TAIL')
        a.vm = ['ost'] * 4; a.lg = []
    RB = None
    if 'norb' not in EXPL:
        def RB():
            a.e('s_movk_i32 s57, 20480')
            for so in ('0', 's57'):
                for r in (240, 241): a.e(f'buffer_load_dword v252, v{r}, s[{WS}:{WS+3}], {so} offen sc1', count=False)
            L1 = M.lab('RBX'); a.e(f's_cmp_lg_u32 s{sW}, 1'); a.e(f's_cbranch_scc1 {L1}')
            a.e('v_subrev_u32 v253, 40960, v240'); a.e('v_subrev_u32 v254, 40960, v241')
            for so in ('0', 's57'):
                for r in (253, 254): a.e(f'buffer_load_dword v252, v{r}, s[{WS}:{WS+3}], {so} offen sc1', count=False)
            a.label(L1)
    a.e(f's_lshl_b32 s58, s{sRT}, 4'); a.e(f's_add_u32 s58, s58, s{sHP}')
    if layer == 1:
        from m_p4 import res_loads
        res_loads(M)
        M.set_flag_dual(58, F3, 8, keep=10, readback=RB)
    else:
        M.set_flag_dual(58, F5, 8, readback=RB)
    M.stamp(P + 'h_flag')
```

```python
from mcommon import *
from m_p3 import vX3
OPRE = int(os.environ.get('OPRE', '20'))
OUTF = ' sc1' if 'outsc1' in EXPL else (' nt' if 'outnt' in EXPL else '')
LDF = '' if 'plainld' in EXPL else ' sc1'

def xq_addr(M, vd):
    a = M.a
    a.e(f's_lshl_b32 s58, s{sR64}, 2'); a.e(f's_add_u32 s58, s58, s{sW}'); a.e('s_mul_i32 s59, s58, 20480')
    a.e(f's_mul_i32 s49, s{sC}, 2560'); a.e('s_add_u32 s49, s49, s59')
    a.e(f'v_lshlrev_b32 v{vd}, 7, v{vG}'); a.e(f'v_lshl_add_u32 v{vd}, v{vI}, 3, v{vd}'); a.e(f'v_add_u32 v{vd}, s49, v{vd}')

def res_loads(M):
    a = M.a
    a.e('s_mov_b32 s60, s58')
    xq_addr(M, 84)
    a.e('s_mov_b32 s58, s60')
    a.e(f's_mov_b32 s55, {hex(X1_OFF)}'); a.e(f's_mov_b32 s56, {hex(Y_OFF)}')
    for ft in range(5): a.e(f'buffer_load_dwordx2 v[{64+2*ft}:{65+2*ft}], v84, s[{WS}:{WS+3}], s55 offen offset:{512*ft} sc1', 'res')
    for ft in range(5): a.e(f'buffer_load_dwordx2 v[{74+2*ft}:{75+2*ft}], v84, s[{WS}:{WS+3}], s56 offen offset:{512*ft} sc1', 'res')

def p4(M, layer):
    a = M.a
    if layer == 2: a.reset_counts()
    OOFF = O1_OFF if layer == 1 else O2_OFF
    xq_addr(M, 8)
    a.e(f's_add_u32 s49, s59, {hex(OOFF)}'); a.e(f'v_add_u32 v6, s49, v{vL16}')
    XR = 64; YR = 74
    a.e(f'v_mov_b32 v10, v{vL16}'); a.e(f'v_add_u32 v11, 61440, v{vL16}')
    WB = [144, 184]; ACC = 40
    def reads(st):
        b = WB[st & 1]; L = []
        for j in range(10):
            f = 10 * st + j
            base, off = ('v10', 1024 * f) if f < 60 else ('v11', 1024 * (f - 60))
            L.append(f'ds_read_b128 v[{b+4*j}:{b+4*j+3}], {base} offset:{off}')
        return L
    for ins in reads(0): a.e(ins)
    for j in range(5): a.e(f's_mov_b32 s{60+j}, {4096*j}')
    a.e('s_mov_b32 s52, 0xffff0000')
    src = XR if layer == 1 else vX3
    if layer == 1: a.wait_vm('res')
    for ft in range(5):
        for h in range(2):
            a.e(f'v_lshlrev_b32 v{ACC+4*ft+2*h}, 16, v{src+2*ft+h}'); a.e(f'v_and_b32 v{ACC+4*ft+2*h+1}, s52, v{src+2*ft+h}')
    Yf = 88; T = 84
    if layer == 1:
        for ft in range(5):
            for h in range(2):
                a.e(f'v_lshlrev_b32 v{Yf+4*ft+2*h}, 16, v{YR+2*ft+h}'); a.e(f'v_and_b32 v{Yf+4*ft+2*h+1}, s52, v{YR+2*ft+h}')
        a.e('s_lshl_b32 s57, s58, 11'); a.e(f's_add_u32 s57, s57, {hex(EX_OFF)}')
        a.e(f's_lshl_b32 s49, s{sC}, 8'); a.e('s_add_u32 s49, s49, s57'); a.e(f'v_lshl_add_u32 v12, v{vI}, 4, s49')
        a.e(f'v_lshlrev_b32 v13, 9, v{vG}'); a.e(f'v_lshl_add_u32 v13, v{vI}, 4, v13'); a.e('v_add_u32 v13, s57, v13')
        a.e(f's_mul_i32 s54, s{sC}, 5'); a.e('s_lshr_b32 s54, s54, 1'); a.e('s_lshl_b32 s54, s54, 10'); a.e('s_add_u32 s54, s54, s59')
        a.e(f'v_add_u32 v14, s54, v{vL16}')
    else:
        M.srd(SA, pOUT, SZ)
        a.e('s_lshl_b32 s49, s58, 4'); a.e(f'v_add_u32 v12, s49, v{vI}'); a.e('v_mul_u32_u24 v12, 1280, v12')
        a.e(f's_mul_i32 s49, s{sC}, 160'); a.e(f'v_lshl_add_u32 v12, v{vG}, 3, v12'); a.e('v_add_u32 v12, s49, v12')
    a.e(f's_lshr_b32 s54, s{sR64}, 1'); a.e('s_lshl_b32 s54, s54, 4')
    M.poll(54, F3 if layer == 1 else F5, 16, 240)
    P = f'p{2*layer+2}'
    M.stamp(P + 'a_polled')
    OA = 160
    def oload(ks):
        a.e(f'buffer_load_dwordx4 a[{OA+4*ks}:{OA+4*ks+3}], v6, s[{WS}:{WS+3}], s{60+(ks>>2)} offen offset:{1024*(ks&3)}' + LDF, f'o{ks}')
    for ks in range(OPRE): oload(ks)
    onext = [OPRE]
    M.stamp(P + 'a_issued')
    for st in range(10):
        rd = reads(st + 1) if st < 9 else []
        a.e('s_waitcnt lgkmcnt(0)')
        a.wait_vm(f'o{2*st+1}')
        if st in (0, 1, 4, 8): M.stamp(P + f'a_o{st}')
        b = WB[st & 1]; j = 0
        for h in range(2):
            ks = 2 * st + h
            for ft in range(5):
                c = f'v[{ACC+4*ft}:{ACC+4*ft+3}]'
                a.e(f'v_mfma_f32_16x16x32_bf16 v[{ACC+4*ft}:{ACC+4*ft+3}], v[{b+4*(5*h+ft)}:{b+4*(5*h+ft)+3}], a[{OA+4*ks}:{OA+4*ks+3}], {c}')
                if j < len(rd): a.e(rd[j]); j += 1
                if ft in (1, 3) and onext[0] < 20: oload(onext[0]); onext[0] += 1
    M.stamp(P + 'b_mainend')
    X = ACC
    if layer == 2:
        for j in range(10): a.e(f'v_cvt_pk_bf16_f32 v{16+j}, v{X+2*j}, v{X+2*j+1}')
        for ft in range(5):
            a.e(f'buffer_store_dwordx2 v[{16+2*ft}:{17+2*ft}], v12, s[{SA}:{SA+3}], 0 offen offset:{32*ft}' + OUTF)
        return
    a.e(f'v_pk_add_f32 v[{T}:{T+1}], v[{X}:{X+1}], v[{X+2}:{X+3}]'); a.e(f'v_pk_mul_f32 v[{T+2}:{T+3}], v[{X}:{X+1}], v[{X}:{X+1}]')
    for j in range(1, 10):
        if j > 1: a.e(f'v_pk_add_f32 v[{T}:{T+1}], v[{T}:{T+1}], v[{X+2*j}:{X+2*j+1}]')
        a.e(f'v_pk_fma_f32 v[{T+2}:{T+3}], v[{X+2*j}:{X+2*j+1}], v[{X+2*j}:{X+2*j+1}], v[{T+2}:{T+3}]')
    a.e(f'v_add_f32 v{T}, v{T}, v{T+1}'); a.e(f'v_add_f32 v{T+1}, v{T+2}, v{T+3}')
    def redg(r0, cnt, tmp):
        for sw in ('v_permlane16_swap_b32', 'v_permlane32_swap_b32'):
            for j in range(cnt): a.e(f'v_mov_b32 v{tmp+j}, v{r0+j}')
            for j in range(cnt): a.e(f'{sw} v{r0+j}, v{tmp+j}')
            for j in range(cnt): a.e(f'v_add_f32 v{r0+j}, v{r0+j}, v{tmp+j}')
    a.e(f'v_mov_b32 v{T+2}, s{sN}'); a.e(f'v_mov_b32 v{T+3}, 0')
    redg(T, 2, 120)
    a.e('s_mov_b64 exec, 0xffff')
    M.stores([f'buffer_store_dwordx4 v[{T}:{T+3}], v12, s[{WS}:{WS+3}], 0 offen'])
    a.e('s_mov_b64 exec, -1')
    M.stamp(P + 'c_expub')
    Lp = M.lab('EXPOLL'); Lg = M.lab('EXGOT')
    a.e('s_mov_b32 s54, 0x8000')
    a.label(Lp)
    a.e(f'buffer_load_dwordx3 v[108:110], v13, s[{WS}:{WS+3}], 0 offen sc1'); a.e(f'buffer_load_dwordx3 v[112:114], v13, s[{WS}:{WS+3}], 0 offen offset:256 sc1')
    a.e('s_waitcnt vmcnt(0)')
    a.e(f'v_cmp_ne_u32 vcc, s{sN}, v110'); a.e(f'v_cmp_ne_u32 s[56:57], s{sN}, v114'); a.e('s_or_b64 vcc, vcc, s[56:57]')
    a.e(f's_cbranch_vccz {Lg}')
    a.e('s_sub_u32 s54, s54, 1'); a.e('s_cmp_lg_u32 s54, 0'); a.e(f's_cbranch_scc1 {Lp}')
    a.label(Lg)
    a.reset_counts()
    M.stamp(P + 'd_exgot')
    a.e(f'v_add_f32 v{T}, v108, v112'); a.e(f'v_add_f32 v{T+1}, v109, v113')
    redg(T, 2, 120)
    a.e(f'v_mul_f32 v{T}, {hex(f32(-1.0/640))}, v{T}')
    a.e(f'v_mov_b32 v{T+2}, {hex(f32(1e-5))}'); a.e(f'v_fmac_f32 v{T+2}, {hex(f32(1.0/640))}, v{T+1}')
    a.e(f'v_fma_f32 v{T+2}, -v{T}, v{T}, v{T+2}'); a.e(f'v_max_f32 v{T+2}, {hex(f32(1e-5))}, v{T+2}'); a.e(f'v_rsq_f32 v{T+2}, v{T+2}')
    TM = 64
    for j in range(10): a.e(f'v_pk_add_f32 v[{TM+2*j}:{TM+2*j+1}], v[{X+2*j}:{X+2*j+1}], v[{T}:{T+1}] op_sel_hi:[1,0]')
    for j in range(10): a.e(f'v_pk_mul_f32 v[{Yf+2*j}:{Yf+2*j+1}], v[{Yf+2*j}:{Yf+2*j+1}], v[{T+2}:{T+3}] op_sel_hi:[1,0]')
    for j in range(10): a.e(f'v_pk_fma_f32 v[{X+2*j}:{X+2*j+1}], v[{TM+2*j}:{TM+2*j+1}], v[{Yf+2*j}:{Yf+2*j+1}], v[{X+2*j}:{X+2*j+1}]')
    for j in range(10): a.e(f'v_cvt_pk_bf16_f32 v{vX3+j}, v{X+2*j}, v{X+2*j+1}')
    def x3_stores(voff, soff, emit):
        Lo = M.lab('X3ODD'); Le = M.lab('X3END')
        a.e(f's_bitcmp1_b32 s{sC}, 0'); a.e(f's_cbranch_scc1 {Lo}')
        emit([f'buffer_store_dwordx4 v[{vX3}:{vX3+3}], {voff}, s[{WS}:{WS+3}], {soff} offen',
              f'buffer_store_dwordx4 v[{vX3+4}:{vX3+7}], {voff}, s[{WS}:{WS+3}], {soff} offen offset:1024',
              f'buffer_store_dwordx2 v[{vX3+8}:{vX3+9}], {voff}, s[{WS}:{WS+3}], {soff} offen offset:2048'], False)
        a.e(f's_branch {Le}')
        a.label(Lo)
        emit([f'buffer_store_dwordx2 v[{vX3}:{vX3+1}], {voff}, s[{WS}:{WS+3}], {soff} offen offset:8',
              f'buffer_store_dwordx4 v[{vX3+2}:{vX3+5}], {voff}, s[{WS}:{WS+3}], {soff} offen offset:1024',
              f'buffer_store_dwordx4 v[{vX3+6}:{vX3+9}], {voff}, s[{WS}:{WS+3}], {soff} offen offset:2048'], True)
        a.label(Le)
    a.e(f's_mov_b32 s55, {hex(X3_OFF)}')
    def emit_dual(L, last):
        saved = list(a.vm); M.stores(L, bulk=("x3sc1" in EXPL))
        if not last: a.vm = saved
    x3_stores('v14', 's55', emit_dual)
    Lh = M.lab('NOHALO')
    a.e('s_mov_b32 s56, 0')
    a.e(f's_and_b32 s49, s58, 7'); a.e('s_cmp_lg_u32 s49, 7'); a.e(f's_cbranch_scc1 {Lh}')
    a.e('s_lshr_b32 s50, s58, 3'); a.e('s_add_u32 s50, s50, 1')
    a.e('s_mul_i32 s51, s50, 20480'); a.e(f's_add_u32 s51, s51, {hex(XH_OFF)}'); a.e('s_sub_u32 s51, s51, s59')
    def emit_sc1(L, last):
        for x in L: a.e(x + ' sc1', count=False)
    x3_stores('v14', 's51', emit_sc1)
    a.e('s_mov_b32 s56, 1')
    a.label(Lh)
    M.stamp(P + 'e_stores')
    a.e('s_cmp_eq_u32 s56, 1'); Lw = M.lab('W3'); Lw2 = M.lab('W0')
    a.e(f's_cbranch_scc1 {Lw}'); a.e('s_waitcnt vmcnt(0)'); a.e(f's_branch {Lw2}'); a.label(Lw); a.e('s_waitcnt vmcnt(3)', count=False); a.label(Lw2)
    a.e('s_barrier')
    a.e(f's_lshl_b32 s58, s{sR64}, 3'); a.e(f's_add_u32 s58, s58, s{sC}')
    L = M.lab('NOFLAG')
    a.e(f's_cmp_lg_u32 s{sW}, 0'); a.e(f's_cbranch_scc1 {L}')
    a.e('s_lshl_b32 s49, s58, 2'); a.e(f's_add_u32 s49, s49, {hex(FLG_OFF + 4*F4)}')
    a.e('v_mov_b32 v8, s49'); a.e(f'v_mov_b32 v9, s{sN}')
    a.e('s_mov_b64 exec, 1')
    M.stores([f'buffer_store_dword v9, v8, s[{WS}:{WS+3}], 0 offen'])
    a.e('s_mov_b64 exec, -1')
    Lrb = M.lab('RBEND')
    if 'rb4' in EXPL.split(','): a.e(f's_branch {Lrb}')
    a.label(L)
    if 'rb4' in EXPL.split(','):
        a.e(f's_mov_b32 s55, {hex(X3_OFF)}')
        for j in range(3): a.e(f'buffer_load_dword v252, v14, s[{WS}:{WS+3}], s55 offen offset:{1024*j} sc1', count=False)
        L1 = M.lab('RBX'); a.e(f's_cmp_lg_u32 s{sW}, 1'); a.e(f's_cbranch_scc1 {L1}')
        a.e('v_subrev_u32 v253, 20480, v14')
        for j in range(3): a.e(f'buffer_load_dword v252, v253, s[{WS}:{WS+3}], s55 offen offset:{1024*j} sc1', count=False)
        a.label(L1)
        a.label(Lrb)
    Lx = M.lab('NOHFLAG')
    a.e('s_cmp_lg_u32 s56, 1'); a.e(f's_cbranch_scc1 {Lx}')
    a.e('s_waitcnt vmcnt(0)', count=False)
    a.e('s_lshl_b32 s50, s50, 3'); a.e(f's_add_u32 s50, s50, s{sC}'); a.e('s_lshl_b32 s50, s50, 2'); a.e(f's_add_u32 s50, s50, {hex(FLG_OFF + 4*F4H)}')
    a.e('v_mov_b32 v9, s50'); a.e(f'v_mov_b32 v10, s{sN}')
    a.e('s_mov_b64 exec, 1'); a.e(f'buffer_store_dword v10, v9, s[{WS}:{WS+3}], 0 offen sc1', count=False); a.e('s_mov_b64 exec, -1')
    a.label(Lx)
    a.vm = []
    M.stamp(P + 'f_flag')
```

```python
from asmgen import Asm
import os, struct
NAME = 'interleave_layers__ssm_conv_h3__sliding_local_dilated__prompt'
R_OFF    = 0x0000000
XQ2_OFF  = 0x0280000
WF1_OFF  = 0x0780000
WF2_OFF  = 0x0A00000
CSP_OFF  = 0x0B00000
FLG_OFF  = 0x0B40000
NONCE_OFF = FLG_OFF + 0xC000
STAT_OFF = [0x0B50000, 0x0B60000]
ST0_OFF  = 0x0B70000
XQ0_OFF  = XQ2_OFF
EX_OFF   = 0x0B80000
Y_OFF    = 0x0C00000
X1_OFF   = 0x0E80000
O1_OFF   = 0x1100000
X3_OFF   = 0x1380000
O2_OFF   = 0x1600000
XH_OFF   = 0x1880000
XID_OFF  = 0x0B78000
WS_END   = 0x1900000
SZ = 2048 * 640 * 2
OOB = 0x7ff00000
F1 = 0; F3 = 512; F4 = 768; F5 = 1024; F4H = 1280
BHELP = 'Bhelp' in os.environ.get('EXPL', '')
NB, NC = (46, 50) if BHELP else (128, 70)
RSTR = 512
FB = 0x1000; FC = FB + 128; F2 = FB + 256
REPL = (FB, FC, F2)
DIAG = bool(int(os.environ.get('DIAG', '0')))
DIAG_OFF = 0x2000000
EXPL = os.environ.get('EXPL', '')
LS = '' if 'local' in EXPL else ' sc1'
def f32(x): return struct.unpack('<I', struct.pack('<f', x))[0]

sID = 2; sW = 3
pQ, pK, pV, pSH, pSK, pSD, pBX, pWQ, pWO, pOUT, pDBG, pWS = range(4, 28, 2)
WS = 28
SA, SB, SC = 32, 36, 40
sN = 44
sRT, sHP, sR64, sC = 45, 46, 47, 48
sLOC = 67
vL, vI, vG, vL16 = 1, 2, 3, 4

class MK:
    def __init__(self):
        self.a = Asm(); self.nlab = 0; self.names = {'c': [], 'h': [], 'p': []}; self.subs = []
    def lab(self, p):
        self.nlab += 1; return f'{p}_{self.nlab}'
    def stamp(self, name):
        if not DIAG: return
        name = str(name)
        if name == 'start': i = 0
        else:
            sel = os.environ.get('STAMPS', '').split(',')
            if not any(name.startswith(p) for p in sel if p): return
            cls = name[0] if name[0] in 'ch' else 'p'
            lists = self.names
            if name not in lists[cls]: lists[cls].append(name)
            k = lists[cls].index(name)
            i = 1 + k + (0 if cls in 'ch' else max(len(lists['c']), len(lists['h'])))
            if i > 15: print('stamp dropped', name); lists[cls].remove(name); return
        self.a.e(f's_mem{"time" if name.endswith("_cyc") else "realtime"} s[{68+2*i}:{69+2*i}]')
    def srd(self, d, ptr, nbytes):
        a = self.a
        a.e(f's_mov_b32 s{d}, s{ptr}'); a.e(f's_mov_b32 s{d+1}, s{ptr+1}')
        a.e(f's_mov_b32 s{d+2}, {hex(nbytes)}'); a.e(f's_mov_b32 s{d+3}, 0x20000')
    def set_flag(self, idx_sgpr, base, vt, tag=None, local=False):
        a = self.a
        if tag is None: a.e('s_waitcnt vmcnt(0)')
        else: a.wait_vm(tag)
        a.e('s_barrier')
        self.write_flag(idx_sgpr, base, vt, local)
    def write_flag(self, idx_sgpr, base, vt, local=False):
        a = self.a
        L = self.lab('NOFLAG')
        a.e(f's_cmp_lg_u32 s{sW}, 0'); a.e(f's_cbranch_scc1 {L}')
        a.e(f's_lshl_b32 s49, s{idx_sgpr}, 2'); a.e(f's_add_u32 s49, s49, {hex(FLG_OFF + 4*base)}')
        if base in REPL:
            a.e(f'v_mul_u32_u24 v{vt}, {4*RSTR}, v{vL}'); a.e(f'v_add_u32 v{vt}, s49, v{vt}')
        else:
            a.e(f'v_mov_b32 v{vt}, s49')
        a.e(f'v_mov_b32 v{vt+1}, s{sN}')
        a.e(f's_mov_b64 exec, {0xff if base in REPL else 1}')
        a.e(f'buffer_store_dword v{vt+1}, v{vt}, s[{WS}:{WS+3}], 0 offen' + ('' if local else ' sc1'), count=False)
        a.e('s_mov_b64 exec, -1')
        a.label(L)
    def poll_addr(self, first_sgpr, base, n, vt, n_sgpr=None):
        a = self.a
        nl = (n + 63) // 64
        if first_sgpr is None: a.e(f's_mov_b32 s49, {hex(FLG_OFF + 4*base)}')
        else:
            a.e(f's_lshl_b32 s49, s{first_sgpr}, 2'); a.e(f's_add_u32 s49, s49, {hex(FLG_OFF + 4*base)}')
        if base in REPL:
            a.e(f's_and_b32 s50, s{sID}, 7'); a.e(f's_mul_i32 s50, s50, {4*RSTR}'); a.e('s_add_u32 s49, s49, s50')
        for j in range(nl):
            if n_sgpr is not None:
                a.e(f's_sub_u32 s50, s{n_sgpr}, 1'); a.e(f'v_min_u32 v{vt+j}, s50, v{vL}')
            elif 64 * (j + 1) <= n:
                a.e(f'v_add_u32 v{vt+j}, {64*j}, v{vL}')
            else:
                a.e(f'v_add_u32 v{vt+j}, {64*j}, v{vL}'); a.e(f'v_min_u32 v{vt+j}, {n-1}, v{vt+j}')
            a.e(f'v_lshl_add_u32 v{vt+j}, v{vt+j}, 2, s49')
        return nl
    def poll_issue(self, nl, vt, count=True, tag=None):
        for j in range(nl):
            self.a.e(f'buffer_load_dword v{vt+nl+j}, v{vt+j}, s[{WS}:{WS+3}], 0 offen sc1', tag, count=count)
    def poll_check(self, nl, vt, done):
        a = self.a
        for j in range(nl):
            a.e(f'v_cmp_ne_u32 {"vcc" if j == 0 else "s[52:53]"}, s{sN}, v{vt+nl+j}')
            if j: a.e('s_or_b64 vcc, vcc, s[52:53]')
        a.e(f's_cbranch_vccz {done}')
    def poll_loop(self, nl, vt, done, sleep=2):
        a = self.a
        Lp = self.lab('POLL')
        a.e('s_mov_b32 s51, 0x8000')
        a.label(Lp)
        self.poll_issue(nl, vt, count=False)
        a.e('s_waitcnt vmcnt(0)', count=False)
        self.poll_check(nl, vt, done)
        sl = int(os.environ.get('PSLEEP', sleep)) if sleep == 2 else sleep
        if sl: a.e(f's_sleep {sl}')
        a.e('s_sub_u32 s51, s51, 1'); a.e('s_cmp_lg_u32 s51, 0')
        a.e(f's_cbranch_scc1 {Lp}')
    def poll(self, first_sgpr, base, n, vt, barrier=True, allwaves=False, n_sgpr=None, sleep=2):
        a = self.a
        Ld = self.lab('POLLDONE')
        if not allwaves:
            a.e(f's_cmp_lg_u32 s{sW}, 0'); a.e(f's_cbranch_scc1 {Ld}')
        nl = self.poll_addr(first_sgpr, base, n, vt, n_sgpr)
        if 'newpoll' not in EXPL:
            self.poll_loop(nl, vt, Ld, sleep)
        else:
            def issue(k):
                for j in range(nl):
                    a.e(f'buffer_load_dword v{vt+nl*(k+1)+j}, v{vt+j}, s[{WS}:{WS+3}], 0 offen sc1', count=False)
            def check(k):
                for j in range(nl):
                    a.e(f'v_cmp_ne_u32 {"vcc" if j == 0 else "s[52:53]"}, s{sN}, v{vt+nl*(k+1)+j}')
                    if j: a.e('s_or_b64 vcc, vcc, s[52:53]')
                a.e(f's_cbranch_vccz {Ld}')
            Lp = self.lab('POLL')
            a.e('s_mov_b32 s51, 0x4000')
            issue(0); a.e('s_sleep 3'); issue(1); a.e('s_sleep 3')
            a.label(Lp)
            for k in range(3):
                issue((k + 2) % 3)
                a.e(f's_waitcnt vmcnt({2*nl})', count=False)
                check(k)
                a.e('s_sleep 1')
            a.e('s_sub_u32 s51, s51, 1'); a.e('s_cmp_lg_u32 s51, 0')
            a.e(f's_cbranch_scc1 {Lp}')
        a.label(Ld)
        if barrier: a.e('s_barrier')
        if allwaves: a.vm = []
    def stores(self, ins, tag=None, bulk=False):
        a = self.a
        if 'nolocal' in EXPL or (bulk and 'bulklocal' not in EXPL):
            for x in ins: a.e(x + ' sc1', tag)
            return
        Lg = self.lab('STG'); Le = self.lab('STE')
        a.e(f's_cmp_eq_u32 s{sLOC}, 0'); a.e(f's_cbranch_scc1 {Lg}')
        for x in ins: a.e(x, tag, count=False)
        a.e(f's_branch {Le}')
        a.label(Lg)
        for x in ins: a.e(x + ' sc1', tag)
        a.label(Le)
    def set_flag_dual(self, idx_sgpr, base, vt, keep=0, readback=None):
        a = self.a
        saved = list(a.vm[len(a.vm) - keep:]) if keep else []
        a.e(f's_waitcnt vmcnt({keep})')
        a.e('s_barrier')
        L = self.lab('NOFLAG'); Le = self.lab('FLAGEND')
        a.e(f's_cmp_lg_u32 s{sW}, 0'); a.e(f's_cbranch_scc1 {L}')
        a.e(f's_lshl_b32 s49, s{idx_sgpr}, 2'); a.e(f's_add_u32 s49, s49, {hex(FLG_OFF + 4*base)}')
        a.e(f'v_mov_b32 v{vt}, s49'); a.e(f'v_mov_b32 v{vt+1}, s{sN}')
        a.e('s_mov_b64 exec, 1')
        self.stores([f'buffer_store_dword v{vt+1}, v{vt}, s[{WS}:{WS+3}], 0 offen'])
        a.e('s_mov_b64 exec, -1')
        if readback: a.e(f's_branch {Le}')
        a.label(L)
        if readback:
            readback()
            a.label(Le)
        a.vm = saved
    def dump(self, n):
        if not DIAG: return
        a = self.a
        a.e('s_waitcnt lgkmcnt(0) vmcnt(0)')
        a.e(f's_add_u32 s52, s{pWS}, {hex(DIAG_OFF)}'); a.e(f's_addc_u32 s53, s{pWS+1}, 0')
        a.e(f's_lshl_b32 s54, s{sID}, 6'); a.e('v_mov_b32 v8, s54')
        L = self.lab('NODUMP')
        a.e(f's_cmp_lg_u32 s{sW}, 0'); a.e(f's_cbranch_scc1 {L}')
        a.e('s_mov_b64 exec, 1')
        for i in range(n):
            a.e(f'v_mov_b32 v9, s{68+2*i}')
            a.e(f'global_store_dword v8, v9, s[52:53] offset:{4*i}')
        a.e('s_mov_b64 exec, -1')
        a.label(L)
```

```python
import sys
from mcommon import *
from m_p1 import helper_path
from m_conv import conv_path, WSZ

PREFETCH = int(os.environ.get('PREFETCH', '1'))
def build(upto=99):
    M = MK(); a = M.a
    M.stamp('start')
    a.e(f's_cmp_ge_u32 s{sID}, 256'); a.e('s_cbranch_scc1 MEGA_END')
    a.e('s_load_dwordx16 s[4:19], s[0:1], 0'); a.e('s_load_dwordx8 s[20:27], s[0:1], 64')
    a.e(f'v_lshrrev_b32 v{vL}, 6, v0'); a.e('s_nop 0'); a.e(f'v_readfirstlane_b32 s{sW}, v{vL}')
    a.e(f'v_and_b32 v{vL}, 63, v0'); a.e(f'v_and_b32 v{vI}, 15, v{vL}'); a.e(f'v_lshrrev_b32 v{vG}, 4, v{vL}'); a.e(f'v_lshlrev_b32 v{vL16}, 4, v{vL}')
    if not PREFETCH: a.label('MEGA_PC')
    if PREFETCH:
        a.e('s_getpc_b64 s[52:53]')
        a.label('MEGA_PC')
        a.e(f's_lshr_b32 s49, s{sID}, 3'); a.e('s_lshl_b32 s49, s49, 2'); a.e(f's_add_u32 s49, s49, s{sW}'); a.e('s_lshl_b32 s49, s49, 11')
        a.e(f'v_and_b32 v5, 15, v{vL}'); a.e('v_lshl_add_u32 v5, v5, 7, s49')
        a.e('v_min_u32 v5, CODE_BYTES, v5')
        a.e('global_load_dword v255, v5, s[52:53]', count=False)
    a.e(f's_and_b32 s49, s{sID}, 7'); a.e(f's_lshr_b32 s50, s{sID}, 3')
    if 'oldmap' in EXPL:
        a.e(f's_lshl_b32 s{sRT}, s49, 1'); a.e('s_and_b32 s51, s50, 1'); a.e(f's_add_u32 s{sRT}, s{sRT}, s51'); a.e(f's_lshr_b32 s{sHP}, s50, 1')
    else:
        a.e('s_sub_u32 s51, s50, 12'); a.e('s_lshr_b32 s51, s51, 1'); a.e('s_add_u32 s51, s51, 12')
        a.e('s_cmp_lt_u32 s50, 12'); a.e(f's_cselect_b32 s{sHP}, s50, s51'); a.e('s_and_b32 s51, s50, 1'); a.e('s_cselect_b32 s51, s51, s51')
        a.e('s_cmp_lt_u32 s50, 12'); a.e('s_cselect_b32 s51, 0, s51')
        a.e('s_sub_u32 s52, s50, 20'); a.e('s_cmp_ge_u32 s50, 20'); a.e(f's_cselect_b32 s{sHP}, s52, s{sHP}'); a.e('s_cselect_b32 s51, 1, s51')
        a.e(f's_lshl_b32 s{sRT}, s49, 1'); a.e(f's_add_u32 s{sRT}, s{sRT}, s51')
    a.e(f's_lshl_b32 s{sR64}, s49, 2'); a.e('s_and_b32 s51, s50, 3'); a.e(f's_add_u32 s{sR64}, s{sR64}, s51'); a.e(f's_lshr_b32 s{sC}, s50, 2')
    a.e('s_waitcnt lgkmcnt(0)')
    M.srd(WS, pWS, WS_END)
    a.e(f's_mov_b32 s49, {hex(NONCE_OFF)}'); a.e(f's_load_dword s{sN}, s[{pWS}:{pWS+1}], s49')
    a.e(f's_cmp_ge_u32 s{sID}, 160'); a.e('s_cbranch_scc1 MEGA_HELPER')
    conv_path(M)
    a.e('s_branch MEGA_P3')
    a.label('MEGA_HELPER')
    helper_path(M)
    a.label('MEGA_P3')
    a.reset_counts()
    if upto >= 3:
        from m_p3 import p3, p3_pre
        from m_p4 import p4
        p3_pre(M)
        p3(M, 1)
        if upto >= 4: p4(M, 1)
        if upto >= 5: p3(M, 2)
        if upto >= 6: p4(M, 2)
    M.stamp('zend')
    L = M.lab('NONONCE')
    a.e(f's_or_b32 s49, s{sID}, s{sW}'); a.e('s_cmp_lg_u32 s49, 0'); a.e(f's_cbranch_scc1 {L}')
    if upto < 3:
        M.poll(None, F2, 160, 8, barrier=False, allwaves=True)
    a.e(f'v_mov_b32 v8, {hex(NONCE_OFF)}'); a.e(f'v_mov_b32 v9, s{sN}')
    a.e('s_mov_b64 exec, 1'); a.e(f'buffer_store_dword v9, v8, s[{WS}:{WS+3}], 0 offen sc1'); a.e('s_mov_b64 exec, -1')
    a.label(L)
    M.dump(16)
    a.label('MEGA_END')
    a.e('s_endpgm')
    for sub in M.subs: a.ins.extend(sub.ins)
    a.label('MEGA_LAST'); a.e('s_endpgm')
    n = a.fix_hazards()
    name = NAME + '_kernel'
    s = '''; One persistent kernel: 256 workgroups of 4 waves, one per CU (160 KB LDS, 512 registers per lane).
; @launch grid=(256,1,1) block=(256,1,1) lds=163840
.amdgcn_target "amdgcn-amd-amdhsa--gfx950"
.text
'''
    s += '.set CODE_BYTES, MEGA_LAST - MEGA_PC\n'
    s += f'.globl {name}\n.p2align 8\n.type {name},@function\n{name}:\n' + a.text()
    s += f'''.section .rodata,"a"
.p2align 6
.amdhsa_kernel {name}
  .amdhsa_next_free_vgpr 512
  .amdhsa_next_free_sgpr 102
  .amdhsa_accum_offset 256
  .amdhsa_group_segment_fixed_size 0
  .amdhsa_kernarg_size 96
  .amdhsa_user_sgpr_count 2
  .amdhsa_user_sgpr_kernarg_segment_ptr 1
  .amdhsa_system_sgpr_workgroup_id_x 1
  .amdhsa_float_denorm_mode_32 3
.end_amdhsa_kernel
'''
    if DIAG: s = '; stamps: ' + repr(M.names) + '\n' + s
    return s
if __name__ == '__main__':
    upto = int(sys.argv[2]) if len(sys.argv) > 2 else 99
    open(sys.argv[1], 'w').write(build(upto))
```
